```python
import torch

def _softmax(x, axis=-1):
    return torch.softmax(x, dim=axis)
def _gelu(x):
    return torch.nn.functional.gelu(x, approximate="tanh")
def _silu(x):
    return torch.nn.functional.silu(x)
def _sigmoid(x):
    return torch.sigmoid(x)
def _layernorm(x, axis=-1, eps=1e-5):
    m = x.mean(dim=axis, keepdim=True)
    v = x.var(dim=axis, keepdim=True, unbiased=False)
    return (x - m) / torch.sqrt(v + eps)
def _scatter_add(tgt, idx, src, axis=0):
    return tgt.clone().index_add_(axis, idx, src)
def _segment_sum(src, seg, n):
    out = torch.zeros((n,) + src.shape[1:], dtype=src.dtype)
    return out.index_add_(0, seg, src)
def _pad(x, pw):
    flat = tuple(v for pair in reversed(pw) for v in pair)
    return torch.nn.functional.pad(x, flat)

kernel_name = 'interleave_layers__sliding_block_cached__dense_activation_silu__decode'

def setup_inputs():

    _w = (lambda a: (lambda t: t.to(torch.bfloat16) if t.is_floating_point() else t)(torch.as_tensor(a)))
    def _A_setup():
        B, Sq, D = 4, 1, 512
        Hq, Hkv, Sk, Dh = 32, 8, 4096, 128
        assert Hq % Hkv == 0, (Hq, Hkv)
        return {
            "x": _w((lambda *s: torch.randn(*s, dtype=torch.bfloat16) * 0.1)(B, Sq, D)),
            "k_cache": _w((lambda *s: torch.randn(*s, dtype=torch.bfloat16) * 0.8)(B, Hkv, Sk, Dh)),
            "v_cache": _w((lambda *s: torch.randn(*s, dtype=torch.bfloat16) * 3.2)(B, Hkv, Sk, Dh)),
            "wq": _w((lambda *s: torch.randn(*s, dtype=torch.bfloat16) * 0.8)(D, Hq * Dh) * (D ** -0.5)),
            "wo": _w((lambda *s: torch.randn(*s, dtype=torch.bfloat16) * 3.2)(Hq * Dh, D) * ((Hq * Dh) ** -0.5)),
        }
    _A_in = _A_setup()

    def _B_setup():
        B, S, D, F = 4, 1, 512, 1792
        return {
            "x": _w((lambda *s: torch.randn(*s, dtype=torch.bfloat16) * 0.1)(B, S, D)),
            "w1": _w((lambda *s: torch.randn(*s, dtype=torch.bfloat16) * 1.6)(D, F) * (D ** -0.5)),
            "w2": _w((lambda *s: torch.randn(*s, dtype=torch.bfloat16) * 0.4)(F, D) * (F ** -0.5)),
        }
    _B_in = _B_setup()

    return {
        "A_x": _A_in["x"],
        "A_k_cache": _A_in["k_cache"],
        "A_v_cache": _A_in["v_cache"],
        "A_wq": _A_in["wq"],
        "A_wo": _A_in["wo"],
        "B_x": _B_in["x"],
        "B_w1": _B_in["w1"],
        "B_w2": _B_in["w2"],
    }

def reference(A_x, A_k_cache, A_v_cache, A_wq, A_wo, B_x, B_w1, B_w2):
    def _A_ref(x, k_cache, v_cache, wq, wo):
        B, Sq, D = x.shape
        Hq, Dh = 32, 128
        Hkv, Sk = k_cache.shape[1], k_cache.shape[2]
        W = min(4096, max(256, Sk // 4))
        rep = Hq // Hkv
        q = (lambda x, *d: x.permute(*d))((x @ wq).reshape(B, Sq, Hq, Dh), 0, 2, 1, 3)
        k = (lambda x, n, axis: torch.repeat_interleave(x, n, dim=axis))(k_cache[:, :, Sk - W:, :], rep, axis=1)
        v = (lambda x, n, axis: torch.repeat_interleave(x, n, dim=axis))(v_cache[:, :, Sk - W:, :], rep, axis=1)
        scores = torch.einsum("bhqd,bhkd->bhqk", q, k) * (Dh ** -0.5)
        p = _softmax(scores, axis=-1)
        o = torch.einsum("bhqk,bhkd->bhqd", p, v)
        return (lambda x, *d: x.permute(*d))(o, 0, 2, 1, 3).reshape(B, Sq, Hq * Dh) @ wo

    def _B_ref(x, w1, w2):
        h = torch.einsum("bsd,df->bsf", x, w1)
        h = _silu(h)
        out = torch.einsum("bsf,fd->bsd", h, w2)
        return out

    x = A_x
    x = x + _A_ref(_layernorm(x, axis=-1), A_k_cache, A_v_cache, A_wq, A_wo)
    x = x + _B_ref(_layernorm(x, axis=-1), B_w1, B_w2)
    x = x + _A_ref(_layernorm(x, axis=-1), A_k_cache, A_v_cache, A_wq, A_wo)
    x = x + _B_ref(_layernorm(x, axis=-1), B_w1, B_w2)
    return x
```

```python
import sys, math, struct

NAME = "interleave_layers__sliding_block_cached__dense_activation_silu__decode"
HEADER = open("cdna_kernels/%s.s.ref" % NAME).read().split("; Override launch")[0]

def f2u(x): return struct.unpack("<I", struct.pack("<f", x))[0]

class Cfg:
    stamps = False
    ncopy = 1
    d_q1 = 16
    d_q = 3
    d_o = 3
    d_x = 8
    d_h = 3
    d_y = 8
    retry_l = 1
    retry_x = 4
    force_sc1 = False

L_WQ, L_V, L_WO, L_W1, L_W2 = 0, 16384, 49152, 81920, 90112
L_XS = 118784
L_ONES = L_XS + 1280
L_QS = L_ONES + 320
L_PS = L_QS + 1280
L_MS = L_PS + 4096
L_LS = L_MS + 64
L_CR = L_LS + 64
L_HS = L_CR + 5120
L_OK = L_HS + 512
L_END = L_OK + 64
LDS_BYTES = 132096
assert L_END <= LDS_BYTES
W_EPOCH = 0
W_L0 = 0x10000
LSTRIDE = 0x200000
W_QP = 0x000000
W_O = 0x080000
W_ML = 0x0C0000
W_HP = 0x100000
W_XP = 0x140000
W_YP = 0x160000
W_HINT = 0x180000
W_STAMP = 0x800000

class G:
    def __init__(self, cfg):
        self.cfg = cfg
        self.o = []
        self.nv = 0
        self.lab = 0
        self.nst = 0
    def e(self, s):
        for ln in s.strip("\n").split("\n"):
            self.o.append("    " + ln.strip() if not ln.strip().endswith(":") else ln.strip())
    def v(self, n=1, al=1):
        if n >= 2: al = max(al, 2)
        self.nv = (self.nv + al - 1) // al * al
        r = self.nv
        self.nv += n
        return r
    def L(self, p="L"):
        self.lab += 1
        return f"{p}_{self.lab}"
    def stamp(self):
        if not self.cfg.stamps: return
        i = self.nst
        self.nst += 1
        cur = 96 + 2 * (i & 1)
        prev = 96 + 2 * ((i + 1) & 1)
        if i > 0:
            self.e(f"s_waitcnt lgkmcnt(0)\nv_writelane_b32 v{self.vst}, s{prev}, {i-1}")
        self.e(f"s_memrealtime s[{cur}:{cur+1}]")

def R(a, n): return f"v[{a}:{a+n-1}]"
DPP = "row_mask:0xf bank_mask:0xf"

def gen(cfg):
    g = G(cfg)
    e = g.e
    sX, sK, sV, sWQ, sWO, sW1, sW2, sOUT, sWS = "s[4:5]", "s[6:7]", "s[8:9]", "s[10:11]", "s[12:13]", "s[16:17]", "s[18:19]", "s[20:21]", "s[24:25]"
    sG, sR, sHI, sLO, sW, sT = "s26", "s27", "s28", "s29", "s30", "s31"
    sTB = ["s32", "s33", "s34", "s35"]
    sMASK, sLOC = "s36", "s37"
    sWL = ["s[38:39]", "s[40:41]"]
    sCNT = "s46"
    sXCC = "s47"
    g.v(1)
    vL = g.v(); vA = g.v(); vBQ = g.v(); vU = g.v(); vI = g.v()
    vTAG = g.v(); vZERO = g.v()
    g.vst = g.v()
    vXG = g.v(); vCP = g.v(); vEP = g.v(); vAP = g.v(); vAS = g.v(); vQL = g.v(); vQC = g.v(); vQST = g.v()
    vDP = g.v(); vDS = g.v(); vHL = g.v(); vHC = g.v(); vHST = g.v(); vOP = g.v(); vMP = g.v(); vOL = g.v(); vML = g.v()
    lXW = g.v(); lXR = g.v(); lQW = g.v(); lQR = g.v(); lP = g.v(); lMW = g.v(); lMR = g.v(); lCW = g.v(); lCR = g.v(); lHW = g.v(); lHR = g.v()
    vVA = g.v()
    vXR = g.v(4)
    vCS = g.v(4)
    vCS1 = g.v()
    vSC = g.v()
    oK = g.v(32, 4); oV = g.v(16, 4); oWQ = g.v(16, 4); oWO = g.v(16, 4); oW1 = g.v(16, 4); oW2 = g.v(28, 4)
    T = g.v(64, 4)
    t = lambda i: f"v{T+i}"

    def tagchk4(base, acc, first):
        for i in range(4):
            e(f"v_xor_b32 v{base+i}, {sTB[i]}, v{base+i}")
        if first:
            e(f"v_or3_b32 {acc}, v{base}, v{base+1}, v{base+2}\nv_or_b32 {acc}, {acc}, v{base+3}")
        else:
            e(f"v_or3_b32 {acc}, {acc}, v{base}, v{base+1}\nv_or3_b32 {acc}, {acc}, v{base+2}, v{base+3}")

    def poll(issue, check, delay, retry, extra=None, nextra=0):
        lp, dn = g.L("Lp"), g.L("Ld")
        if delay: e(f"s_sleep {delay}")
        e(f"s_mov_b32 {sCNT}, 0")
        if extra:
            issue(); extra()
            e(f"s_waitcnt vmcnt({nextra})")
            check()
            e(f"s_cbranch_vccz {dn}")
        e(f"{lp}:")
        issue()
        e("s_waitcnt vmcnt(0)")
        check()
        e(f"s_cbranch_vccz {dn}")
        e(f"s_add_u32 {sCNT}, {sCNT}, 1\ns_cmp_gt_u32 {sCNT}, 0x8000\ns_cbranch_scc1 {dn}")
        if retry: e(f"s_sleep {retry}")
        e(f"s_branch {lp}\n{dn}:")

    def lstore(ins):
        if cfg.force_sc1:
            for s in ins: e(s + " sc1")
            return
        a, b = g.L("Ls"), g.L("Ls")
        e(f"s_cmp_eq_u32 {sLOC}, 0\ns_cbranch_scc1 {a}")
        for s in ins: e(s)
        e(f"s_branch {b}\n{a}:")
        for s in ins: e(s + " sc1" if s.startswith("global") else s)
        e(f"{b}:")

    def wave_if(cond, imm, label):
        inv = {"lt": "ge", "ge": "lt", "eq": "lg", "lg": "eq"}[cond]
        e(f"s_cmp_{inv}_u32 {sW}, {imm}\ns_cbranch_scc1 {label}")

    e(f"""
    s_cmp_ge_u32 s2, 256
    s_cbranch_scc1 L_end
    s_load_dwordx16 s[4:19], s[0:1], 0
    s_load_dwordx4 s[20:23], s[0:1], 64
    s_load_dwordx2 s[24:25], s[0:1], 80
    """)
    if cfg.stamps: e(f"v_mov_b32 v{g.vst}, 0")
    g.stamp()
    e(f"""
    v_lshrrev_b32 {t(0)}, 6, v0
    v_and_b32 v{vL}, 63, v0
    s_and_b32 {sG}, s2, 7
    v_readfirstlane_b32 {sW}, {t(0)}
    s_lshr_b32 {sR}, s2, 3
    s_lshr_b32 {sHI}, {sR}, 3
    s_and_b32 {sLO}, {sR}, 7
    v_and_b32 v{vA}, 3, v{vL}
    v_bfe_u32 v{vBQ}, v{vL}, 2, 2
    v_lshrrev_b32 v{vU}, 4, v{vL}
    v_and_b32 v{vI}, 15, v{vL}
    s_getreg_b32 {sXCC}, hwreg(HW_REG_XCC_ID, 0, 4)
    """)
    e(f"""
    s_lshl_b32 s48, {sHI}, 8
    s_lshl_b32 s49, {sW}, 5
    s_add_u32 s48, s48, s49
    v_lshlrev_b32 {t(0)}, 10, v{vU}
    v_lshl_add_u32 {t(0)}, v{vA}, 3, {t(0)}
    v_add_u32 {t(0)}, s48, {t(0)}
    """)
    e(f"""
    v_lshrrev_b32 {t(1)}, 3, v{vL}
    v_and_b32 {t(2)}, 7, v{vL}
    v_lshlrev_b32 {t(3)}, 1, v{vU}
    v_xor_b32 {t(2)}, {t(2)}, {t(3)}
    v_lshlrev_b32 {t(2)}, 4, {t(2)}
    s_lshl_b32 s48, {sHI}, 20
    s_lshl_b32 s49, {sW}, 17
    s_add_u32 s48, s48, s49
    s_lshl_b32 s49, {sG}, 10
    s_add_u32 s48, s48, s49
    s_lshl_b32 s49, {sLO}, 7
    s_add_u32 s48, s48, s49
    v_lshl_add_u32 {t(4)}, {t(1)}, 13, {t(2)}
    v_add_u32 {t(4)}, s48, {t(4)}
    v_add_u32 {t(5)}, 0x10000, {t(4)}
    """)
    e(f"""
    s_lshl_b32 s50, {sHI}, 23
    s_lshl_b32 s49, {sG}, 20
    s_add_u32 s50, s50, s49
    s_lshl_b32 s49, {sLO}, 12
    s_add_u32 s50, s50, s49
    s_add_u32 s50, s50, 0xC0000
    s_and_b32 s51, {sW}, 3
    s_lshl_b32 s52, {sW}, 11
    """)
    e(f"""
    s_lshl_b32 s49, s51, 15
    s_add_u32 s49, s49, s50
    v_lshlrev_b32 {t(6)}, 8, v{vI}
    v_lshl_add_u32 {t(6)}, v{vU}, 4, {t(6)}
    v_add_u32 {t(6)}, s49, {t(6)}
    v_add_u32 {t(7)}, 0x20000, {t(6)}
    v_mov_b32 {t(8)}, -1
    v_mov_b32 {t(9)}, -1
    v_mov_b32 {t(10)}, -1
    v_mov_b32 {t(11)}, -1
    s_waitcnt lgkmcnt(0)
    s_load_dword {sT}, {sWS}, {W_EPOCH}
    s_add_u32 s38, s24, {W_L0}
    s_addc_u32 s39, s25, 0
    s_add_u32 s40, s24, {W_L0 + LSTRIDE}
    s_addc_u32 s41, s25, 0
    """)
    lc = g.L("Lc"); lc2 = g.L("Lc")
    wave_if("ge", 6, lc)
    e(f"""
    s_lshl_b32 s48, {sG}, 15
    s_lshl_b32 s49, {sR}, 10
    s_add_u32 s48, s48, s49
    s_and_b32 s49, {sW}, 1
    s_mul_i32 s49, s49, {LSTRIDE}
    s_add_u32 s48, s48, s49
    s_add_u32 s48, s48, {W_O}
    v_lshlrev_b32 {t(12)}, 4, v{vL}
    v_add_u32 {t(12)}, s48, {t(12)}
    global_store_dwordx4 {t(12)}, {R(T+8,4)}, {sWL[0]} sc1
    {lc}:
    """)
    wave_if("eq", 5, lc2)
    e(f"""
    s_cmp_lg_u32 {sR}, 0
    s_cbranch_scc1 {lc2}
    s_lshl_b32 s48, {sG}, 9
    s_add_u32 s48, s48, {W_ML}
    v_and_b32 {t(12)}, 31, v{vL}
    v_lshlrev_b32 {t(12)}, 4, {t(12)}
    v_lshrrev_b32 {t(13)}, 5, v{vL}
    v_lshl_add_u32 {t(12)}, {t(13)}, {int(math.log2(LSTRIDE))}, {t(12)}
    v_add_u32 {t(12)}, s48, {t(12)}
    global_store_dwordx4 {t(12)}, {R(T+8,4)}, {sWL[0]} sc1
    {lc2}:
    """)
    e(f"""
    global_load_dwordx2 {R(T+14,2)}, {t(0)}, {sX}
    s_add_u32 m0, s52, {L_WQ}
    s_nop 0
    global_load_lds_dwordx4 {t(4)}, {sWQ} nt
    s_add_u32 m0, s52, {L_WQ + 1024}
    s_nop 0
    global_load_lds_dwordx4 {t(5)}, {sWQ} nt
    """)
    lk = g.L("Lk")
    wave_if("lt", 4, lk)
    for h in range(2):
        for ks in range(4):
            e(f"global_load_dwordx4 {R(oK + (h*4+ks)*4, 4)}, {t(6+h)}, {sK} offset:{ks*64} nt")
    e(f"{lk}:")
    g.stamp()
    e(f"""
    s_lshl_b32 s48, s51, 2
    v_add_u32 {t(8)}, s48, v{vU}
    v_and_b32 {t(8)}, 7, {t(8)}
    v_lshlrev_b32 {t(8)}, 1, {t(8)}
    v_xor_b32 {t(8)}, {t(8)}, v{vI}
    v_lshlrev_b32 {t(8)}, 4, {t(8)}
    v_lshl_add_u32 {t(8)}, v{vU}, 8, {t(8)}
    s_lshl_b32 s49, s51, 10
    s_add_u32 s48, s49, s50
    v_add_u32 v{vVA}, s48, {t(8)}
    s_add_u32 s53, s49, {L_V}
    v_mov_b32 v{vZERO}, 0
    s_mov_b32 {sMASK}, 0xffffff00
    s_mov_b32 {sLOC}, 0
    """)
    aW2, aWO, aW1 = g.v(), g.v(), g.v()
    e(f"""
    s_mul_i32 s48, {sG}, {224*1024}
    s_lshl_b32 s49, {sW}, 15
    s_add_u32 s48, s48, s49
    s_lshl_b32 s49, {sLO}, 7
    s_add_u32 s48, s48, s49
    v_lshl_add_u32 v{aW2}, {t(1)}, 10, {t(2)}
    v_add_u32 v{aW2}, s48, v{aW2}
    v_lshrrev_b32 {t(8)}, 2, v{vL}
    v_lshrrev_b32 {t(9)}, 5, v{vL}
    v_lshlrev_b32 {t(9)}, 1, {t(9)}
    v_xor_b32 {t(9)}, {t(9)}, v{vA}
    v_lshlrev_b32 {t(9)}, 4, {t(9)}
    v_lshl_add_u32 v{aWO}, {t(8)}, 10, {t(9)}
    s_lshl_b32 s48, {sG}, 19
    s_lshl_b32 s49, {sW}, 16
    s_add_u32 s48, s48, s49
    s_and_b32 s49, {sR}, 15
    s_lshl_b32 s49, s49, 6
    s_add_u32 s48, s48, s49
    v_add_u32 v{aWO}, s48, v{aWO}
    v_and_b32 {t(9)}, 1, v{vU}
    v_lshlrev_b32 {t(9)}, 1, {t(9)}
    v_xor_b32 {t(9)}, {t(9)}, v{vA}
    v_lshlrev_b32 {t(9)}, 4, {t(9)}
    s_movk_i32 s48, 3584
    v_mad_u32_u24 v{aW1}, {t(8)}, s48, {t(9)}
    s_lshl_b32 s48, {sHI}, 7
    s_lshl_b32 s49, {sW}, 4
    s_add_u32 s48, s48, s49
    s_mul_i32 s48, s48, 3584
    s_mul_i32 s49, {sG}, 448
    s_add_u32 s48, s48, s49
    s_lshl_b32 s49, {sLO}, 6
    s_add_u32 s48, s48, s49
    v_add_u32 v{aW1}, s48, v{aW1}
    """)
    assert cfg.ncopy == 1
    e(f"""
    s_lshl_b32 s48, {sHI}, 14
    s_add_u32 s48, s48, s52
    s_add_u32 s48, s48, {W_XP}
    v_lshlrev_b32 v{vXG}, 8, v{vBQ}
    v_lshl_add_u32 v{vXG}, v{vU}, 6, v{vXG}
    v_lshl_add_u32 v{vXG}, v{vA}, 4, v{vXG}
    v_add_u32 v{vXG}, s48, v{vXG}
    """)
    e(f"""
    s_and_b32 s48, {sR}, 15
    s_lshl_b32 s48, s48, 12
    s_lshl_b32 s54, {sG}, 8
    s_add_u32 s48, s48, s54
    s_lshr_b32 s55, {sR}, 4
    s_lshl_b32 s49, s55, 7
    s_add_u32 s48, s48, s49
    s_add_u32 s48, s48, {W_XP}
    v_lshrrev_b32 {t(8)}, 5, v{vL}
    v_and_b32 {t(9)}, 31, v{vL}
    v_lshlrev_b32 {t(10)}, 2, {t(9)}
    v_lshl_add_u32 v{vCP}, {t(8)}, 11, {t(10)}
    v_add_u32 v{vCP}, s48, v{vCP}
    """)
    e(f"""
    s_lshl_b32 s48, {sLO}, 13
    s_add_u32 s48, s48, s52
    s_add_u32 s48, s48, s54
    s_lshl_b32 s49, {sHI}, 6
    s_add_u32 s48, s48, s49
    s_add_u32 s48, s48, {W_YP}
    v_lshlrev_b32 {t(11)}, 2, v{vI}
    v_add_u32 v{vEP}, s48, {t(11)}
    """)
    e(f"""
    s_lshl_b32 s56, {sG}, 5
    s_add_u32 s57, s56, {sR}
    s_lshl_b32 s48, s57, 11
    s_add_u32 s48, s48, {W_QP}
    s_lshl_b32 s58, {sW}, 6
    s_add_u32 s49, s48, s58
    v_lshl_add_u32 v{vAP}, v{vU}, 8, {t(11)}
    v_add_u32 v{vAP}, s49, v{vAP}
    s_add_u32 s49, s48, 1280
    v_lshlrev_b32 {t(12)}, 4, v{vU}
    v_add_u32 v{vAS}, s49, {t(12)}
    """)
    e(f"""
    s_add_u32 s48, s56, {sW}
    s_lshl_b32 s48, s48, 11
    s_add_u32 s48, s48, {W_QP}
    v_lshlrev_b32 {t(13)}, 14, v{vBQ}
    v_add_u32 {t(13)}, s48, {t(13)}
    v_lshl_add_u32 v{vQC}, v{vU}, 6, {t(13)}
    v_lshl_add_u32 v{vQC}, v{vA}, 4, v{vQC}
    s_lshl_b32 s49, {sHI}, 8
    v_add_u32 v{vQL}, s49, v{vQC}
    s_lshl_b32 s59, {sHI}, 4
    v_lshl_add_u32 v{vQST}, v{vA}, 2, {t(13)}
    v_add_u32 v{vQST}, s59, v{vQST}
    """)
    e(f"""
    s_lshl_b32 s48, s57, 10
    s_add_u32 s48, s48, {W_HP}
    s_add_u32 s49, s48, s58
    v_lshl_add_u32 v{vDP}, v{vU}, 7, {t(11)}
    v_add_u32 v{vDP}, s49, v{vDP}
    s_add_u32 s49, s48, 640
    v_add_u32 v{vDS}, s49, {t(12)}
    """)
    e(f"""
    s_add_u32 s48, s56, {sW}
    s_lshl_b32 s48, s48, 10
    s_add_u32 s48, s48, {W_HP}
    v_lshl_add_u32 v{vHC}, {t(8)}, 13, {t(10)}
    v_add_u32 v{vHC}, s48, v{vHC}
    s_lshl_b32 s49, {sHI}, 7
    v_add_u32 v{vHL}, s49, v{vHC}
    v_lshlrev_b32 v{vHST}, 13, v{vBQ}
    v_lshl_add_u32 v{vHST}, v{vA}, 2, v{vHST}
    s_add_u32 s49, s48, s59
    v_add_u32 v{vHST}, s49, v{vHST}
    """)
    e(f"""
    s_lshl_b32 s48, {sG}, 15
    s_lshl_b32 s49, s55, 14
    s_add_u32 s48, s48, s49
    s_add_u32 s48, s48, {W_O}
    s_add_u32 s49, s48, s52
    v_lshlrev_b32 v{vOL}, 4, v{vL}
    v_add_u32 v{vOL}, s49, v{vOL}
    s_lshl_b32 s49, {sW}, 9
    s_add_u32 s48, s48, s49
    s_and_b32 s60, {sR}, 15
    s_lshl_b32 s49, s60, 4
    s_add_u32 s48, s48, s49
    v_lshlrev_b32 v{vOP}, 12, v{vU}
    v_bfe_u32 {t(13)}, v{vL}, 3, 1
    v_lshl_add_u32 v{vOP}, {t(13)}, 8, v{vOP}
    v_bfe_u32 {t(13)}, v{vL}, 1, 2
    v_lshl_add_u32 v{vOP}, {t(13)}, 2, v{vOP}
    v_add_u32 v{vOP}, s48, v{vOP}
    """)
    e(f"""
    s_lshl_b32 s48, {sG}, 9
    s_lshl_b32 s49, s55, 8
    s_add_u32 s48, s48, s49
    s_add_u32 s48, s48, {W_ML}
    s_lshl_b32 s49, s60, 2
    s_add_u32 s49, s49, s48
    v_lshlrev_b32 v{vMP}, 6, v{vU}
    v_add_u32 v{vMP}, s49, v{vMP}
    s_lshr_b32 s61, {sW}, 1
    s_lshl_b32 s49, s61, 6
    s_add_u32 s48, s48, s49
    v_lshl_add_u32 {t(13)}, v{vU}, 2, v{vI}
    v_and_b32 {t(13)}, 7, {t(13)}
    v_lshlrev_b32 {t(13)}, 2, {t(13)}
    v_lshl_add_u32 v{vML}, {t(8)}, 5, {t(13)}
    v_add_u32 v{vML}, s48, v{vML}
    """)
    e(f"""
    s_movk_i32 s62, 320
    s_lshl_b32 s48, s61, 6
    s_and_b32 s63, {sW}, 1
    s_lshl_b32 s49, s63, 3
    s_add_u32 s48, s48, s49
    s_add_u32 s48, s48, {L_XS}
    v_lshlrev_b32 {t(13)}, 4, v{vA}
    v_mad_u32_u24 v{lXW}, v{vU}, s62, {t(13)}
    v_add_u32 v{lXW}, s48, v{lXW}
    v_mad_u32_u24 {t(13)}, v{vBQ}, s62, {t(12)}
    v_add_u32 v{lQR}, {L_QS}, {t(13)}
    v_add_u32 v{lXR}, {L_XS}, {t(13)}
    v_mov_b32 {t(16)}, {L_ONES}
    v_cmp_ne_u32 vcc, 0, v{vA}
    s_mul_i32 s48, s61, 320
    s_lshl_b32 s49, s63, 7
    v_cndmask_b32 v{lXR}, v{lXR}, {t(16)}, vcc
    s_add_u32 s48, s48, s49
    s_add_u32 s48, s48, {L_QS}
    v_lshlrev_b32 v{lQW}, 5, v{vU}
    v_lshl_add_u32 v{lQW}, v{vA}, 3, v{lQW}
    v_add_u32 v{lQW}, s48, v{lQW}
    v_lshlrev_b32 v{lP}, 4, v{vL}
    v_add_u32 v{lP}, {L_PS}, v{lP}
    s_lshl_b32 s48, s51, 2
    s_add_u32 s48, s48, {L_MS}
    v_lshlrev_b32 v{lMW}, 4, v{vBQ}
    v_add_u32 v{lMW}, s48, v{lMW}
    v_add_u32 v{lMR}, {L_MS}, {t(12)}
    s_movk_i32 s62, 80
    v_lshl_add_u32 {t(13)}, {t(8)}, 4, v{vI}
    v_and_b32 {t(16)}, 1, v{vU}
    v_lshlrev_b32 {t(16)}, 2, {t(16)}
    v_mad_u32_u24 v{lCW}, {t(13)}, s62, {t(16)}
    s_lshl_b32 s48, {sW}, 3
    s_add_u32 s48, s48, {L_CR}
    v_add_u32 v{lCW}, s48, v{lCW}
    v_mul_u32_u24 v{lCR}, 80, v{vL}
    v_add_u32 v{lCR}, {L_CR}, v{lCR}
    v_lshlrev_b32 v{lHW}, 4, v{vBQ}
    v_lshl_add_u32 v{lHW}, {t(16)}, 1, v{lHW}
    v_lshl_add_u32 v{lHW}, v{vA}, 1, v{lHW}
    s_add_u32 s48, s58, {L_HS}
    v_add_u32 v{lHW}, s48, v{lHW}
    v_add_u32 v{lHR}, {L_HS}, {t(12)}
    """)
    e(f"""
    v_mov_b32 {t(16)}, 0x3f803f80
    v_lshlrev_b32 {t(17)}, 2, v{vL}
    v_add_u32 {t(17)}, {L_ONES}, {t(17)}
    ds_write_b32 {t(17)}, {t(16)}
    s_waitcnt lgkmcnt(0)
    s_add_u32 {sT}, {sT}, 0x3b1d5f27
    s_and_b32 s32, {sT}, 0xff
    s_bfe_u32 s33, {sT}, 0x80008
    s_bfe_u32 s34, {sT}, 0x80010
    s_lshr_b32 s35, {sT}, 24
    v_lshlrev_b32 {t(16)}, 3, v{vA}
    v_lshrrev_b32 v{vTAG}, {t(16)}, {sT}
    v_and_b32 v{vTAG}, 0xff, v{vTAG}
    """)

    def issue_v(b0, b1):
        lv = g.L("Lv")
        wave_if("ge", 4, lv)
        for blk in range(b0, b1):
            klb = 32 * (blk & 3) + 16 * (blk >> 2)
            e(f"s_add_u32 m0, s53, {klb*256}\ns_nop 0\nglobal_load_lds_dwordx4 v{vVA}, {sV} nt\nv_add_u32 v{vVA}, 0x8000, v{vVA}")
        e(f"{lv}:")
    def issue_wo():
        e(f"s_lshl_b32 s48, {sW}, 12")
        for i in range(4):
            e(f"s_add_u32 m0, s48, {L_WO + i*1024}\ns_nop 0\nglobal_load_lds_dwordx4 v{aWO}, {sWO} nt")
            if i < 3: e(f"v_add_u32 v{aWO}, 0x4000, v{aWO}")
    def issue_w1():
        l1 = g.L("Lw")
        e(f"s_cmp_eq_u32 {sLO}, 7\ns_cbranch_scc1 {l1}\ns_lshl_b32 s48, {sW}, 10\ns_add_u32 m0, s48, {L_W1}\ns_nop 0\nglobal_load_lds_dwordx4 v{aW1}, {sW1} nt\n{l1}:")
    def issue_w2():
        l2 = g.L("Lw")
        wave_if("lt", 7, l2)
        e(f"s_lshl_b32 s48, {sW}, 12")
        for i in range(4):
            e(f"s_add_u32 m0, s48, {L_W2 + i*1024}\ns_nop 0\nglobal_load_lds_dwordx4 v{aW2}, {sW2} nt")
            if i < 3: e(f"v_add_u32 v{aW2}, 0x2000, v{aW2}")
        e(f"{l2}:")

    def tr128(dst, base, nks, tile_s):
        e(f"""
        v_lshl_add_u32 {t(40)}, v{vU}, 2, v{vBQ}
        v_bfe_u32 {t(41)}, {t(40)}, 1, 2
        v_xor_b32 {t(41)}, {tile_s}, {t(41)}
        v_lshlrev_b32 {t(41)}, 5, {t(41)}
        v_lshl_add_u32 {t(41)}, {t(40)}, 7, {t(41)}
        v_lshl_add_u32 {t(41)}, v{vA}, 3, {t(41)}
        v_add_u32 {t(41)}, {base}, {t(41)}
        """)
        for ks in range(nks):
            for h in range(2):
                e(f"ds_read_b64_tr_b16 {R(dst + ks*4 + h*2, 2)}, {t(41)} offset:{ks*4096 + h*2048}")
    def tr_w1():
        e(f"""
        v_lshl_add_u32 {t(40)}, v{vU}, 2, v{vBQ}
        v_and_b32 {t(41)}, 1, v{vU}
        v_xor_b32 {t(41)}, {sW}, {t(41)}
        v_lshlrev_b32 {t(41)}, 5, {t(41)}
        v_lshl_add_u32 {t(41)}, {t(40)}, 6, {t(41)}
        v_lshl_add_u32 {t(41)}, v{vA}, 3, {t(41)}
        v_add_u32 {t(41)}, {L_W1}, {t(41)}
        """)
        for ks in range(4):
            for h in range(2):
                e(f"ds_read_b64_tr_b16 {R(oW1 + ks*4 + h*2, 2)}, {t(41)} offset:{ks*2048 + h*1024}")
    def tr_wo():
        e(f"""
        v_lshl_add_u32 {t(40)}, v{vU}, 3, v{vBQ}
        v_and_b32 {t(41)}, 1, v{vU}
        v_lshlrev_b32 {t(41)}, 5, {t(41)}
        v_lshl_add_u32 {t(41)}, {t(40)}, 6, {t(41)}
        v_lshl_add_u32 {t(41)}, v{vA}, 3, {t(41)}
        s_lshl_b32 s48, {sW}, 12
        s_add_u32 s48, s48, {L_WO}
        v_add_u32 {t(41)}, s48, {t(41)}
        v_xor_b32 {t(42)}, 32, {t(41)}
        """)
        for tile in range(2):
            for ks in range(2):
                for h in range(2):
                    e(f"ds_read_b64_tr_b16 {R(oWO + (tile*2+ks)*4 + h*2, 2)}, {t(41+tile)} offset:{ks*2048 + h*256}")
    def tr_v():
        e(f"""
        v_lshl_add_u32 {t(40)}, v{vU}, 2, v{vBQ}
        v_and_b32 {t(41)}, 7, {t(40)}
        v_xor_b32 {t(41)}, {sW}, {t(41)}
        v_lshlrev_b32 {t(41)}, 5, {t(41)}
        v_lshl_add_u32 {t(41)}, {t(40)}, 8, {t(41)}
        v_lshl_add_u32 {t(41)}, v{vA}, 3, {t(41)}
        v_add_u32 {t(41)}, {L_V}, {t(41)}
        """)
        for ks in range(4):
            for h in range(2):
                e(f"ds_read_b64_tr_b16 {R(oV + ks*4 + h*2, 2)}, {t(41)} offset:{ks*8192 + h*4096}")

    def unpack_res(p):
        e(f"""
        v_lshlrev_b32 v{vXR}, 16, v{p}
        v_and_b32 v{vXR+1}, 0xffff0000, v{p}
        v_lshlrev_b32 v{vXR+2}, 16, v{p+1}
        v_and_b32 v{vXR+3}, 0xffff0000, v{p+1}
        """)

    def xgather(L, yoff, delay):
        adr = f"v{vXG}"
        if yoff:
            e(f"v_add_u32 {t(20)}, {yoff}, v{vXG}")
            adr = t(20)
        def issue():
            e(f"global_load_dwordx4 {R(T,4)}, {adr}, {sWL[L]} sc1\nglobal_load_dwordx4 {R(T+4,4)}, {adr}, {sWL[L]} offset:1024 sc1")
        def check():
            tagchk4(T, t(8), True); tagchk4(T+4, t(8), False)
            e(f"v_cmp_ne_u32_sdwa vcc, {t(8)}, v{vZERO} src0_sel:BYTE_0 src1_sel:DWORD")
        poll(issue, check, delay, cfg.retry_x)
        e(f"v_pk_add_f32 {R(T,2)}, {R(T,2)}, {R(T+4,2)}\nv_pk_add_f32 {R(T+2,2)}, {R(T+2,2)}, {R(T+6,2)}\ns_nop 0")
        for ror in (4, 8):
            for i in range(4):
                e(f"v_add_f32_dpp {t(i)}, {t(i)}, {t(i)} row_ror:{ror} {DPP}")
        e(f"v_pk_add_f32 {R(T,2)}, {R(T,2)}, {R(vXR,2)}\nv_pk_add_f32 {R(T+2,2)}, {R(T+2,2)}, {R(vXR+2,2)}")
        e(f"v_cvt_pk_bf16_f32 {t(14)}, {t(0)}, {t(1)}\nv_cvt_pk_bf16_f32 {t(15)}, {t(2)}, {t(3)}")

    def gemv_stage(L, ntile, gram_wave, oW, pub, stat, csoff, first, tr, skip_lo7):
        lend, lg = g.L("Lg"), g.L("Lg")
        if skip_lo7:
            e(f"s_cmp_eq_u32 {sLO}, 7\ns_cbranch_scc1 {lend}")
        wave_if("lt", ntile, lg)
        for ks in range(4):
            e(f"ds_read_b128 {R(T+16+ks*4,4)}, v{lXR} offset:{ks*64}")
        if tr: tr()
        e("s_waitcnt lgkmcnt(0)")
        for ks in range(4):
            e(f"v_mfma_f32_16x16x32_bf16 {R(T+32,4)}, {R(T+16+ks*4,4)}, {R(oW+ks*4,4)}, {'0' if ks == 0 else R(T+32,4)}")
        e(f"s_nop 7\nv_and_or_b32 {t(32)}, {t(32)}, {sMASK}, v{vTAG}")
        ins = [f"global_store_dword v{pub}, {t(32)}, {sWL[L]}"]
        if L == 0:
            e(f"v_and_or_b32 {t(33)}, {t(33)}, {sMASK}, v{vTAG}")
            ins += ["s_mov_b64 exec, 0xffff", f"global_store_dword v{pub}, {t(33)}, {sWL[L]} offset:{csoff}", "s_mov_b64 exec, -1"]
        if first:
            for s in ins: e(s + " sc1" if s.startswith("global") else s)
        else:
            lstore(ins)
        e(f"s_branch {lend}\n{lg}:")
        wave_if("eq", gram_wave, lend)
        for ks in range(4):
            e(f"ds_read_b128 {R(T+16+ks*4,4)}, v{lXR} offset:{ks*64}")
        e("s_waitcnt lgkmcnt(0)")
        for ks in range(4):
            e(f"v_mfma_f32_16x16x32_bf16 {R(T+32,4)}, {R(T+16+ks*4,4)}, {R(T+16+ks*4,4)}, {'0' if ks == 0 else R(T+32,4)}")
        e(f"""
        s_lshl_b32 s48, {sXCC}, 8
        s_or_b32 s48, s48, s34
        s_mov_b32 s42, 0x00100001
        s_mov_b32 s43, 0x10000100
        s_nop 3
        v_and_b32 {t(32)}, {sMASK}, {t(32)}
        v_and_b32 {t(33)}, {sMASK}, {t(33)}
        v_or_b32 {t(32)}, s32, {t(32)}
        v_or_b32 {t(33)}, s33, {t(33)}
        v_mov_b32 {t(34)}, s48
        v_mov_b32 {t(35)}, s35
        s_mov_b64 exec, s[42:43]
        """)
        ins = [f"global_store_dwordx4 v{stat}, {R(T+32,4)}, {sWL[L]}"]
        if first: e(ins[0] + " sc1")
        else: lstore(ins)
        e(f"s_mov_b64 exec, -1\n{lend}:")

    def stats_to_sgpr(r):
        e(f"""
        v_add_f32_dpp {t(r+1)}, {t(r)}, {t(r)} row_ror:4 {DPP}
        s_nop 1
        v_add_f32_dpp {t(r+1)}, {t(r+1)}, {t(r+1)} row_ror:8 {DPP}
        s_nop 0
        v_readlane_b32 s64, {t(r+1)}, 0
        v_readlane_b32 s65, {t(r+1)}, 1
        """)

    for L in range(2):
        if L == 0:
            la, lb = g.L("La"), g.L("La")
            wave_if("lt", 4, la)
            e(f"s_waitcnt vmcnt(8)\ns_branch {lb}\n{la}:\ns_waitcnt vmcnt(0)\n{lb}:")
            issue_v(0, 4)
        else:
            xgather(0, W_YP - W_XP, cfg.d_y)
        g.stamp()
        e(f"ds_write_b64 v{lXW}, {R(T+14,2)}")
        unpack_res(T+14)
        e("s_waitcnt lgkmcnt(0)\ns_barrier")
        gemv_stage(L, 4, 6, oWQ, vAP, vAS, 1024, L == 0, (lambda: tr128(oWQ, L_WQ, 4, sW)) if L == 0 else None, False)
        g.stamp()
        def issue():
            e(f"global_load_dwordx4 {R(T,4)}, v{vQL}, {sWL[L]} sc1")
            if L == 0:
                e(f"global_load_dwordx4 {R(vCS,4)}, v{vQC}, {sWL[L]} offset:1024 sc1")
            e(f"v_mov_b32 {t(10)}, v{vTAG}\ns_mov_b64 exec, 0xffff\nglobal_load_dword {t(10)}, v{vQST}, {sWL[L]} offset:1280 sc1\ns_mov_b64 exec, -1")
        def check():
            e(f"v_xor_b32 {t(10)}, v{vTAG}, {t(10)}")
            tagchk4(T, t(8), True)
            if L == 0: tagchk4(vCS, t(8), False)
            e(f"v_or_b32 {t(8)}, {t(8)}, {t(10)}\nv_cmp_ne_u32_sdwa vcc, {t(8)}, v{vZERO} src0_sel:BYTE_0 src1_sel:DWORD")
        poll(issue, check, cfg.d_q1 if L == 0 else cfg.d_q, cfg.retry_x if L == 0 else cfg.retry_l)
        if L == 0:
            issue_v(4, 8)
            issue_wo()
        g.stamp()
        stats_to_sgpr(10)
        for ror in (4, 8):
            for i in range(4):
                e(f"v_add_f32_dpp {t(i)}, {t(i)}, {t(i)} row_ror:{ror} {DPP}")
        if L == 0:
            for ror in (4, 8):
                for i in range(4):
                    e(f"v_add_f32_dpp v{vCS+i}, v{vCS+i}, v{vCS+i} row_ror:{ror} {DPP}")
            e(f"""
            s_lshl_b32 s48, {sXCC}, 8
            v_cmp_ne_u32 vcc, s48, {t(10)}
            s_and_b32 s48, vcc_lo, 0x4444
            s_cselect_b32 s48, 0, 1
            v_mov_b32 {t(12)}, s48
            s_lshl_b32 s49, {sW}, 2
            s_add_u32 s49, s49, {L_OK}
            v_mov_b32 {t(13)}, s49
            ds_write_b32 {t(13)}, {t(12)}
            """)
        e(f"""
        v_mov_b32 {t(12)}, {hex(f2u(1.0/512))}
        v_mul_f32 {t(13)}, s65, {t(12)}
        v_mul_f32 {t(12)}, s64, {t(12)}
        v_fma_f32 {t(0)}, -{t(13)}, v{vCS}, {t(0)}
        v_fma_f32 {t(1)}, -{t(13)}, v{vCS+1}, {t(1)}
        v_fma_f32 {t(2)}, -{t(13)}, v{vCS+2}, {t(2)}
        v_fma_f32 {t(3)}, -{t(13)}, v{vCS+3}, {t(3)}
        v_cvt_pk_bf16_f32 {t(4)}, {t(0)}, {t(1)}
        v_cvt_pk_bf16_f32 {t(5)}, {t(2)}, {t(3)}
        ds_write_b64 v{lQW}, {R(T+4,2)}
        v_fma_f32 {t(12)}, -{t(13)}, {t(13)}, {t(12)}
        v_max_f32 {t(12)}, 0, {t(12)}
        v_add_f32 {t(12)}, {hex(f2u(1e-5))}, {t(12)}
        v_rsq_f32 {t(12)}, {t(12)}
        s_waitcnt lgkmcnt(0)
        v_mul_f32 v{vSC}, {hex(f2u(128**-0.5 * math.log2(math.e)))}, {t(12)}
        s_barrier
        """)
        if L == 0:
            e(f"""
            v_mov_b32 {t(13)}, {L_OK}
            ds_read_b128 {R(T+44,4)}, {t(13)}
            ds_read_b128 {R(T+48,4)}, {t(13)} offset:16
            s_waitcnt lgkmcnt(0)
            v_and_b32 {t(44)}, {t(44)}, {t(45)}
            v_and_b32 {t(46)}, {t(46)}, {t(47)}
            v_and_b32 {t(48)}, {t(48)}, {t(49)}
            v_and_b32 {t(50)}, {t(50)}, {t(51)}
            v_and_b32 {t(44)}, {t(44)}, {t(46)}
            v_and_b32 {t(48)}, {t(48)}, {t(50)}
            v_and_b32 {t(44)}, {t(44)}, {t(48)}
            s_nop 0
            v_readfirstlane_b32 {sLOC}, {t(44)}
            """)
        lq = g.L("Lq")
        wave_if("lt", 4, lq)
        for ks in range(4):
            e(f"ds_read_b128 {R(T+16+ks*4,4)}, v{lQR} offset:{ks*64}")
        e("s_waitcnt lgkmcnt(0)")
        for ks in range(4):
            for h in range(2):
                e(f"v_mfma_f32_16x16x32_bf16 {R(T+32+h*4,4)}, {R(oK+(h*4+ks)*4,4)}, {R(T+16+ks*4,4)}, {'0' if ks == 0 else R(T+32+h*4,4)}")
        e(f"""
        s_nop 6
        v_max3_f32 {t(0)}, {t(32)}, {t(33)}, {t(34)}
        v_max3_f32 {t(1)}, {t(36)}, {t(37)}, {t(38)}
        v_max3_f32 {t(0)}, {t(0)}, {t(35)}, {t(39)}
        v_max_f32 {t(0)}, {t(0)}, {t(1)}
        v_mov_b32 {t(1)}, {t(0)}
        s_nop 1
        v_permlane32_swap_b32 {t(0)}, {t(1)}
        v_max_f32 {t(0)}, {t(0)}, {t(1)}
        v_mov_b32 {t(1)}, {t(0)}
        s_nop 1
        v_permlane16_swap_b32 {t(0)}, {t(1)}
        v_max_f32 {t(0)}, {t(0)}, {t(1)}
        v_mul_f32 {t(0)}, {t(0)}, v{vSC}
        """)
        for i in range(8):
            e(f"v_fma_f32 {t(32+i)}, {t(32+i)}, v{vSC}, -{t(0)}")
        for i in range(8):
            e(f"v_exp_f32 {t(32+i)}, {t(32+i)}")
        e("s_nop 0")
        for i in range(4):
            e(f"v_cvt_pk_bf16_f32 {t(4+i)}, {t(32+2*i)}, {t(33+2*i)}")
        e(f"""
        s_lshl_b32 s48, {sW}, 10
        v_add_u32 {t(2)}, s48, v{lP}
        ds_write_b128 {t(2)}, {R(T+4,4)}
        ds_write_b32 v{lMW}, {t(0)}
        v_pk_add_f32 {R(T+32,2)}, {R(T+32,2)}, {R(T+34,2)}
        v_pk_add_f32 {R(T+36,2)}, {R(T+36,2)}, {R(T+38,2)}
        v_pk_add_f32 {R(T+32,2)}, {R(T+32,2)}, {R(T+36,2)}
        v_add_f32 {t(32)}, {t(32)}, {t(33)}
        v_mov_b32 {t(33)}, {t(32)}
        s_nop 1
        v_permlane32_swap_b32 {t(32)}, {t(33)}
        v_add_f32 {t(32)}, {t(32)}, {t(33)}
        v_mov_b32 {t(33)}, {t(32)}
        s_nop 1
        v_permlane16_swap_b32 {t(32)}, {t(33)}
        v_add_f32 {t(32)}, {t(32)}, {t(33)}
        ds_write_b32 v{lMW}, {t(32)} offset:64
        {lq}:
        """)
        g.stamp()
        if L == 0:
            e("s_waitcnt vmcnt(4)")
        e("s_waitcnt lgkmcnt(0)\ns_barrier")
        g.stamp()
        for ks in range(4):
            e(f"ds_read_b128 {R(T+16+ks*4,4)}, v{lP} offset:{ks*1024}")
        e(f"ds_read_b128 {R(T,4)}, v{lMR}\nds_read_b128 {R(T+4,4)}, v{lMR} offset:64")
        if L == 0:
            tr_v()
        e("s_waitcnt lgkmcnt(0)")
        for ks in range(4):
            e(f"v_mfma_f32_16x16x32_bf16 {R(T+44+ks*4,4)}, {R(T+16+ks*4,4)}, {R(oV+ks*4,4)}, 0")
        e(f"""
        v_max3_f32 {t(8)}, {t(0)}, {t(1)}, {t(2)}
        v_max_f32 {t(8)}, {t(8)}, {t(3)}
        v_sub_f32 {t(0)}, {t(0)}, {t(8)}
        v_sub_f32 {t(1)}, {t(1)}, {t(8)}
        v_sub_f32 {t(2)}, {t(2)}, {t(8)}
        v_sub_f32 {t(3)}, {t(3)}, {t(8)}
        v_exp_f32 {t(0)}, {t(0)}
        v_exp_f32 {t(1)}, {t(1)}
        v_exp_f32 {t(2)}, {t(2)}
        v_exp_f32 {t(3)}, {t(3)}
        v_mul_f32 {t(9)}, {t(0)}, {t(4)}
        v_fmac_f32 {t(9)}, {t(1)}, {t(5)}
        v_fmac_f32 {t(9)}, {t(2)}, {t(6)}
        v_fmac_f32 {t(9)}, {t(3)}, {t(7)}
        v_rcp_f32 {t(10)}, {t(9)}
        v_log_f32 {t(11)}, {t(9)}
        v_mul_f32 {t(12)}, {t(0)}, {t(44)}
        v_fmac_f32 {t(12)}, {t(1)}, {t(48)}
        v_fmac_f32 {t(12)}, {t(2)}, {t(52)}
        v_fmac_f32 {t(12)}, {t(3)}, {t(56)}
        v_mul_f32 {t(12)}, {t(12)}, {t(10)}
        v_add_f32 {t(11)}, {t(11)}, {t(8)}
        s_mov_b32 s42, 0x55555555
        v_mov_b32_dpp {t(13)}, {t(12)} quad_perm:[1,1,3,3] {DPP}
        s_mov_b32 s43, 0x55555555
        v_cvt_pk_bf16_f32 {t(12)}, {t(12)}, {t(13)}
        v_min_u32 {t(12)}, -2, {t(12)}
        v_min_u32 {t(11)}, -2, {t(11)}
        s_mov_b64 exec, s[42:43]
        """)
        lstore([f"global_store_dword v{vOP}, {t(12)}, {sWL[L]}"])
        lm = g.L("Lm")
        wave_if("eq", 7, lm)
        e("s_mov_b32 s42, 0x00010001\ns_mov_b32 s43, 0x00010001\ns_mov_b64 exec, s[42:43]")
        lstore([f"global_store_dword v{vMP}, {t(11)}, {sWL[L]}"])
        e(f"{lm}:\ns_mov_b64 exec, -1")
        g.stamp()
        if L == 0:
            issue_w1()
            issue_w2()
        def issue():
            e(f"global_load_dwordx4 {R(T,4)}, v{vOL}, {sWL[L]} sc1\nglobal_load_dwordx4 {R(T+4,4)}, v{vOL}, {sWL[L]} offset:1024 sc1\nglobal_load_dword {t(8)}, v{vML}, {sWL[L]} sc1")
        def check():
            e(f"""
            v_max3_u32 {t(9)}, {t(0)}, {t(1)}, {t(2)}
            v_max3_u32 {t(10)}, {t(3)}, {t(4)}, {t(5)}
            v_max3_u32 {t(11)}, {t(6)}, {t(7)}, {t(8)}
            v_max3_u32 {t(9)}, {t(9)}, {t(10)}, {t(11)}
            v_cmp_eq_u32 vcc, -1, {t(9)}
            """)
        poll(issue, check, cfg.d_o, cfg.retry_l)
        g.stamp()
        if L == 0:
            tr_wo()
            e("s_waitcnt lgkmcnt(0)")
        for ks in range(2):
            for tile in range(2):
                e(f"v_mfma_f32_16x16x32_bf16 {R(T+16+tile*4,4)}, {R(T+ks*4,4)}, {R(oWO+(tile*2+ks)*4,4)}, {'0' if ks == 0 else R(T+16+tile*4,4)}")
        e(f"""
        v_max_f32_dpp {t(9)}, {t(8)}, {t(8)} row_ror:1 {DPP}
        s_nop 1
        v_max_f32_dpp {t(9)}, {t(9)}, {t(9)} row_ror:2 {DPP}
        s_nop 1
        v_max_f32_dpp {t(9)}, {t(9)}, {t(9)} row_ror:4 {DPP}
        v_sub_f32 {t(8)}, {t(8)}, {t(9)}
        v_exp_f32 {t(8)}, {t(8)}
        s_nop 1
        v_add_f32_dpp {t(9)}, {t(8)}, {t(8)} row_ror:1 {DPP}
        s_nop 1
        v_add_f32_dpp {t(9)}, {t(9)}, {t(9)} row_ror:2 {DPP}
        s_nop 1
        v_add_f32_dpp {t(9)}, {t(9)}, {t(9)} row_ror:4 {DPP}
        v_rcp_f32 {t(9)}, {t(9)}
        s_nop 0
        v_mul_f32 {t(8)}, {t(8)}, {t(9)}
        s_nop 1
        """)
        for tile in range(2):
            e(f"v_mul_f32_dpp {t(10+tile)}, {t(8)}, {t(16+tile*4)} row_newbcast:0 {DPP}")
        for r in range(1, 4):
            for tile in range(2):
                e(f"v_fmac_f32_dpp {t(10+tile)}, {t(8)}, {t(16+tile*4+r)} row_newbcast:{r} {DPP}")
        e(f"ds_write_b32 v{lCW}, {t(10)}\nds_write_b32 v{lCW}, {t(11)} offset:{32*80}\ns_waitcnt lgkmcnt(0)\ns_barrier")
        lcx = g.L("Lc")
        wave_if("eq", 0, lcx)
        for i in range(4):
            e(f"ds_read_b128 {R(T+i*4,4)}, v{lCR} offset:{i*16}")
        e("s_waitcnt lgkmcnt(0)")
        for i in range(4):
            e(f"v_pk_add_f32 {R(T+2*i,2)}, {R(T+2*i,2)}, {R(T+8+2*i,2)}")
        e(f"""
        v_pk_add_f32 {R(T,2)}, {R(T,2)}, {R(T+4,2)}
        v_pk_add_f32 {R(T+2,2)}, {R(T+2,2)}, {R(T+6,2)}
        v_pk_add_f32 {R(T,2)}, {R(T,2)}, {R(T+2,2)}
        v_add_f32 {t(0)}, {t(0)}, {t(1)}
        v_and_or_b32 {t(0)}, {t(0)}, {sMASK}, v{vTAG}
        global_store_dword v{vCP}, {t(0)}, {sWL[L]} sc1
        {lcx}:
        """)
        g.stamp()
        xgather(L, 0, cfg.d_x)
        g.stamp()
        e(f"ds_write_b64 v{lXW}, {R(T+14,2)}")
        unpack_res(T+14)
        e("s_waitcnt lgkmcnt(0)\ns_barrier")
        gemv_stage(L, 2, 2, oW1, vDP, vDS, 512, False, tr_w1 if L == 0 else None, True)
        g.stamp()
        le = g.L("Le")
        wave_if("lt", 7, le)
        e(f"v_add_u32 {t(20)}, 0x4000, v{vHL}")
        if L == 0: e(f"v_add_u32 {t(21)}, 0x4000, v{vHC}")
        def issue():
            e(f"global_load_dword {t(0)}, v{vHL}, {sWL[L]} sc1\nglobal_load_dword {t(1)}, {t(20)}, {sWL[L]} sc1")
            if L == 0:
                e(f"global_load_dword {t(2)}, v{vHC}, {sWL[L]} offset:512 sc1\nglobal_load_dword {t(3)}, {t(21)}, {sWL[L]} offset:512 sc1")
            e(f"v_mov_b32 {t(10)}, v{vTAG}\ns_mov_b64 exec, 0xffff\nglobal_load_dword {t(10)}, v{vHST}, {sWL[L]} offset:640 sc1\ns_mov_b64 exec, -1")
        def check():
            e(f"v_xor_b32 {t(10)}, v{vTAG}, {t(10)}\nv_xor_b32 {t(0)}, v{vTAG}, {t(0)}\nv_xor_b32 {t(1)}, v{vTAG}, {t(1)}\nv_or3_b32 {t(8)}, {t(0)}, {t(1)}, {t(10)}")
            if L == 0:
                e(f"v_xor_b32 {t(2)}, v{vTAG}, {t(2)}\nv_xor_b32 {t(3)}, v{vTAG}, {t(3)}\nv_or3_b32 {t(8)}, {t(8)}, {t(2)}, {t(3)}")
            e(f"v_cmp_ne_u32_sdwa vcc, {t(8)}, v{vZERO} src0_sel:BYTE_0 src1_sel:DWORD")
        poll(issue, check, cfg.d_h, cfg.retry_l)
        stats_to_sgpr(10)
        e(f"""
        v_add_f32 {t(0)}, {t(0)}, {t(1)}
        v_mov_b32 {t(12)}, {hex(f2u(1.0/512))}
        v_mov_b32 {t(1)}, {t(0)}
        v_mul_f32 {t(13)}, s65, {t(12)}
        v_mul_f32 {t(12)}, s64, {t(12)}
        v_permlane32_swap_b32 {t(0)}, {t(1)}
        v_add_f32 {t(0)}, {t(0)}, {t(1)}
        """)
        if L == 0:
            e(f"""
            v_add_f32 {t(2)}, {t(2)}, {t(3)}
            v_mov_b32 {t(3)}, {t(2)}
            s_nop 1
            v_permlane32_swap_b32 {t(2)}, {t(3)}
            v_add_f32 v{vCS1}, {t(2)}, {t(3)}
            """)
        e(f"""
        v_fma_f32 {t(12)}, -{t(13)}, {t(13)}, {t(12)}
        v_max_f32 {t(12)}, 0, {t(12)}
        v_add_f32 {t(12)}, {hex(f2u(1e-5))}, {t(12)}
        v_rsq_f32 {t(12)}, {t(12)}
        v_fma_f32 {t(0)}, -{t(13)}, v{vCS1}, {t(0)}
        v_mul_f32 {t(0)}, {t(0)}, {t(12)}
        v_mul_f32 {t(1)}, {hex(f2u(-math.log2(math.e)))}, {t(0)}
        v_exp_f32 {t(1)}, {t(1)}
        s_nop 0
        v_add_f32 {t(1)}, 1.0, {t(1)}
        v_rcp_f32 {t(1)}, {t(1)}
        s_nop 0
        v_mul_f32 {t(0)}, {t(0)}, {t(1)}
        v_cvt_pk_bf16_f32 {t(0)}, {t(0)}, {t(0)}
        ds_write_b16 v{lHW}, {t(0)}
        {le}:
        """)
        g.stamp()
        e("s_waitcnt lgkmcnt(0)\ns_barrier")
        le2 = g.L("Le")
        wave_if("lt", 4, le2)
        for ks in range(7):
            e(f"ds_read_b128 {R(T+ks*4,4)}, v{lHR} offset:{ks*64}")
        if L == 0:
            tr128(oW2, L_W2, 7, sW)
        e("s_waitcnt lgkmcnt(0)")
        for ks in range(7):
            e(f"v_mfma_f32_16x16x32_bf16 {R(T+32,4)}, {R(T+ks*4,4)}, {R(oW2+ks*4,4)}, {'0' if ks == 0 else R(T+32,4)}")
        e(f"""
        s_nop 7
        v_and_or_b32 {t(32)}, {t(32)}, {sMASK}, v{vTAG}
        s_mov_b64 exec, 0xffff
        global_store_dword v{vEP}, {t(32)}, {sWL[L]} sc1
        s_mov_b64 exec, -1
        {le2}:
        """)
        g.stamp()
    lf = g.L("Lf")
    e(f"s_cmp_lg_u32 {sG}, 0\ns_cbranch_scc1 {lf}\ns_cmp_lg_u32 {sW}, {sLO}\ns_cbranch_scc1 {lf}")
    xgather(1, W_YP - W_XP, cfg.d_y)
    e(f"""
    s_lshl_b32 s48, {sHI}, 8
    s_lshl_b32 s49, {sW}, 5
    s_add_u32 s48, s48, s49
    v_lshlrev_b32 {t(0)}, 10, v{vU}
    v_lshl_add_u32 {t(0)}, v{vA}, 3, {t(0)}
    v_add_u32 {t(0)}, s48, {t(0)}
    s_mov_b32 s42, 0x000f000f
    s_mov_b32 s43, 0x000f000f
    s_mov_b64 exec, s[42:43]
    global_store_dwordx2 {t(0)}, {R(T+14,2)}, {sOUT}
    s_cmp_lg_u32 {sR}, 0
    s_cbranch_scc1 {lf}
    s_mov_b64 exec, 1
    v_mov_b32 {t(1)}, {sT}
    global_store_dword v{vZERO}, {t(1)}, {sWS} offset:{W_EPOCH}
    {lf}:
    s_mov_b64 exec, -1
    """)
    if cfg.stamps:
        g.stamp(); g.stamp()
        e(f"""
        s_lshl_b32 s48, s2, 3
        s_add_u32 s48, s48, {sW}
        s_lshl_b32 s48, s48, 8
        s_add_u32 s48, s48, {W_STAMP}
        v_lshlrev_b32 {t(0)}, 2, v{vL}
        v_add_u32 {t(0)}, s48, {t(0)}
        v_writelane_b32 v{g.vst}, {sLOC}, 63
        global_store_dword {t(0)}, v{g.vst}, {sWS}
        """)
    e("L_end:")
    nv = (g.nv + 7) // 8 * 8
    src = HEADER + f"; @launch grid=(256,1,1) block=(512,1,1) lds={LDS_BYTES}\n"
    src += f""".amdgcn_target "amdgcn-amd-amdhsa--gfx950"
.text
.globl {NAME}_kernel
.p2align 8
.type {NAME}_kernel,@function
{NAME}_kernel:
""" + "\n".join(g.o) + f"""
s_endpgm
.section .rodata,"a"
.p2align 6
.amdhsa_kernel {NAME}_kernel
  .amdhsa_next_free_vgpr {nv}
  .amdhsa_next_free_sgpr 102
  .amdhsa_accum_offset {nv}
  .amdhsa_group_segment_fixed_size 0
  .amdhsa_kernarg_size 88
  .amdhsa_user_sgpr_count 2
  .amdhsa_user_sgpr_kernarg_segment_ptr 1
  .amdhsa_system_sgpr_workgroup_id_x 1
.end_amdhsa_kernel
"""
    return src, g

if __name__ == "__main__":
    cfg = Cfg()
    out = "cdna_kernels/%s.s" % NAME
    for a in sys.argv[1:]:
        k, v = a.split("=")
        if k == "out": out = v
        else: setattr(cfg, k, type(getattr(cfg, k))(int(v)))
    src, g = gen(cfg)
    open(out, "w").write(src)
    print("vgprs", g.nv, "lines", len(g.o), "stamps", g.nst)
```

```python
import sys, math, struct

NAME = "interleave_layers__sliding_block_cached__dense_activation_silu__decode"
HEADER = open("cdna_kernels/%s.s.ref" % NAME).read().split("; Override launch")[0]

def f2u(x): return struct.unpack("<I", struct.pack("<f", x))[0]

class Cfg:
    stamps = 0
    lite = 0
    fixdur = 0
    force_sc1 = False
    rot = 1
    hgap = 50; hwx = 4; hwy = 4; hpre = 0; hdx = 40; hdy = 20; hpoll = 0; bx = 0; by = 0; bz = 0; fgap = 14; fdep = 4; fpre = 0; lq = 0; lo_ = 0; lh = 0; fill = 0; fing = 1
    hnt = 0; o0nt = 1
    w0 = 2; w1_ = 1
    xpos = 2; w2pos = 1; chunk = 24
    order = 3
    win = 5
    hitw = 0
    dq0 = 3
    dsf = 4
    dfq = 0; dfo = 30; dfh = 0
    dfp = 10
    dhx = 20; dhy = 20
    dx = 0; dy = 0
    retry_x = 2
    probe = 1
    selx = 0
    ctouch = 1
    nloc = 8
    prio = 1
    wtail = 5
    ldbg = 0
    noq = 0
    vsig = 99
    setpos = 99

L_WQ, L_V, L_WO, L_W1, L_W2 = 0, 16384, 49152, 81920, 90112
L_K = 118784
L_CR = L_K
L_HS = L_K + 5120
L_XS = L_K + 32768
L_ONES = L_XS + 1280
L_QS = L_ONES + 320
L_PS = L_QS + 1280
L_MS = L_PS + 4096
L_LS = L_MS + 64
L_FL = L_LS + 64
L_CS = L_FL + 64
L_END = L_CS + 1024
LDS_BYTES = 160000
assert L_END <= LDS_BYTES
W_EPOCH = 0
W_ML = 0x001000
W_IND = 0x004000
W_X0 = 0x020000
X_STRIDE = 0x24000
X_HINT = 0x20000
W_PROBE = 0x010000
W_HP = 0x0C0000
W_QP = 0x100000
NREP = 8
W_O = 0x180000
O_LS = 0x40000
ML_LS = 0x1000
QPX = 0x200000
TAGC = 0x3b1d5f27
W_STAMP = 0x800000

class G:
    def __init__(self, cfg):
        self.cfg = cfg
        self.o = []
        self.tail = []
        self.cur = self.o
        self.nv = 0
        self.lab = 0
        self.nst = 0
        self.npoll = 0
        self.names = []
    def e(self, s):
        for ln in s.strip("\n").split("\n"):
            ln = ln.strip()
            if not ln: continue
            self.cur.append(ln if ln.endswith(":") else "    " + ln)
    def ool(self, fn):
        save = self.cur
        self.cur = []
        fn()
        self.tail += self.cur
        self.cur = save
    def v(self, n=1, al=1):
        if n >= 2: al = max(al, 2)
        self.nv = (self.nv + al - 1) // al * al
        r = self.nv
        self.nv += n
        return r
    def L(self, p="L"):
        self.lab += 1
        return f"{p}_{self.lab}"
    def stamp(self, name=""):
        if not self.cfg.stamps: return
        if self.cfg.lite and name not in ("start", "ml_in", "end", ""): return
        i = self.nst
        self.nst += 1
        if len(self.names) <= i: self.names.append(name)
        assert self.names[i] == name, (i, name, self.names[i])
        cur = 96 + 2 * (i & 1)
        prev = 96 + 2 * ((i + 1) & 1)
        if i > 0:
            self.e(f"s_waitcnt lgkmcnt(0)\nv_writelane_b32 v{self.vst}, s{prev}, {i-1}")
        self.e(f"s_memrealtime s[{cur}:{cur+1}]")

def R(a, n): return f"v[{a}:{a+n-1}]"
DPP = "row_mask:0xf bank_mask:0xf"
MFMA = "v_mfma_f32_16x16x32_bf16"

def gen(cfg):
    g = G(cfg)
    e = g.e
    sX, sK, sV, sWQ, sWO, sW1, sW2, sOUT, sWS = "s[4:5]", "s[6:7]", "s[8:9]", "s[10:11]", "s[12:13]", "s[16:17]", "s[18:19]", "s[20:21]", "s[24:25]"
    sG, sR, sHI, sLO, sW, sT = "s26", "s27", "s28", "s29", "s30", "s31"
    sTB = ["s32", "s33", "s34", "s35"]
    sMASK, sLOC = "s36", "s37"
    sQB, sQX = "s[38:39]", "s[40:41]"
    sCNT, sXCC = "s46", "s47"
    sWIN, sJ, sW2K, sVL = "s50", "s51", "s52", "s53"
    sG8, sBP, sG32, sSL, sHI64, sR15, sWH, sW1b = "s54", "s55", "s56", "s57", "s59", "s60", "s61", "s63"
    sXI = ["s[68:69]", "s[70:71]", "s[72:73]", "s[74:75]"]
    sM20 = "s[14:15]"
    g.v(1)
    vL = g.v(); vA = g.v(); vBQ = g.v(); vU = g.v(); vI = g.v()
    vTAG = g.v(); vZERO = g.v(); vTV = g.v(); vHN = g.v()
    g.vst = g.v(); vst2 = g.v()
    vXG = g.v(); vHNL = g.v(); vQL = g.v(); vQC = g.v(); vQST = g.v(); vHL = g.v(); vHN2 = g.v(); vHC = g.v(); vHST = g.v(); vOL = g.v(); vML = g.v()
    lXW = g.v(); lXR = g.v(); lQW = g.v(); lCW = g.v(); lHW = g.v(); lMR = g.v(); aW2 = g.v(); vJ = g.v()
    rb = g.v(12)
    lQR, lPW, lMW, vAP, vDS, vMP, vCP, vCP2, lCR, vEP, lHR = [rb + i for i in range(11)]
    vHNS = rb + 11
    vVA, vKA, vDP, aWO, aW1 = [rb + i for i in range(5)]
    vAS = g.v(); lP = g.v(); vOP = g.v(); lTV = g.v()
    vFS = g.v(); vFL = g.v(); vHN3 = g.v(); vHN4 = g.v()
    vXR = g.v(); vCS = g.v(); vCS1 = g.v(); vSC = g.v(); vXO = g.v()
    ob = g.v(76, 4)
    oK, oW2, oWQ = ob, ob + 32, ob + 60
    oV, oW1 = ob, ob + 32
    oWO = g.v(16, 4)
    T = g.v(64, 4)
    t = lambda i: f"v{T+i}"

    def delay(n):
        while n > 0:
            k = min(n, 16)
            e(f"s_nop {k-1}")
            n -= k

    def xor4(base):
        for i in range(4):
            e(f"v_xor_b32 v{base+i}, {sTB[i]}, v{base+i}")
    BYTECHK = lambda acc: f"v_cmp_ne_u32_sdwa vcc, {acc}, v{vZERO} src0_sel:BYTE_0 src1_sel:DWORD"

    def poll(issue, body, retry=0, first=None, onretry=None):
        top, rt, dn = g.L("Lp"), g.L("Lr"), g.L("Ld")
        e(f"s_mov_b32 {sCNT}, 0")
        if first: first()
        else:
            issue()
            for _ in range(cfg.fill): e(f"v_mov_b32 {t(62)}, v{vL}")
            e("s_waitcnt vmcnt(0)")
        e(f"{top}:")
        body()
        e(f"s_cbranch_vccnz {rt}\n{dn}:")
        def r():
            e(f"{rt}:\ns_add_u32 {sCNT}, {sCNT}, 1\ns_cmp_gt_u32 {sCNT}, 0x8000\ns_cbranch_scc1 {dn}")
            if onretry: onretry()
            if retry: e(f"s_sleep {retry}")
            issue()
            e(f"s_waitcnt vmcnt(0)\ns_branch {top}")
        g.ool(r)
        if cfg.stamps:
            e(f"v_writelane_b32 v{g.vst}, {sCNT}, {40 + g.npoll}")
            g.npoll += 1

    LOCCMP = f"s_cmp_eq_u32 {sLOC}, 0"
    def lstore(ins):
        if cfg.force_sc1:
            for s in ins: e(s + " sc1" if s.startswith("global") else s)
            return
        a, b = g.L("Ls"), g.L("Ls")
        e(f"s_cbranch_scc1 {a}")
        for s in ins: e(s)
        e(f"{b}:")
        def r():
            e(f"{a}:")
            for s in ins: e(s + " sc1" if s.startswith("global") else s)
            e(f"s_branch {b}")
        g.ool(r)

    def wave_if(cond, imm, label):
        inv = {"lt": "ge", "ge": "lt", "eq": "lg", "lg": "eq"}[cond]
        e(f"s_cmp_{inv}_u32 {sW}, {imm}\ns_cbranch_scc1 {label}")

    e(f"""
    s_cmp_ge_u32 s2, 256
    s_cbranch_scc1 L_end
    s_load_dwordx16 s[4:19], s[0:1], 0
    s_load_dwordx4 s[20:23], s[0:1], 64
    s_load_dwordx2 s[24:25], s[0:1], 80
    """)
    if cfg.ctouch:
        e(f"""
        s_getpc_b64 s[44:45]
        s_lshr_b32 s48, s2, 3
        s_lshl_b32 s48, s48, 10
        v_lshlrev_b32 {t(62)}, 7, v0
        v_add_u32 {t(62)}, s48, {t(62)}
        v_cmp_gt_u32 vcc, 8, v0
        s_and_saveexec_b64 s[42:43], vcc
        s_cbranch_execz L_noct
        global_load_dword {t(63)}, {t(62)}, s[44:45]
        L_noct:
        s_mov_b64 exec, -1
        """)
    if cfg.fixdur: e("s_memrealtime s[92:93]")
    if cfg.stamps: e(f"v_mov_b32 v{g.vst}, 0")
    g.stamp("start")
    e(f"""
    v_lshrrev_b32 {t(0)}, 6, v0
    v_and_b32 v{vL}, 63, v0
    s_and_b32 {sG}, s2, 7
    v_readfirstlane_b32 {sW}, {t(0)}
    s_lshr_b32 {sR}, s2, 3
    s_lshr_b32 {sHI}, {sR}, 3
    s_and_b32 {sLO}, {sR}, 7
    v_lshrrev_b32 v{vU}, 4, v{vL}
    s_and_b32 {sJ}, {sW}, 3
    s_xor_b32 {sW}, {sW}, 4
    s_cmp_lt_u32 {sW}, 4
    s_cbranch_scc1 L_role0
    v_lshrrev_b32 {t(1)}, 3, v{vL}
    v_and_b32 {t(2)}, 7, v{vL}
    v_lshlrev_b32 {t(3)}, 1, v{vU}
    v_xor_b32 {t(2)}, {t(2)}, {t(3)}
    v_lshlrev_b32 {t(2)}, 4, {t(2)}
    s_lshl_b32 s48, {sHI}, 20
    s_lshl_b32 s49, {sJ}, 16
    s_add_u32 s48, s48, s49
    s_lshl_b32 s49, {sG}, 10
    s_add_u32 s48, s48, s49
    s_lshl_b32 s49, {sLO}, 7
    s_add_u32 s48, s48, s49
    v_lshl_add_u32 {t(4)}, {t(1)}, 13, {t(2)}
    v_add_u32 {t(4)}, s48, {t(4)}
    s_lshl_b32 {sVL}, {sJ}, 10
    s_mov_b32 m0, {sVL}
    s_waitcnt lgkmcnt(0)
    global_load_lds_dwordx4 {t(4)}, {sWQ} nt
    s_add_u32 m0, {sVL}, 4096
    v_add_u32 {t(4)}, 0x40000, {t(4)}
    global_load_lds_dwordx4 {t(4)}, {sWQ} nt
    s_add_u32 m0, {sVL}, 8192
    v_add_u32 {t(4)}, 0x40000, {t(4)}
    global_load_lds_dwordx4 {t(4)}, {sWQ} nt
    s_add_u32 m0, {sVL}, 12288
    v_add_u32 {t(4)}, 0x40000, {t(4)}
    global_load_lds_dwordx4 {t(4)}, {sWQ} nt
    s_branch L_role1
    """)
    assert L_WQ == 0

    def ids():
        e(f"""
        v_and_b32 v{vA}, 3, v{vL}
        v_bfe_u32 v{vBQ}, v{vL}, 2, 2
        s_lshl_b32 s48, {sHI}, 8
        s_lshl_b32 s49, {sW}, 5
        s_add_u32 s48, s48, s49
        v_lshlrev_b32 v{vXO}, 10, v{vBQ}
        v_lshl_add_u32 v{vXO}, v{vA}, 3, v{vXO}
        v_lshl_add_u32 v{vXO}, v{vU}, 1, v{vXO}
        v_add_u32 v{vXO}, s48, v{vXO}
        v_and_b32 v{vI}, 15, v{vL}
        s_lshl_b32 {sW2K}, {sW}, 11
        s_lshl_b32 {sG32}, {sG}, 5
        s_add_u32 {sSL}, {sG32}, {sR}
        """)
    def blkoff(dst, blk):
        if isinstance(blk, int):
            e(f"s_add_u32 {dst}, {sLO}, {blk if cfg.rot else 0}\ns_and_b32 {dst}, {dst}, 7\ns_lshl_b32 {dst}, {dst}, 12\ns_add_u32 {dst}, {dst}, {sWIN}")
            if blk: e(f"s_add_u32 {dst}, {dst}, {blk*32768}")
        else:
            e(f"s_add_u32 {dst}, {sLO}, {blk if cfg.rot else 0}\ns_and_b32 {dst}, {dst}, 7\ns_lshl_b32 {dst}, {dst}, 12\ns_add_u32 {dst}, {dst}, {sWIN}\ns_lshl_b32 s49, {blk}, 15\ns_add_u32 {dst}, {dst}, s49")

    def tags():
        e(f"""
        s_add_u32 {sT}, {sT}, {TAGC}
        s_and_b32 s32, {sT}, 0xff
        s_bfe_u32 s33, {sT}, 0x80008
        s_bfe_u32 s34, {sT}, 0x80010
        s_lshr_b32 s35, {sT}, 24
        v_lshlrev_b32 {t(16)}, 3, v{vA}
        v_lshrrev_b32 v{vTAG}, {t(16)}, {sT}
        v_and_b32 v{vTAG}, 0xff, v{vTAG}
        v_mov_b32 v{vTV}, {sT}
        """)

    def setup(role):
        a, b, c, d, f, h = t(40), t(41), t(42), t(43), t(44), t(45)
        e(f"""
        s_getreg_b32 {sXCC}, hwreg(HW_REG_XCC_ID, 0, 4)
        s_mov_b32 {sMASK}, 0xffffff00
        s_mov_b32 {sLOC}, 0
        s_mov_b64 {sQB}, {sWS}
        s_add_u32 s40, s24, {QPX}
        s_addc_u32 s41, s25, 0
        s_lshr_b32 {sWH}, {sW}, 1
        s_and_b32 {sW1b}, {sW}, 1
        s_movk_i32 s62, 320
        s_lshl_b32 s48, {sWH}, 6
        s_lshl_b32 s49, {sW1b}, 3
        s_add_u32 s48, s48, s49
        s_add_u32 s48, s48, {L_XS}
        v_lshlrev_b32 {a}, 4, v{vA}
        v_lshl_add_u32 {a}, v{vU}, 1, {a}
        v_mad_u32_u24 v{lXW}, v{vBQ}, s62, {a}
        v_add_u32 v{lXW}, s48, v{lXW}
        v_lshlrev_b32 {b}, 4, v{vU}
        v_mad_u32_u24 {h}, v{vBQ}, s62, {b}
        v_add_u32 v{lXR}, {L_XS}, {h}
        v_mov_b32 {c}, {L_ONES}
        v_cmp_ne_u32 vcc, 0, v{vA}
        s_lshl_b32 s66, {sG}, 16
        s_add_u32 s66, s66, {W_QP}
        v_cndmask_b32 v{lXR}, v{lXR}, {c}, vcc
        s_lshl_b32 s67, {sG}, 15
        s_add_u32 s67, s67, {W_HP}
        v_lshlrev_b32 {f}, 2, v{vI}
        """)
        e(f"""
        s_lshl_b32 s48, {sLO}, 6
        s_lshl_b32 s49, {sHI}, 4
        s_add_u32 s48, s48, s49
        s_add_u32 s49, s48, s66
        s_add_u32 s49, s49, 0xA000
        v_lshlrev_b32 {c}, 9, v{vU}
        v_add_u32 v{vAS}, s49, {c}
        s_mov_b32 s14, 0x00100001
        s_mov_b32 s15, 0x10000100
        s_lshl_b32 s58, {sJ}, 6
        s_and_b32 {sR15}, {sR}, 15
        """)
        if role == 0:
            e(f"""
            v_add_u32 v{lQR}, {L_QS}, {h}
            s_add_u32 s49, s48, s67
            s_add_u32 s49, s49, 0x5000
            v_add_u32 v{vDS}, s49, {c}
            v_mov_b32 {c}, 0x3f803f80
            v_lshlrev_b32 {d}, 2, v{vL}
            v_add_u32 {d}, {L_ONES}, {d}
            ds_write_b32 {d}, {c}
            s_lshl_b32 s48, {sLO}, 2
            s_add_u32 s48, s48, {sHI}
            s_lshl_b32 s49, s48, 8
            s_add_u32 s49, s49, s58
            s_add_u32 s49, s49, s66
            v_lshl_add_u32 v{vAP}, v{vU}, 13, {f}
            v_add_u32 v{vAP}, s49, v{vAP}
            """)
        else:
            e(f"""
            s_lshl_b32 s48, {sLO}, 2
            s_add_u32 s48, s48, {sHI}
            s_lshl_b32 s49, s48, 7
            s_add_u32 s49, s49, s58
            s_add_u32 s49, s49, s67
            v_lshl_add_u32 v{vDP}, v{vU}, 12, {f}
            v_add_u32 v{vDP}, s49, v{vDP}
            """)
        yield
        e(f"""
        v_lshlrev_b32 {t(47)}, 4, v{vL}
        s_lshl_b32 s48, {sW}, 10
        s_add_u32 s48, s48, s66
        s_add_u32 s49, s48, 0x8000
        v_add_u32 v{vQC}, s49, {t(47)}
        s_lshl_b32 s49, {sHI}, 13
        s_add_u32 s49, s49, s48
        v_add_u32 v{vQL}, s49, {t(47)}
        s_lshl_b32 {sHI64}, {sHI}, 6
        s_lshl_b32 s48, {sHI}, 9
        s_lshl_b32 s49, {sW}, 6
        s_add_u32 s48, s48, s49
        s_add_u32 s49, s48, s66
        s_add_u32 s49, s49, 0xA000
        v_add_u32 v{vQST}, s49, {f}
        s_add_u32 s49, s48, s67
        s_add_u32 s49, s49, 0x5000
        v_add_u32 v{vHST}, s49, {f}
        v_lshlrev_b32 {d}, 2, v{vL}
        s_lshl_b32 s48, {sW}, 9
        s_add_u32 s48, s48, s67
        s_add_u32 s49, s48, 0x4000
        v_add_u32 v{vHC}, s49, {d}
        s_lshl_b32 s49, {sHI}, 12
        s_add_u32 s49, s49, s48
        v_add_u32 v{vHL}, s49, {d}
        """)
        e(f"""
        v_and_b32 {h}, 1, v{vU}
        v_lshrrev_b32 {c}, 5, v{vL}
        v_and_b32 {d}, 31, v{vL}
        v_lshlrev_b32 {d}, 2, {d}
        """)
        for i in range(4):
            e(f"s_add_u32 s{68+2*i}, s24, {W_X0 + i*X_STRIDE}\ns_addc_u32 s{69+2*i}, s25, 0")
        e(f"""
        s_lshl_b32 s48, {sHI}, 15
        s_lshl_b32 s49, {sJ}, 11
        s_add_u32 s48, s48, s49
        s_add_u32 s48, s48, {role * 16384}
        v_add_u32 v{vXG}, s48, {t(47)}
        v_lshlrev_b32 v{vHNL}, 7, v{vI}
        v_add_u32 v{vHNL}, {X_HINT}, v{vHNL}
        s_lshl_b32 {sG8}, {sG}, 8
        s_lshr_b32 {sBP}, {sR}, 4
        s_lshl_b32 s48, {sG}, 11
        s_add_u32 s48, s48, {W_IND}
        s_add_u32 s76, s24, s48
        s_addc_u32 s77, s25, 0
        v_add_u32 v{vFL}, s48, {d}
        s_lshl_b32 s49, {sR}, 2
        s_add_u32 s48, s48, s49
        v_mov_b32 v{vFS}, s48
        s_lshl_b32 s44, {sG}, 15
        s_lshl_b32 s49, {sBP}, 14
        s_add_u32 s44, s44, s49
        s_add_u32 s44, s44, {W_O}
        s_add_u32 s49, s44, {sW2K}
        v_lshlrev_b32 {a}, 4, v{vL}
        v_add_u32 v{vOL}, s49, {a}
        s_lshl_b32 s45, {sG}, 9
        s_lshl_b32 s49, {sBP}, 8
        s_add_u32 s45, s45, s49
        s_add_u32 s45, s45, {W_ML}
        s_lshl_b32 s49, {sWH}, 6
        s_add_u32 s49, s45, s49
        v_lshl_add_u32 {t(46)}, v{vU}, 2, v{vI}
        v_and_b32 {t(46)}, 7, {t(46)}
        v_lshlrev_b32 {t(46)}, 2, {t(46)}
        v_lshl_add_u32 v{vML}, {c}, 5, {t(46)}
        v_add_u32 v{vML}, s49, v{vML}
        s_mul_i32 s48, {sWH}, 320
        s_lshl_b32 s49, {sW1b}, 7
        s_add_u32 s48, s48, s49
        s_add_u32 s48, s48, {L_QS}
        v_lshlrev_b32 v{lQW}, 3, v{vI}
        v_lshl_add_u32 v{lQW}, v{vU}, 1, v{lQW}
        v_add_u32 v{lQW}, s48, v{lQW}
        v_add_u32 v{lMR}, {L_MS}, {b}
        s_movk_i32 s62, 80
        v_lshl_add_u32 {t(46)}, {c}, 4, v{vI}
        v_lshlrev_b32 {h}, 2, {h}
        v_mad_u32_u24 v{lCW}, {t(46)}, s62, {h}
        s_lshl_b32 s48, {sW}, 3
        s_add_u32 s48, s48, {L_CR}
        v_add_u32 v{lCW}, s48, v{lCW}
        v_lshlrev_b32 {t(46)}, 4, v{vBQ}
        v_lshl_add_u32 v{lHW}, {h}, 1, {t(46)}
        v_lshl_add_u32 v{lHW}, v{vA}, 1, v{lHW}
        s_lshl_b32 s48, {sW}, 6
        s_add_u32 s48, s48, {L_HS}
        v_add_u32 v{lHW}, s48, v{lHW}
        """)
        if role == 0:
            e(f"""
            s_lshr_b32 s48, {sR15}, 1
            s_lshl_b32 s48, s48, 14
            s_and_b32 s49, {sR15}, 1
            s_lshl_b32 s49, s49, 12
            s_add_u32 s48, s48, s49
            s_lshl_b32 s49, {sBP}, 7
            s_add_u32 s49, s49, {sG8}
            s_add_u32 s48, s48, s49
            v_lshl_add_u32 v{vCP}, {c}, 11, {d}
            v_add_u32 v{vCP}, s48, v{vCP}
            v_add_u32 v{vCP2}, 0x2000, v{vCP}
            s_lshl_b32 s48, {sLO}, 14
            s_add_u32 s48, s48, {sW2K}
            s_add_u32 s48, s48, {sG8}
            s_add_u32 s48, s48, {sHI64}
            v_lshl_add_u32 v{vEP}, v{vU}, 13, {f}
            v_add_u32 v{vEP}, s48, v{vEP}
            s_lshl_b32 s49, {sR15}, 2
            s_add_u32 s49, s49, s45
            v_lshlrev_b32 v{vMP}, 6, v{vU}
            v_add_u32 v{vMP}, s49, v{vMP}
            s_lshl_b32 s48, {sW}, 10
            s_add_u32 s48, s48, {L_PS}
            v_add_u32 v{lPW}, s48, {a}
            s_lshl_b32 s48, {sW}, 2
            s_add_u32 s48, s48, {L_MS}
            v_add_u32 v{lMW}, s48, {t(46)}
            v_mul_u32_u24 v{lCR}, 80, v{vL}
            v_add_u32 v{lCR}, {L_CR}, v{lCR}
            v_add_u32 v{lHR}, {L_HS}, {b}
            """)
        if True:
            e(f"""
            s_lshl_b32 s49, {sBP}, 7
            s_add_u32 s49, s49, {sG8}
            s_add_u32 s49, s49, {X_HINT}
            v_bfe_u32 v{vHNS}, v{vL}, 3, 2
            v_lshlrev_b32 v{vHNS}, 11, v{vHNS}
            v_lshl_add_u32 v{vHNS}, {c}, 13, v{vHNS}
            v_and_b32 v{lP}, 7, v{vL}
            v_lshl_add_u32 v{vHNS}, v{lP}, 4, v{vHNS}
            v_add_u32 v{vHNS}, s49, v{vHNS}
            s_xor_b32 s22, {sW}, {cfg.hwx}
            s_or_b32 s22, s22, {sR15}
            s_xor_b32 s23, {sW}, {cfg.hwy}
            s_or_b32 s23, s23, {sR15}
            v_add_u32 v{lP}, {L_PS}, {a}
            s_lshl_b32 s48, {sJ}, 10
            s_add_u32 s48, s48, s44
            s_lshl_b32 s49, {sR15}, 4
            s_add_u32 s48, s48, s49
            v_lshlrev_b32 v{vOP}, 12, v{vU}
            v_lshl_add_u32 v{vOP}, v{vBQ}, 8, v{vOP}
            v_lshl_add_u32 v{vOP}, v{vA}, 2, v{vOP}
            v_add_u32 v{vOP}, s48, v{vOP}
            v_lshl_add_u32 {t(46)}, v{vU}, 2, v{vBQ}
            v_and_b32 v{lTV}, 7, {t(46)}
            s_lshl_b32 s48, {sJ}, 1
            v_xor_b32 v{lTV}, s48, v{lTV}
            v_lshlrev_b32 v{lTV}, 5, v{lTV}
            v_lshl_add_u32 v{lTV}, {t(46)}, 8, v{lTV}
            v_lshl_add_u32 v{lTV}, v{vA}, 3, v{lTV}
            """)
        yield

    def loader_addr():
        e(f"""
        v_lshrrev_b32 {t(11)}, 2, v{vL}
        v_and_b32 {t(12)}, 1, v{vU}
        v_lshlrev_b32 {t(12)}, 1, {t(12)}
        v_xor_b32 {t(12)}, {t(12)}, v{vA}
        v_lshlrev_b32 {t(12)}, 4, {t(12)}
        v_lshl_add_u32 v{aWO}, {t(11)}, 10, {t(12)}
        s_lshl_b32 s48, {sG}, 19
        s_lshl_b32 s49, {sJ}, 14
        s_add_u32 s48, s48, s49
        s_and_b32 s49, {sR}, 15
        s_lshl_b32 s49, s49, 6
        s_add_u32 s48, s48, s49
        v_add_u32 v{aWO}, s48, v{aWO}
        s_lshr_b32 s91, {sR}, 3
        s_and_b32 s91, s91, 2
        s_and_b32 s49, {sR}, 1
        s_or_b32 s91, s91, s49
        s_lshl_b32 {sWIN}, {sHI}, 23
        s_lshl_b32 s49, {sG}, 20
        s_add_u32 {sWIN}, {sWIN}, s49
        s_add_u32 {sWIN}, {sWIN}, 0xC0000
        v_lshl_add_u32 v{aW2}, {t(1)}, 10, {t(2)}
        s_lshl_b32 s48, {sJ}, 2
        v_add_u32 {t(10)}, s48, v{vU}
        v_xor_b32 v{vKA}, {t(10)}, v{vI}
        v_lshlrev_b32 v{vKA}, 4, v{vKA}
        v_lshl_add_u32 v{vKA}, {t(10)}, 8, v{vKA}
        v_and_b32 v{vVA}, 7, {t(10)}
        v_lshlrev_b32 v{vVA}, 1, v{vVA}
        v_xor_b32 v{vVA}, v{vVA}, v{vI}
        v_lshlrev_b32 v{vVA}, 4, v{vVA}
        v_lshl_add_u32 v{vVA}, {t(10)}, 8, v{vVA}
        s_movk_i32 s48, 3584
        v_mad_u32_u24 v{aW1}, {t(11)}, s48, {t(12)}
        s_lshl_b32 s48, {sHI}, 7
        s_lshl_b32 s49, {sJ}, 4
        s_add_u32 s48, s48, s49
        s_mul_i32 s48, s48, 3584
        s_mul_i32 s49, {sG}, 448
        s_add_u32 s48, s48, s49
        s_min_u32 s49, {sLO}, 6
        s_lshl_b32 s49, s49, 6
        s_add_u32 s48, s48, s49
        v_add_u32 v{aW1}, s48, v{aW1}
        s_mul_i32 s48, {sG}, {224*1024}
        s_lshl_b32 s49, {sLO}, 7
        s_add_u32 s48, s48, s49
        v_add_u32 v{aW2}, s48, v{aW2}
        """)
    def item(kind, c):
        if kind in "KV":
            blkoff("s94", c)
            dst = (L_K + (c & 3) * 8192 + (c >> 2) * 4096) if kind == "K" else (L_V + (32 * (c & 3) + 16 * (c >> 2)) * 256)
            e(f"s_add_u32 m0, {sVL}, {dst}\nv_add_u32 {t(61)}, s94, v{vKA if kind == 'K' else vVA}")
            return f"global_load_lds_dwordx4 {t(61)}, {sK if kind == 'K' else sV} nt"
        if kind == "o":
            e(f"""
            s_add_u32 s94, s91, {c >> 1}
            s_and_b32 s94, s94, 3
            s_lshl_b32 s94, s94, 13
            s_add_u32 s94, s94, {(c & 1) * 4096}
            s_lshl_b32 s95, s94, 4
            s_add_u32 s94, s94, {sVL}
            s_add_u32 m0, s94, {L_WO}
            v_add_u32 {t(61)}, s95, v{aWO}
            """)
            return f"global_load_lds_dwordx4 {t(61)}, {sWO} {'nt' if (cfg.hnt if c >= 2 else cfg.o0nt) else ''}"
        if kind == "1":
            e(f"s_add_u32 m0, {sVL}, {L_W1 + c * 4096}\nv_add_u32 {t(61)}, {c * 64 * 3584}, v{aW1}")
            return f"global_load_lds_dwordx4 {t(61)}, {sW1} nt"
        if kind == "r":
            e(f"""
            s_add_u32 s94, {sJ}, {4 * c}
            s_min_u32 s94, s94, 20
            s_mul_i32 s95, {sHI}, 7
            s_add_u32 s94, s94, s95
            s_add_u32 s94, s94, 7
            s_cmp_ge_u32 s94, 28
            s_cselect_b32 s95, 28, 0
            s_sub_u32 s94, s94, s95
            s_lshl_b32 s95, s94, 13
            s_lshl_b32 s94, s94, 10
            s_add_u32 m0, s94, {L_W2}
            v_add_u32 {t(61)}, s95, v{aW2}
            """)
            return f"global_load_lds_dwordx4 {t(61)}, {sW2} {'nt' if cfg.hnt else ''}"
        if kind == "2":
            e(f"""
            s_add_u32 s94, {sJ}, {4 * c}
            s_min_u32 s94, s94, 6
            s_mul_i32 s95, {sHI}, 7
            s_add_u32 s94, s94, s95
            s_lshl_b32 s95, s94, 13
            s_lshl_b32 s94, s94, 10
            s_add_u32 m0, s94, {L_W2}
            v_add_u32 {t(61)}, s95, v{aW2}
            """)
            return f"global_load_lds_dwordx4 {t(61)}, {sW2} nt"
    ORDERS = ["K" * 8 + "V" * 8 + "o" * 8 + "1122",
              "oo" + "K" * 8 + "V" * 8 + "o" * 6 + "1122",
              "K" * 8 + "oo" + "V" * 8 + "o" * 6 + "1122",
              "K" * 8 + "V" * 8 + "oo1122" + "o" * 6,
              "K" * 8 + "V" * 8 + "oooo1122" + "o" * 4,
              "K" * 8 + "V" * 6 + "oo" + "VV" + "1122" + "o" * 6,
              "K" * 8 + "V" * 8 + "o" * 8,
              "K" * 8 + "V" * 4 + "oo" + "VVVV" + "o" * 6,
              "K" * 8 + "oo" + "V" * 8 + "o" * 6,
              "K" * 8 + "V" * 6 + "oo" + "VV" + "11" + "o" * 6,
              "K" * 8 + "V" * 8 + "oo11" + "o" * 6]
    def w2_rest():
        e(f"""
        s_add_u32 s48, {sHI}, {sJ}
        s_add_u32 s48, s48, 1
        s_and_b32 s48, s48, 3
        s_mul_i32 s48, s48, 7
        s_lshl_b32 s49, s48, 13
        v_add_u32 {t(61)}, s49, v{aW2}
        s_lshl_b32 s48, s48, 10
        """)
        for i in range(7):
            e(f"s_add_u32 m0, s48, {L_W2 + i * 1024}\ns_nop 0\nglobal_load_lds_dwordx4 {t(61)}, {sW2} nt")
            if i < 6: e(f"v_add_u32 {t(61)}, 0x2000, {t(61)}")

    def tr128_addr(base):
        e(f"""
        v_lshl_add_u32 {t(40)}, v{vU}, 2, v{vBQ}
        v_bfe_u32 {t(41)}, {t(40)}, 1, 2
        v_xor_b32 {t(41)}, {sJ}, {t(41)}
        v_lshlrev_b32 {t(41)}, 5, {t(41)}
        v_lshl_add_u32 {t(41)}, {t(40)}, 7, {t(41)}
        v_lshl_add_u32 {t(41)}, v{vA}, 3, {t(41)}
        """)
        if base: e(f"v_add_u32 {t(41)}, {base}, {t(41)}")
    def tr128(dst, nks):
        for ks in range(nks):
            for h in range(2):
                e(f"ds_read_b64_tr_b16 {R(dst + ks*4 + h*2, 2)}, {t(41)} offset:{ks*4096 + h*2048}")
    def tr_w1():
        e(f"""
        v_lshl_add_u32 {t(40)}, v{vU}, 2, v{vBQ}
        v_and_b32 {t(41)}, 1, v{vU}
        v_xor_b32 {t(41)}, {sW1b}, {t(41)}
        v_lshlrev_b32 {t(41)}, 5, {t(41)}
        v_lshl_add_u32 {t(41)}, {t(40)}, 6, {t(41)}
        v_lshl_add_u32 {t(41)}, v{vA}, 3, {t(41)}
        v_add_u32 {t(41)}, {L_W1}, {t(41)}
        """)
        for ks in range(4):
            for h in range(2):
                e(f"ds_read_b64_tr_b16 {R(oW1 + ks*4 + h*2, 2)}, {t(41)} offset:{ks*2048 + h*1024}")
    def tr_wo():
        e(f"""
        v_and_b32 {t(40)}, 1, v{vBQ}
        v_lshlrev_b32 {t(40)}, 4, {t(40)}
        v_lshl_add_u32 {t(40)}, v{vU}, 2, {t(40)}
        v_lshrrev_b32 {t(41)}, 1, v{vBQ}
        v_add_u32 {t(40)}, {t(40)}, {t(41)}
        v_and_b32 {t(41)}, 1, v{vU}
        v_lshlrev_b32 {t(41)}, 5, {t(41)}
        v_lshl_add_u32 {t(41)}, {t(40)}, 6, {t(41)}
        v_lshl_add_u32 {t(41)}, v{vA}, 3, {t(41)}
        s_lshl_b32 s48, {sW}, 12
        s_add_u32 s48, s48, {L_WO}
        v_add_u32 {t(41)}, s48, {t(41)}
        v_xor_b32 {t(42)}, 32, {t(41)}
        """)
        for tile in range(2):
            for ks in range(2):
                for h in range(2):
                    e(f"ds_read_b64_tr_b16 {R(oWO + (tile*2+ks)*4 + h*2, 2)}, {t(41+tile)} offset:{ks*2048 + h*128}")
    def tr_v(ops):
        e(f"v_xor_b32 {t(60)}, 32, v{lTV}")
        for ks in range(4):
            for tile in range(2):
                for h in range(2):
                    e(f"ds_read_b64_tr_b16 {R(ops[tile*4+ks] + h*2, 2)}, {f'v{lTV}' if tile == 0 else t(60)} offset:{L_V + ks*8192 + h*4096}")

    def swapred(a, fill1, fill2):
        e(f"v_permlane32_swap_b32 v{a}, v{a+2}\nv_permlane32_swap_b32 v{a+1}, v{a+3}")
        e(f"v_pk_add_f32 {R(a,2)}, {R(a,2)}, {R(a+2,2)}")
        e(fill1)
        e(f"v_permlane16_swap_b32 v{a}, v{a+1}")
        e(fill2)
        e(f"v_add_f32 v{a}, v{a}, v{a+1}")

    def hint_send(inst, role, wait=None):
        hw = cfg.hwx if inst % 2 == 0 else cfg.hwy
        if hw // 4 != role or (0, cfg.by, cfg.bx, cfg.bz)[inst]:
            if wait is not None: e(f"s_waitcnt vmcnt({wait})")
            return
        a, b = g.L("Lh"), g.L("Lh")
        e(f"s_cmp_eq_u32 s{22 + inst % 2}, 0\ns_cbranch_scc1 {a}")
        if wait is not None: e(f"s_waitcnt vmcnt({wait})")
        e(f"{b}:")
        def o():
            e(f"{a}:\ns_mov_b32 s42, 0x01010101\ns_mov_b32 s43, 0x01010101\ns_mov_b64 exec, s[42:43]")
            if wait is not None: delay(cfg.hdx if inst % 2 == 0 else cfg.hdy)
            e(f"global_store_dword v{vHNS}, v{vTV}, {sXI[inst]} sc1\ns_mov_b64 exec, -1")
            if wait is not None: e(f"s_waitcnt vmcnt({wait + 1})")
            e(f"s_branch {b}")
        g.ool(o)
    def hint_ld(inst, r, k):
        e(f"global_load_dword v{r}, {f'v{vHNL}' if k < 2 else t(30)}, {sXI[inst]} offset:{(k & 1) * 2048} sc1")
    def hint_first(inst):
        a, b = g.L("Lh"), g.L("Lh")
        e(f"s_cmp_eq_u32 {sW}, 7\ns_cbranch_scc1 {a}\n{b}:")
        g.ool(lambda: (e(f"{a}:\ns_mov_b64 exec, 0xffff"), hint_ld(inst, vHN, 0), e(f"s_mov_b64 exec, -1\ns_branch {b}")))
    def hint_wait(inst, issued):
        lp, dn = g.L("Lp"), g.L("Ld")
        ld = lambda r, k: hint_ld(inst, r, k)
        e(f"s_mov_b32 {sCNT}, 0\ns_mov_b64 exec, 0xffff\nv_add_u32 {t(30)}, 4096, v{vHNL}")
        if not issued:
            ld(vHN, 0)
            delay(cfg.hgap)
        ld(vHN2, 1)
        chk = lambda r: e(f"s_waitcnt vmcnt(1)\nv_cmp_ne_u32 vcc, {sT}, v{r}\ns_cbranch_vccz {dn}\ns_add_u32 {sCNT}, {sCNT}, 1")
        chk(vHN); ld(vHN, 2)
        chk(vHN2); ld(vHN2, 3)
        e(f"{lp}:")
        for r in (vHN, vHN2):
            chk(r); ld(r, 3)
        e(f"s_cmp_lt_u32 {sCNT}, 0x8000\ns_cbranch_scc1 {lp}\n{dn}:\ns_mov_b64 exec, -1")
        if cfg.stamps:
            e(f"v_writelane_b32 v{g.vst}, {sCNT}, {40 + g.npoll}")
            g.npoll += 1

    def spin2(load, gap, sleep=0):
        lp, dn = g.L("Lp"), g.L("Ld")
        regs = [vHN, vHN2, vHN3, vHN4][:cfg.fdep]
        e(f"s_mov_b32 {sCNT}, 0")
        for i, r in enumerate(regs):
            if i: delay(gap)
            load(r)
        e(f"{lp}:")
        for r in regs:
            e(f"s_waitcnt vmcnt({len(regs) - 1})\nv_cmp_ne_u32 vcc, {sT}, v{r}\ns_cbranch_vccz {dn}")
            load(r)
            e(f"s_add_u32 {sCNT}, {sCNT}, 1")
        e(f"s_cmp_lt_u32 {sCNT}, 0x10000\ns_cbranch_scc1 {lp}\n{dn}:")
        if cfg.stamps:
            e(f"v_writelane_b32 v{g.vst}, {sCNT}, {40 + g.npoll}")
            g.npoll += 1
    def gsend(idx):
        e(f"s_mov_b64 exec, 1\n{LOCCMP}")
        lstore([f"global_store_dword v{vFS}, v{vTV}, {sWS} offset:{idx*128}"])
    def gpre(idx, wave):
        a, b = g.L("Lg"), g.L("Lg")
        e(f"s_cmp_eq_u32 {sW}, {wave}\ns_cbranch_scc1 {a}\n{b}:")
        g.ool(lambda: (e(f"{a}:"), gsend(idx), e(f"s_mov_b64 exec, -1\ns_branch {b}")))
    def gflag(idx, dly, mask, sent=False):
        blind = {3: cfg.lq, 4: cfg.lo_, 5: cfg.lh, 2: cfg.lh + 30 if cfg.lh else 0}.get(idx, 0)
        if blind:
            delay(blind); nopoll()
            return
        if not sent:
            delay(dly)
            gsend(idx)
        e(f"s_mov_b64 exec, {mask}")
        delay(cfg.dfp if not sent else dly)
        spin2(lambda r: e(f"global_load_dword v{r}, v{vFL}, {sWS} offset:{idx*128} sc1"), cfg.fgap)
        e("s_mov_b64 exec, -1")
    def nopoll():
        if cfg.stamps: g.npoll += 1

    def xgather(inst, dly):
        delay(dly)
        def issue():
            e(f"global_load_dwordx4 {R(T,4)}, v{vXG}, {sXI[inst]} sc1\nglobal_load_dwordx4 {R(T+4,4)}, v{vXG}, {sXI[inst]} offset:1024 sc1")
        def body():
            xor4(T); xor4(T+4)
            e(f"""
            v_pk_add_f32 {R(T+8,2)}, {R(T,2)}, {R(T+4,2)}
            v_pk_add_f32 {R(T+10,2)}, {R(T+2,2)}, {R(T+6,2)}
            v_or3_b32 {t(0)}, {t(0)}, {t(1)}, {t(2)}
            v_or3_b32 {t(3)}, {t(3)}, {t(4)}, {t(5)}
            """)
            swapred(T+8, f"v_or3_b32 {t(0)}, {t(0)}, {t(6)}, {t(7)}\nv_or_b32 {t(0)}, {t(0)}, {t(3)}", BYTECHK(t(0)))
            e(f"v_add_f32 {t(8)}, {t(8)}, v{vXR}\nv_cvt_pk_bf16_f32 {t(14)}, {t(8)}, {t(8)}")
        poll(issue, body, cfg.retry_x)

    def xreads():
        for ks in range(4):
            e(f"ds_read_b128 {R(T+16+ks*4,4)}, v{lXR} offset:{ks*64}")
    def tile_gemv(L, oW, pub, base, csoff, dual, tr):
        xreads()
        if tr: tr()
        for ks in range(4):
            e(f"s_waitcnt lgkmcnt({0 if tr else 3-ks})")
            e(f"{MFMA} {R(T+32,4)}, {R(T+16+ks*4,4)}, {R(oW+ks*4,4)}, {'0' if ks == 0 else R(T+32,4)}")
        if L == 0:
            e(f"v_add_u32 {t(36)}, {csoff}, v{pub}\n{LOCCMP}\ns_nop 5")
        else:
            e(f"{LOCCMP}\ns_nop 6")
        e(f"v_and_or_b32 {t(32)}, {t(32)}, {sMASK}, v{vTAG}")
        ins = [f"global_store_dword v{pub}, {t(32)}, {base}"]
        if L == 0:
            e(f"v_and_or_b32 {t(33)}, {t(33)}, {sMASK}, v{vTAG}")
            ins += ["s_mov_b64 exec, 0xffff", f"global_store_dword {t(36)}, {t(33)}, {base}", "s_mov_b64 exec, -1"]
        if dual:
            for s in ins: e(s)
            return [s.replace(base, sQX) + " sc1" if s.startswith("global") else s for s in ins]
        else:
            lstore(ins)
    def gram(stat, base, dual):
        xreads()
        e(f"s_lshl_b32 s48, {sXCC}, 8\ns_or_b32 s48, s48, s34")
        for ks in range(4):
            e(f"s_waitcnt lgkmcnt({3-ks})")
            e(f"{MFMA} {R(T+32,4)}, {R(T+16+ks*4,4)}, {R(T+16+ks*4,4)}, {'0' if ks == 0 else R(T+32,4)}")
        e(f"""
        v_mov_b32 {t(36)}, s32
        v_mov_b32 {t(37)}, s33
        v_mov_b32 {t(38)}, s48
        v_mov_b32 {t(39)}, s35
        s_mov_b64 exec, {sM20}
        {LOCCMP}
        s_nop 1
        v_and_or_b32 {t(36)}, {t(32)}, {sMASK}, {t(36)}
        v_and_or_b32 {t(37)}, {t(33)}, {sMASK}, {t(37)}
        """)
        ins = [f"global_store_dwordx4 v{stat}, {R(T+36,4)}, {base}"]
        if dual:
            e(ins[0])
            e("s_mov_b64 exec, -1")
            for i in range(4): e(f"v_mov_b32 v{oWO+8+i}, {t(36+i)}")
        else: lstore(ins)
        e("s_mov_b64 exec, -1")

    def probe(dst, off):
        e(f"""
        s_memtime s[80:81]
        s_waitcnt lgkmcnt(0)
        s_load_dword s86, s[78:79], {off} glc
        s_waitcnt lgkmcnt(0)
        s_memtime s[82:83]
        s_waitcnt lgkmcnt(0)
        s_sub_u32 {dst}, s82, s80
        """)
    def apply_sel():
        if not cfg.probe: return
        e(f"""
        v_mov_b32 {t(1)}, {L_FL + 48}
        ds_read_b32 {t(0)}, {t(1)}
        s_waitcnt lgkmcnt(0)
        v_subrev_u32 {t(0)}, s88, {t(0)}
        v_add_u32 v{vXG}, v{vXG}, {t(0)}
        v_add_u32 v{vHNL}, v{vHNL}, {t(0)}
        """)
    def set_loc(b):
        e(f"""
        v_and_b32 {t(b)}, {t(b)}, {t(b+1)}
        v_and_b32 {t(b+2)}, {t(b+2)}, {t(b+3)}
        v_and_b32 {t(b)}, {t(b)}, {t(b+2)}
        s_nop 0
        v_readfirstlane_b32 {sLOC}, {t(b)}
        s_nop 0
        {LOCCMP}
        s_cselect_b64 {sQB}, {sQX}, {sWS}
        """)
    def lsignal(k):
        e(f"v_mov_b32 {t(58)}, {k}\nds_write_b32 {t(59)}, {t(58)}")
    def lwait(k, hook=None):
        lsp, lsd = g.L("Lq"), g.L("Lq")
        e(f"""
        v_mov_b32 {t(57)}, {L_FL}
        s_mov_b32 {sCNT}, 0
        {lsp}:
        ds_read_b128 {R(T+48,4)}, {t(57)}
        ds_read_b128 {R(T+52,4)}, {t(57)} offset:16
        s_add_u32 {sCNT}, {sCNT}, 1
        s_cmp_gt_u32 {sCNT}, 0x100000
        s_cbranch_scc1 {lsd}
        """)
        if hook:
            lh, lh2 = g.L("Lq"), g.L("Lq")
            e(f"s_cmp_eq_u32 {sCNT}, 64\ns_cbranch_scc1 {lh}\n{lh2}:")
            g.ool(lambda: (e(f"{lh}:"), hook(), e(f"s_branch {lh2}")))
        e(f"""
        s_waitcnt lgkmcnt(0)
        v_min3_u32 {t(48)}, {t(48)}, {t(49)}, {t(50)}
        v_min3_u32 {t(51)}, {t(51)}, {t(52)}, {t(53)}
        v_min3_u32 {t(48)}, {t(48)}, {t(54)}, {t(55)}
        v_min_u32 {t(48)}, {t(48)}, {t(51)}
        v_cmp_gt_u32 vcc, {k}, {t(48)}
        s_cbranch_vccnz {lsp}
        {lsd}:
        """)
    RSTD = f"""
        v_mul_f32 {t(12)}, s64, {t(12)}
        v_fma_f32 {t(12)}, -{t(13)}, {t(13)}, {t(12)}
        v_max_f32 {t(12)}, 0, {t(12)}
        v_add_f32 {t(12)}, {hex(f2u(1e-5))}, {t(12)}
        v_rsq_f32 {t(12)}, {t(12)}
        """
    def qk_softmax():
        for ks in range(4):
            e(f"ds_read_b128 {R(T+16+ks*4,4)}, v{lQR} offset:{ks*64}")
        e(f"v_mul_f32 v{vSC}, {hex(f2u(128**-0.5 * math.log2(math.e)))}, {t(12)}")
        for ks in range(4):
            e(f"s_waitcnt lgkmcnt({3-ks})")
            for h in range(2):
                e(f"{MFMA} {R(T+32+h*4,4)}, {R(oK+(h*4+ks)*4,4)}, {R(T+16+ks*4,4)}, {'0' if ks == 0 else R(T+32+h*4,4)}")
        e(f"""
        s_nop 6
        v_max3_f32 {t(0)}, {t(32)}, {t(33)}, {t(34)}
        v_max3_f32 {t(1)}, {t(36)}, {t(37)}, {t(38)}
        v_max3_f32 {t(2)}, {t(0)}, {t(35)}, {t(39)}
        v_max_f32 {t(0)}, {t(2)}, {t(1)}
        v_max_f32 {t(1)}, {t(2)}, {t(1)}
        s_nop 1
        v_permlane32_swap_b32 {t(0)}, {t(1)}
        v_max_f32 {t(2)}, {t(0)}, {t(1)}
        v_max_f32 {t(3)}, {t(0)}, {t(1)}
        s_nop 1
        v_permlane16_swap_b32 {t(2)}, {t(3)}
        v_max_f32 {t(0)}, {t(2)}, {t(3)}
        v_mul_f32 {t(0)}, {t(0)}, v{vSC}
        """)
        for i in range(8):
            e(f"v_fma_f32 {t(32+i)}, {t(32+i)}, v{vSC}, -{t(0)}")
        e(f"ds_write_b32 v{lMW}, {t(0)}")
        for i in range(8):
            e(f"v_exp_f32 {t(32+i)}, {t(32+i)}")
        for i in range(4):
            e(f"v_cvt_pk_bf16_f32 {t(4+i)}, {t(32+2*i)}, {t(33+2*i)}")
        e(f"""
        ds_write_b128 v{lPW}, {R(T+4,4)}
        v_pk_add_f32 {R(T+32,2)}, {R(T+32,2)}, {R(T+34,2)}
        v_pk_add_f32 {R(T+36,2)}, {R(T+36,2)}, {R(T+38,2)}
        v_pk_add_f32 {R(T+32,2)}, {R(T+32,2)}, {R(T+36,2)}
        v_add_f32 {t(34)}, {t(32)}, {t(33)}
        v_add_f32 {t(35)}, {t(32)}, {t(33)}
        s_nop 1
        v_permlane32_swap_b32 {t(34)}, {t(35)}
        v_add_f32 {t(32)}, {t(34)}, {t(35)}
        v_add_f32 {t(33)}, {t(34)}, {t(35)}
        s_nop 1
        v_permlane16_swap_b32 {t(32)}, {t(33)}
        v_add_f32 {t(32)}, {t(32)}, {t(33)}
        ds_write_b32 v{lMW}, {t(32)} offset:64
        """)
    def fweights(b):
        e(f"""
        v_max3_f32 {t(b+8)}, {t(b)}, {t(b+1)}, {t(b+2)}
        v_max_f32 {t(b+8)}, {t(b+8)}, {t(b+3)}
        v_sub_f32 {t(b)}, {t(b)}, {t(b+8)}
        v_sub_f32 {t(b+1)}, {t(b+1)}, {t(b+8)}
        v_sub_f32 {t(b+2)}, {t(b+2)}, {t(b+8)}
        v_sub_f32 {t(b+3)}, {t(b+3)}, {t(b+8)}
        v_exp_f32 {t(b)}, {t(b)}
        v_exp_f32 {t(b+1)}, {t(b+1)}
        v_exp_f32 {t(b+2)}, {t(b+2)}
        v_exp_f32 {t(b+3)}, {t(b+3)}
        v_mul_f32 {t(b+9)}, {t(b)}, {t(b+4)}
        v_fmac_f32 {t(b+9)}, {t(b+1)}, {t(b+5)}
        v_fmac_f32 {t(b+9)}, {t(b+2)}, {t(b+6)}
        v_fmac_f32 {t(b+9)}, {t(b+3)}, {t(b+7)}
        """)
    def pv(ops, fresh):
        e(f"ds_read_b128 {R(T,4)}, v{lMR}\nds_read_b128 {R(T+4,4)}, v{lMR} offset:64")
        for ks in range(4):
            e(f"ds_read_b128 {R(T+16+ks*4,4)}, v{lP} offset:{ks*1024}")
        if fresh: tr_v(ops)
        for ks in range(4):
            e(f"s_waitcnt lgkmcnt({12 - 4*ks if fresh else 3-ks})")
            for tile in range(2):
                e(f"{MFMA} {R(T+32+(tile*4+ks)*4,4)}, {R(T+16+ks*4,4)}, {R(ops[tile*4+ks],4)}, 0")
        fweights(0)
        e(f"""
        v_rcp_f32 {t(10)}, {t(9)}
        v_mul_f32 {t(12)}, {t(0)}, {t(32)}
        v_mul_f32 {t(13)}, {t(0)}, {t(48)}
        v_fmac_f32 {t(12)}, {t(1)}, {t(36)}
        v_fmac_f32 {t(13)}, {t(1)}, {t(52)}
        v_fmac_f32 {t(12)}, {t(2)}, {t(40)}
        v_fmac_f32 {t(13)}, {t(2)}, {t(56)}
        v_fmac_f32 {t(12)}, {t(3)}, {t(44)}
        v_fmac_f32 {t(13)}, {t(3)}, {t(60)}
        v_mul_f32 {t(12)}, {t(12)}, {t(10)}
        v_mul_f32 {t(13)}, {t(13)}, {t(10)}
        {LOCCMP}
        v_cvt_pk_bf16_f32 {t(12)}, {t(12)}, {t(13)}
        v_min_u32 {t(12)}, -2, {t(12)}
        """)
        lstore([f"global_store_dword v{vOP}, {t(12)}, {sWS}"])
    def ml_store():
        e(f"""
        v_log_f32 {t(11)}, {t(9)}
        s_mov_b32 s42, 0x00010001
        s_mov_b32 s43, 0x00010001
        v_add_f32 {t(11)}, {t(11)}, {t(8)}
        v_min_u32 {t(11)}, -2, {t(11)}
        s_mov_b64 exec, s[42:43]
        {LOCCMP}
        """)
        lstore([f"global_store_dword v{vMP}, {t(11)}, {sWS}"])
        e("s_mov_b64 exec, -1")
    def oflag(L):
        e(f"s_lshl_b32 s48, {sBP}, 4\ns_lshl_b32 s42, 0xffff, s48\ns_mov_b32 s43, 0")
        gflag(1 + 3 * L, cfg.dfo if L else 0, "s[42:43]")
    def ml_issue():
        e(f"global_load_dword {t(8)}, v{vML}, {sWS} sc1")
    OPS1 = [oV + 4 * i for i in range(8)]
    OPS0 = [oW2 + 4 * i for i in range(7)] + [oWO]

    WL = lambda m: ['', f'global_load_dword {t(63)}, v{vJ}, {sWS}', f'global_load_dword {t(63)}, v{vJ}, {sWS} nt', f'global_load_dword {t(63)}, v{vJ}, {sWS} sc1'][m]
    def front_loader():
        e("L_role1:")
        ids()
        e(f"v_mov_b32 v{vZERO}, 0")
        loader_addr()
        e("s_barrier")
        seq = [("q", i) for i in range(4)]
        cnt = {}
        for ch in ORDERS[cfg.order] + ("r" * 6 if cfg.w2pos == 0 else "") + "x":
            seq.append((ch, cnt.get(ch, 0))); cnt[ch] = cnt.get(ch, 0) + 1
        marks = [max(i for i, x in enumerate(seq) if x[0] == k) for k in "qKV"]
        names = ["A_in", "K_in", "V_in"]
        extra = {"A_in": ["A_pub"], "K_in": ["q_in", "P_out"], "V_in": []}
        wt = [0 if ((k == "o" and c >= 2 and not cfg.hitw) or k in "xr") else 1 for k, c in seq]
        landed = -1
        nsig = 0
        def signals():
            nonlocal nsig
            while nsig < 3 and marks[nsig] <= landed:
                lsignal(nsig + 1)
                g.stamp(names[nsig])
                for x in extra[names[nsig]]: g.stamp(x)
                nsig += 1
        e(f"s_lshl_b32 s48, {sJ}, 2\ns_add_u32 s48, s48, {L_FL}\nv_mov_b32 {t(59)}, s48")
        def lsetup():
            e(f"s_load_dword {sT}, {sWS}, {W_EPOCH}")
            for _ in setup(1): pass
            e(f"""
            s_lshr_b32 s48, s2, 6
            s_lshl_b32 s48, s48, 14
            s_and_b32 s49, s2, 63
            s_lshl_b32 s49, s49, 7
            s_add_u32 s48, s48, s49
            s_add_u32 s48, s48, {W_PROBE}
            s_add_u32 s78, s24, s48
            s_addc_u32 s79, s25, 0
            s_mov_b32 s84, 0
            """)
            e("s_waitcnt lgkmcnt(0)")
            tags()
        g.stamp("setup")
        save = g.cur; g.cur = []; lsetup(); pend = g.cur; g.cur = save
        def drip(n):
            k = min(n, len(pend))
            while k < len(pend) and (pend[k].split()[0] in ("s_addc_u32", "v_cndmask_b32") or pend[k-1].split()[0].startswith("v_cmp")): k += 1
            g.cur.extend(pend[:k]); del pend[:k]
        for i in range(4, len(seq)):
            j, acc = i, wt[i]
            while j > 0 and acc + wt[j-1] <= (cfg.win if i <= marks[2] else cfg.wtail):
                j -= 1; acc += wt[j]
            if i == marks[2] + 1 + cfg.vsig and landed < marks[2]:
                e(f"s_waitcnt vmcnt({cfg.vsig})")
                landed = marks[2]
                signals()
            ins = item(*seq[i]) if seq[i][0] != "x" else f"global_load_ushort {t(14)}, v{vXO}, {sX}"
            if j - 1 > landed:
                e(f"s_waitcnt vmcnt({i - j})")
            e(ins)
            if cfg.ldbg:
                e(f"s_memrealtime s[92:93]\ns_waitcnt lgkmcnt(0)\nv_writelane_b32 v{vst2}, s92, {i}")
            landed = max(landed, j - 1)
            signals()
            drip(cfg.chunk * (3 if i == 4 else 1))
        while nsig < 3:
            landed = marks[nsig]
            e(f"s_waitcnt vmcnt({len(seq) - 1 - landed})")
            signals()
        drip(10000)
        nopoll(); nopoll()
        e(f"s_waitcnt vmcnt(0)\nv_lshlrev_b32 v{vXR}, 16, {t(14)}")

    def front_role0():
        lc, lc2, lc3, lc4 = g.L("Lc"), g.L("Lc"), g.L("Lc"), g.L("Lc")
        e("L_role0:")
        if cfg.prio: e("s_setprio 2")
        ids()
        e(f"""
        v_mov_b32 v{vZERO}, 0
        v_lshlrev_b32 {t(12)}, 2, v{vI}
        v_add_u32 {t(12)}, {L_FL}, {t(12)}
        ds_write_b32 {t(12)}, v{vZERO}
        s_waitcnt lgkmcnt(0)
        global_load_ushort {t(14)}, v{vXO}, {sX}
        global_load_ushort {t(15)}, v{vXO}, {sX} offset:128
        v_mov_b32 {t(8)}, -1
        v_mov_b32 {t(9)}, -1
        v_mov_b32 {t(10)}, -1
        v_mov_b32 {t(11)}, -1
        s_cmp_eq_u32 {sW}, 0
        s_cbranch_scc1 {lc4}
        s_cmp_eq_u32 {sW}, 1
        s_cbranch_scc1 {lc}
        s_lshl_b32 s48, {sSL}, 10
        s_and_b32 s49, {sW}, 1
        s_lshl_b32 s49, s49, {int(math.log2(O_LS))}
        s_add_u32 s48, s48, s49
        s_add_u32 s48, s48, {W_O}
        v_lshlrev_b32 v{vJ}, 4, v{vL}
        v_add_u32 v{vJ}, s48, v{vJ}
        s_branch {lc2}
        {lc4}:
        s_lshl_b32 s48, {sG}, 16
        s_mul_i32 s49, {sR}, {11*128}
        s_add_u32 s48, s48, s49
        s_add_u32 s48, s48, {W_QP}
        v_lshlrev_b32 {t(12)}, 7, v{vI}
        v_add_u32 v{vJ}, s48, {t(12)}
        s_lshl_b32 s48, {sG}, 11
        s_add_u32 s48, s48, {W_IND}
        v_add_u32 {t(12)}, s48, {t(12)}
        v_cmp_gt_u32 vcc, 16, v{vL}
        s_cmp_eq_u32 {sR}, 0
        s_cselect_b32 s42, 0xffff0000, 0
        s_or_b32 s42, s42, 0x7ff
        s_mov_b32 s43, 0
        v_cndmask_b32 v{vJ}, {t(12)}, v{vJ}, vcc
        s_mov_b64 exec, s[42:43]
        {WL(cfg.w0)}
        s_mov_b64 exec, -1
        s_lshl_b32 s48, {sG}, 15
        s_mul_i32 s49, {sR}, {6*128}
        s_add_u32 s48, s48, s49
        s_add_u32 s48, s48, {W_HP}
        v_lshlrev_b32 v{vJ}, 4, v{vL}
        v_add_u32 v{vJ}, s48, v{vJ}
        s_branch {lc3}
        {lc}:
        s_lshl_b32 s48, {sG}, 9
        s_add_u32 s48, s48, {W_ML}
        v_and_b32 v{vJ}, 31, v{vL}
        v_lshlrev_b32 v{vJ}, 4, v{vJ}
        v_lshrrev_b32 {t(13)}, 5, v{vL}
        v_lshl_add_u32 v{vJ}, {t(13)}, {int(math.log2(ML_LS))}, v{vJ}
        v_add_u32 v{vJ}, s48, v{vJ}
        s_cmp_lg_u32 {sR}, 0
        s_cbranch_scc1 {lc3}
        {lc2}:
        global_store_dwordx4 v{vJ}, {R(T+8,4)}, {sWS} sc1
        {lc3}:
        s_load_dword {sT}, {sWS}, {W_EPOCH}
        s_barrier
        """)
        for _ in setup(0): pass
        tr128_addr(L_WQ)
        e(f"s_lshl_b32 s48, {sW}, 2\ns_add_u32 s48, s48, {L_FL + 16}\nv_mov_b32 {t(59)}, s48\ns_waitcnt lgkmcnt(0)")
        tags()
        g.stamp("setup")
        e(f"s_waitcnt vmcnt(0)\nds_write_b16 v{lXW}, {t(14)}\nds_write_b16 v{lXW}, {t(15)} offset:128\nv_lshlrev_b32 v{vXR}, 16, {t(14)}")
        lsignal(1)
        lwait(1)
        g.stamp("A_in")
        later = tile_gemv(0, oWQ, vAP, sQB, 0x8000, True, lambda: tr128(oWQ, 4))
        la, lb = g.L("La"), g.L("La")
        e(f"v_mov_b32 v{oWO+4}, {t(32)}\nv_mov_b32 v{oWO+5}, {t(33)}\ns_mov_b32 s89, 0")
        wave_if("eq", 3, la)
        gram(vAS, sQB, True)
        e(f"""
        v_lshlrev_b32 {t(47)}, 7, v{vL}
        v_add_u32 {t(47)}, {sR}, {t(47)}
        s_mov_b64 exec, {(1 << NREP) - 1}
        global_store_byte {t(47)}, v{vTV}, s[76:77] offset:1024
        s_mov_b64 exec, -1
        {la}:
        """)
        g.stamp("A_pub")
        lgo, lp = g.L("Ln"), g.L("Lw")
        def wt_copy():
            ld = g.L("Lt")
            e(f"""
            s_cmp_lg_u32 s89, 0
            s_cbranch_scc1 {ld}
            s_mov_b32 s89, 1
            v_add_u32 v{oWO+6}, 0x8000, v{vAP}
            global_store_dword v{vAP}, v{oWO+4}, {sQX} sc1
            s_mov_b64 exec, 0xffff
            global_store_dword v{oWO+6}, v{oWO+5}, {sQX} sc1
            s_mov_b64 exec, -1
            s_cmp_lg_u32 {sW}, 3
            s_cbranch_scc1 {ld}
            s_mov_b64 exec, {sM20}
            global_store_dwordx4 v{vAS}, {R(oWO+8,4)}, {sQX} sc1
            s_mov_b64 exec, -1
            {ld}:
            """)
        lw = g.L("Lw")
        e(f"""
        s_sub_u32 s48, {sW}, 1
        s_cmp_gt_u32 s48, 1
        s_cbranch_scc1 {lw}
        s_mov_b32 s42, 0x01010101
        s_mov_b32 s43, 0x01010101
        s_mov_b64 exec, s[42:43]
        {WL(cfg.w1_)}
        s_mov_b64 exec, -1
        {lw}:
        """)
        e(f"""
        s_mul_i32 s78, s32, 0x01010101
        s_mov_b32 s79, s78
        v_add_u32 {t(44)}, 0x1000, v{vQL}
        v_add_u32 {t(45)}, 0x1000, v{vQC}
        v_lshl_add_u32 {t(46)}, v{vU}, 8, v{vQST}
        v_xor_b32 {t(40)}, v{vU}, v{vI}
        v_lshlrev_b32 {t(40)}, 4, {t(40)}
        v_lshl_add_u32 {t(40)}, v{vI}, 8, {t(40)}
        s_lshl_b32 s48, {sW}, 13
        s_add_u32 s48, s48, {L_K}
        v_add_u32 {t(40)}, s48, {t(40)}
        v_xor_b32 {t(41)}, 64, {t(40)}
        v_xor_b32 {t(42)}, 0x80, {t(40)}
        v_xor_b32 {t(43)}, 0xc0, {t(40)}
        """)
        for k in range(NREP):
            e(f"""
            s_sleep {cfg.dq0 if k == 0 else cfg.dsf}
            s_load_dwordx8 s[80:87], s[76:77], {1024 + k*128}
            s_waitcnt lgkmcnt(0)
            s_xor_b64 s[80:81], s[80:81], s[78:79]
            s_xor_b64 s[82:83], s[82:83], s[78:79]
            s_xor_b64 s[84:85], s[84:85], s[78:79]
            s_xor_b64 s[86:87], s[86:87], s[78:79]
            s_or_b64 s[80:81], s[80:81], s[82:83]
            s_or_b64 s[84:85], s[84:85], s[86:87]
            s_or_b64 s[80:81], s[80:81], s[84:85]
            s_cbranch_scc0 {lgo}
            """)
            if cfg.stamps: e(f"v_writelane_b32 v{g.vst}, {k+1}, 59")
        e(f"{lgo}:")
        if cfg.noq:
            e(f"v_mov_b32 {t(58)}, 3\nds_write_b32 {t(59)}, {t(58)}")
            lwait(3)
            e(f"s_sleep 4\nv_mov_b32 {t(58)}, 1\nds_write_b32 {t(59)}, {t(58)}\ns_sleep 4")
        g.stamp("K_in")
        def issue():
            e(f"v_mov_b32 {t(10)}, v{vTAG}\ns_mov_b64 exec, 0xffffffff\nglobal_load_dword {t(10)}, {t(46)}, {sQB} sc1\ns_mov_b64 exec, -1")
            e(f"global_load_dwordx4 {R(T,4)}, v{vQL}, {sQB} sc1\nglobal_load_dwordx4 {R(T+4,4)}, v{vQC}, {sQB} sc1")
            e(f"global_load_dwordx4 {R(T+16,4)}, {t(44)}, {sQB} sc1\nglobal_load_dwordx4 {R(T+20,4)}, {t(45)}, {sQB} sc1")
            e(f"v_mov_b32 {t(12)}, {hex(f2u(1.0/512))}")
        def body():
            e(f"v_xor_b32 {t(10)}, v{vTAG}, {t(10)}")
            for b_ in (0, 4, 16, 20): xor4(T + b_)
            e(f"v_add_f32_dpp {t(11)}, {t(10)}, {t(10)} row_ror:4 {DPP}")
            e(f"v_or3_b32 {t(8)}, {t(0)}, {t(1)}, {t(2)}\nv_or3_b32 {t(8)}, {t(8)}, {t(3)}, {t(10)}")
            e(f"v_add_f32_dpp {t(11)}, {t(11)}, {t(11)} row_ror:8 {DPP}")
            for b_ in (4, 6, 16, 18, 20, 22):
                e(f"v_or3_b32 {t(8)}, {t(8)}, {t(b_)}, {t(b_+1)}")
            e(f"v_readlane_b32 s65, {t(11)}, 1\nv_readlane_b32 s64, {t(11)}, 0\n{BYTECHK(t(8))}")
            for b_ in (0, 4, 16, 20): swapred(T + b_, "s_nop 1", "")
            e(f"""
            v_mul_f32 {t(13)}, s65, {t(12)}
            v_mov_b32 v{vCS}, {t(4)}
            v_fma_f32 {t(0)}, -{t(13)}, {t(4)}, {t(0)}
            v_fma_f32 {t(16)}, -{t(13)}, {t(20)}, {t(16)}
            v_cvt_pk_bf16_f32 {t(4)}, {t(0)}, {t(0)}
            v_cvt_pk_bf16_f32 {t(5)}, {t(16)}, {t(16)}
            """)
        def onretry():
            lr = g.L("Lt")
            e(f"s_cmp_lt_u32 {sCNT}, {cfg.nloc}\ns_cbranch_scc1 {lr}")
            wt_copy()
            e(f"s_bitcmp1_b32 {sCNT}, 0\ns_cselect_b64 {sQB}, {sWS}, {sQX}\n{lr}:")
        poll(issue, body, 1, onretry=onretry)
        e(f"""
        ds_write_b16 v{lQW}, {t(4)}
        ds_write_b16 v{lQW}, {t(5)} offset:640
        s_lshl_b32 s48, {sW}, 8
        s_add_u32 s48, s48, {L_CS}
        v_lshlrev_b32 {t(14)}, 2, v{vL}
        v_add_u32 {t(14)}, s48, {t(14)}
        ds_write_b32 {t(14)}, {t(20)}
        s_lshl_b32 s48, {sXCC}, 8
        v_cmp_ne_u32 vcc, s48, {t(10)}
        s_and_b32 s48, vcc_lo, 0x44444444
        s_cselect_b32 s48, 0, 1
        v_mov_b32 {t(14)}, s48
        ds_write_b32 {t(59)}, {t(14)} offset:16
        """)
        lsignal(2)
        g.stamp("q_in")
        e(RSTD)
        lwait(2, wt_copy)
        e(f"ds_read_b128 {R(T+52,4)}, {t(57)} offset:32")
        for h in range(2):
            for ks in range(4):
                e(f"ds_read_b128 {R(oK + (h*4+ks)*4, 4)}, {t(40+ks)} offset:{h*4096}")
        qk_softmax()
        lsignal(3)
        set_loc(52)
        l1, l2, l3 = g.L("Lt"), g.L("Lt"), g.L("Lt")
        e(f"s_cbranch_scc1 {l1}\n{l2}:")
        g.ool(lambda: (e(f"{l1}:"), wt_copy(), e(f"s_branch {l2}")))
        e(f"""
        s_cmp_lg_u32 {sW}, 0
        s_cbranch_scc1 {l3}
        v_xor_b32 {t(48)}, 0x80, v{vTAG}
        global_store_dword v{vCP}, {t(48)}, {sXI[0]} sc1
        global_store_dword v{vCP2}, {t(48)}, {sXI[0]} sc1
        s_cmp_lg_u32 {sR15}, 0
        s_cbranch_scc1 {l3}
        v_mov_b32 {t(49)}, {t(48)}
        v_mov_b32 {t(50)}, {t(48)}
        v_mov_b32 {t(51)}, {t(48)}
        global_store_dwordx4 v{vHNS}, {R(T+48,4)}, {sXI[0]} sc1
        s_nop 1
        {l3}:
        """)
        if cfg.xpos == 0: late_extras()
        g.stamp("P_out")
        lwait(3)
        g.stamp("V_in")
        pv(OPS0, True)
        if cfg.xpos == 1: late_extras()
        lm, lm2 = g.L("Lm"), g.L("Lm")
        wave_if("eq", 1, lm)
        ml_store()
        e(f"{lm2}:")
        g.ool(lambda: (e(f"{lm}:"), wave_if("eq", 2, lm2), oflag(0), e(f"s_branch {lm2}")))
        if cfg.prio: e("s_setprio 0")

    def late_extras():
        l1, l2, l3 = g.L("Lx"), g.L("Lx"), g.L("Lx")
        e(f"""
        v_xor_b32 {t(48)}, 0x80, v{vTAG}
        s_sub_u32 s48, {sW}, 1
        s_cmp_le_u32 s48, 1
        s_cbranch_scc1 {l1}
        s_mov_b32 s42, 0x01010101
        s_mov_b32 s43, 0x01010101
        s_mov_b64 exec, s[42:43]
        global_load_dword {t(63)}, v{vJ}, {sWS}
        {l1}:
        s_mov_b64 exec, 0xffffffff
        global_store_dword v{vEP}, {t(48)}, {sXI[1]} sc1
        global_store_dword v{vEP}, {t(48)}, {sXI[3]} sc1
        s_mov_b64 exec, -1
        s_cmp_eq_u32 {sW}, 0
        s_cbranch_scc1 {l3}
        s_cmp_lg_u32 {sR15}, 0
        s_cbranch_scc1 {l2}
        s_mul_i32 s48, {sW}, {X_STRIDE}
        v_add_u32 {t(47)}, s48, v{vHNS}
        v_mov_b32 {t(49)}, {t(48)}
        v_mov_b32 {t(50)}, {t(48)}
        v_mov_b32 {t(51)}, {t(48)}
        global_store_dwordx4 {t(47)}, {R(T+48,4)}, {sXI[0]} sc1
        {l2}:
        s_lshr_b32 s48, s2, 6
        s_lshl_b32 s48, s48, 14
        s_and_b32 s49, s2, 63
        s_lshl_b32 s49, s49, 7
        s_add_u32 s48, s48, s49
        s_add_u32 s48, s48, {W_PROBE}
        v_lshrrev_b32 {t(46)}, 5, v{vL}
        v_and_b32 {t(47)}, 31, v{vL}
        v_lshlrev_b32 {t(47)}, 2, {t(47)}
        v_lshl_add_u32 {t(47)}, {t(46)}, 13, {t(47)}
        v_add_u32 {t(47)}, s48, {t(47)}
        s_lshl_b32 s48, {sW1b}, 13
        s_add_u32 s48, s48, {W_X0 + 2 * X_STRIDE}
        v_add_u32 {t(46)}, s48, v{vCP}
        s_cmp_eq_u32 {sW}, 1
        s_cselect_b64 vcc, -1, 0
        v_cndmask_b32 {t(47)}, {t(46)}, {t(47)}, vcc
        global_store_dword {t(47)}, {t(48)}, {sWS} sc1
        {l3}:
        """)

    def program(role):
        g.nst = 1 if cfg.stamps else 0
        g.npoll = 0
        for L in range(2):
            if L == 0:
                if role == 0: front_role0()
                else: front_loader()
            else:
                g.stamp("A_in")
                e(f"ds_write_b16 v{lXW}, {t(14)}\nv_lshlrev_b32 v{vXR}, 16, {t(14)}")
                tags()
                if cfg.fpre and role == 0: gpre(3, 3)
                e("s_waitcnt lgkmcnt(0)\ns_barrier")
                if role == 0:
                    tile_gemv(L, oWQ, vAP, sQB, 0x8000, False, None)
                    nopoll()
                else:
                    la, lb = g.L("La"), g.L("La")
                    wave_if("eq", 7, la)
                    gram(vAS, sQB, False)
                    e(f"{lb}:")
                    def o():
                        e(f"{la}:")
                        wave_if("eq", 6, lb)
                        gflag(3, cfg.dfq, "0xffffffff", sent=cfg.fpre)
                        e(f"s_branch {lb}")
                    g.ool(o)
                g.stamp("A_pub")
                def issue():
                    e(f"v_mov_b32 {t(10)}, v{vTAG}\ns_mov_b64 exec, 0xffff\nglobal_load_dword {t(10)}, v{vQST}, {sQB} sc1\ns_mov_b64 exec, -1")
                    e(f"global_load_dwordx4 {R(T,4)}, v{vQL}, {sQB} sc1")
                    e(f"v_mov_b32 {t(12)}, {hex(f2u(1.0/512))}")
                def body():
                    e(f"v_xor_b32 {t(10)}, v{vTAG}, {t(10)}")
                    xor4(T)
                    e(f"v_add_f32_dpp {t(11)}, {t(10)}, {t(10)} row_ror:4 {DPP}")
                    e(f"v_or3_b32 {t(8)}, {t(0)}, {t(1)}, {t(2)}\nv_or3_b32 {t(8)}, {t(8)}, {t(3)}, {t(10)}")
                    e(f"v_add_f32_dpp {t(11)}, {t(11)}, {t(11)} row_ror:8 {DPP}")
                    swapred(T, f"v_readlane_b32 s65, {t(11)}, 1\nv_readlane_b32 s64, {t(11)}, 0", BYTECHK(t(8)) + f"\nv_mul_f32 {t(13)}, s65, {t(12)}")
                    e(f"v_fma_f32 {t(0)}, -{t(13)}, v{vCS}, {t(0)}\nv_cvt_pk_bf16_f32 {t(4)}, {t(0)}, {t(0)}")
                e("s_barrier")
                poll(issue, body, 0)
                e(f"ds_write_b16 v{lQW}, {t(4)}")
                g.stamp("q_in")
                if role == 0: e(RSTD)
                e("s_waitcnt lgkmcnt(0)\ns_barrier")
                if role == 0: qk_softmax()
                g.stamp("P_out")
                e("s_waitcnt lgkmcnt(0)\ns_barrier")
                g.stamp("V_in")
                if role == 1:
                    pv(OPS1, False)
                    nopoll()
                else:
                    lm, lm2 = g.L("Lm"), g.L("Lm")
                    wave_if("eq", 1, lm)
                    e(f"ds_read_b128 {R(T,4)}, v{lMR}\nds_read_b128 {R(T+4,4)}, v{lMR} offset:64\ns_waitcnt lgkmcnt(0)")
                    fweights(0)
                    ml_store()
                    e(f"{lm2}:")
                    g.ool(lambda: (e(f"{lm}:"), wave_if("eq", 2, lm2), oflag(1), e(f"s_branch {lm2}")))
            g.stamp("O_pub")
            if L == 0:
                e(f"""
                s_lshr_b32 s48, {sG}, 2
                s_xor_b32 s48, s48, {cfg.selx}
                s_lshl_b32 s88, s48, 13
                v_add_u32 v{vXG}, s88, v{vXG}
                v_add_u32 v{vHNL}, s88, v{vHNL}
                """)
            if L == 0:
                e("s_waitcnt vmcnt(0)")
            e("s_barrier")
            g.stamp("ml_in")
            def issue():
                ml_issue()
                e(f"global_load_dwordx4 {R(T,4)}, v{vOL}, {sWS} sc1\nglobal_load_dwordx4 {R(T+4,4)}, v{vOL}, {sWS} offset:1024 sc1")
            rest = [(k, c) for k in "12" if k not in ORDERS[cfg.order] for c in range(2)] if (L == 0 and role == 1) else []
            pre = cfg.hpre and cfg.hwx // 4 == role
            def first():
                issue()
                if rest:
                    delay(40)
                    for it in rest: e(item(*it))
                if L == 0:
                    tr_wo()
                    if role == 1:
                        e(f"""
                        v_mov_b32 {t(59)}, {L_FL + 32}
                        ds_read_b128 {R(T+52,4)}, {t(59)}
                        s_lshl_b32 s48, {sJ}, 8
                        s_add_u32 s48, s48, {L_CS}
                        v_lshlrev_b32 {t(59)}, 2, v{vL}
                        v_add_u32 {t(59)}, s48, {t(59)}
                        ds_read_b32 v{vCS}, {t(59)}
                        """)
                    e("s_waitcnt lgkmcnt(0)")
                    if role == 1: set_loc(52)
                if pre: hint_send(2 * L, role, len(rest))
            W_ = lambda n: "s_nop 0" if pre else f"s_waitcnt vmcnt({n + len(rest)})"
            def body():
                e(f"""
                {W_(2)}
                v_max_f32_dpp {t(9)}, {t(8)}, {t(8)} row_ror:1 {DPP}
                s_nop 1
                v_max_f32_dpp {t(9)}, {t(9)}, {t(9)} row_ror:2 {DPP}
                {W_(1)}
                {MFMA} {R(T+16,4)}, {R(T,4)}, {R(oWO,4)}, 0
                v_max_f32_dpp {t(9)}, {t(9)}, {t(9)} row_ror:4 {DPP}
                v_sub_f32 {t(12)}, {t(8)}, {t(9)}
                {MFMA} {R(T+20,4)}, {R(T,4)}, {R(oWO+8,4)}, 0
                v_exp_f32 {t(12)}, {t(12)}
                {W_(0)}
                {MFMA} {R(T+16,4)}, {R(T+4,4)}, {R(oWO+4,4)}, {R(T+16,4)}
                v_add_f32_dpp {t(9)}, {t(12)}, {t(12)} row_ror:1 {DPP}
                v_max3_u32 {t(10)}, {t(0)}, {t(1)}, {t(2)}
                {MFMA} {R(T+20,4)}, {R(T+4,4)}, {R(oWO+12,4)}, {R(T+20,4)}
                v_add_f32_dpp {t(9)}, {t(9)}, {t(9)} row_ror:2 {DPP}
                v_max3_u32 {t(11)}, {t(3)}, {t(4)}, {t(5)}
                v_max3_u32 {t(10)}, {t(10)}, {t(6)}, {t(7)}
                v_add_f32_dpp {t(9)}, {t(9)}, {t(9)} row_ror:4 {DPP}
                v_max3_u32 {t(10)}, {t(10)}, {t(11)}, {t(8)}
                v_rcp_f32 {t(9)}, {t(9)}
                v_cmp_eq_u32 vcc, -1, {t(10)}
                """)
            poll(issue, body, 0, first=first)
            if not cfg.hpre: hint_send(2 * L, role)
            early = cfg.hpoll and L == 1
            if role == 1 and early: hint_first(2 * L)
            e(f"v_mul_f32_dpp {t(10)}, {t(12)}, {t(16)} row_newbcast:0 {DPP}")
            for r in range(1, 4):
                e(f"v_fmac_f32_dpp {t(10)}, {t(12)}, {t(16+r)} row_newbcast:{r} {DPP}")
            e(f"v_mul_f32_dpp {t(11)}, {t(12)}, {t(20)} row_newbcast:0 {DPP}")
            e(f"v_mul_f32 {t(10)}, {t(10)}, {t(9)}")
            e(f"v_fmac_f32_dpp {t(11)}, {t(12)}, {t(21)} row_newbcast:1 {DPP}")
            e(f"ds_write_b32 v{lCW}, {t(10)}")
            for r in range(2, 4):
                e(f"v_fmac_f32_dpp {t(11)}, {t(12)}, {t(20+r)} row_newbcast:{r} {DPP}")
            e(f"v_mul_f32 {t(11)}, {t(11)}, {t(9)}")
            e(f"ds_write_b32 v{lCW}, {t(11)} offset:{32*80}")
            if L == 0 and role == 0 and cfg.xpos == 2: late_extras()
            if L == 0 and role == 1 and cfg.w2pos == 1:
                for c_ in range(6): e(item("r", c_))
            g.stamp("O_in")
            if L == 0:
                e(f"v_add_u32 v{vOL}, {O_LS}, v{vOL}\nv_add_u32 v{vML}, {ML_LS}, v{vML}")
                e(f"v_add_u32 v{vMP}, {ML_LS}, v{vMP}" if role == 0 else f"v_add_u32 v{vOP}, {O_LS}, v{vOP}")
            e("s_waitcnt lgkmcnt(0)\ns_barrier")
            lcx, lcy = g.L("Lc"), g.L("Lc")
            if role == 0:
                wave_if("eq", 0, lcx)
                for i in range(4):
                    e(f"ds_read_b128 {R(T+i*4,4)}, v{lCR} offset:{i*16}")
                e("s_waitcnt lgkmcnt(2)")
                e(f"v_pk_add_f32 {R(T,2)}, {R(T,2)}, {R(T+4,2)}\nv_pk_add_f32 {R(T+2,2)}, {R(T+2,2)}, {R(T+6,2)}")
                e("s_waitcnt lgkmcnt(0)")
                e(f"""
                v_pk_add_f32 {R(T+8,2)}, {R(T+8,2)}, {R(T+12,2)}
                v_pk_add_f32 {R(T+10,2)}, {R(T+10,2)}, {R(T+14,2)}
                v_pk_add_f32 {R(T,2)}, {R(T,2)}, {R(T+2,2)}
                v_pk_add_f32 {R(T+8,2)}, {R(T+8,2)}, {R(T+10,2)}
                v_pk_add_f32 {R(T,2)}, {R(T,2)}, {R(T+8,2)}
                v_add_f32 {t(0)}, {t(0)}, {t(1)}
                v_and_or_b32 {t(0)}, {t(0)}, {sMASK}, v{vTAG}
                global_store_dword v{vCP}, {t(0)}, {sXI[2*L]} sc1
                global_store_dword v{vCP2}, {t(0)}, {sXI[2*L]} sc1
                {lcy}:
                """)
                g.ool(lambda: (e(f"{lcx}:"), delay(30 if L == 0 else 0), e(f"s_branch {lcy}")))
                g.stamp("C_pub")
                if L == 0 and cfg.xpos == 3: late_extras()
                nopoll()
            else:
                g.stamp("C_pub")
                if L == 0: tr_v(OPS1)
                wave_if("eq", 7, lcx)
                if L == 1 and cfg.bx:
                    delay(cfg.bx); nopoll()
                else:
                    delay(cfg.dhx)
                    hint_wait(2 * L, early)
                delay(cfg.dx)
                e(f"{lcy}:")
                def o():
                    e(f"{lcx}:")
                    if L == 0 and cfg.w2pos == 2:
                        delay(40)
                        w2_rest()
                    e(f"s_branch {lcy}")
                g.ool(o)
            e("s_barrier")
            g.stamp("xh_in")
            xgather(2 * L, 0)
            e(f"ds_write_b16 v{lXW}, {t(14)}\nv_lshlrev_b32 v{vXR}, 16, {t(14)}")
            if L == 0 and role == 1 and cfg.w2pos == 3:
                for c_ in range(6): e(item("r", c_))
            if cfg.fpre and role == 0 and L == 1: gpre(5, 3)
            g.stamp("x_in")
            e("s_waitcnt lgkmcnt(0)\ns_barrier")
            la, lb = g.L("La"), g.L("La")
            if role == 1:
                wave_if("lt", 6, la)
                e(f"s_cmp_eq_u32 {sLO}, 7\ns_cbranch_scc1 {lb}")
                tile_gemv(L, oW1, vDP, sWS, 0x4000, False, tr_w1 if L == 0 else None)
                e(f"{lb}:")
                def o():
                    e(f"{la}:")
                    if L == 0 and cfg.probe:
                        wave_if("eq", 7, lb)
                        probe("s84", 0)
                    e(f"s_branch {lb}")
                g.ool(o)
                nopoll()
            else:
                wave_if("eq", 2, la)
                e(f"s_cmp_eq_u32 {sLO}, 7\ns_cbranch_scc1 {lb}")
                gram(vDS, sWS, False)
                e(f"{lb}:")
                def o():
                    e(f"{la}:")
                    wave_if("eq", 3, lb)
                    gflag(2 + 3 * L, cfg.dfh + (25 if L == 0 else 0), "0xffffffff", sent=(cfg.fpre and L == 1))
                    e(f"s_branch {lb}")
                g.ool(o)
            g.stamp("D_pub")
            if L == 0 and role == 0 and cfg.w2pos != 3:
                tr128_addr(L_W2)
                tr128(oW2, 7)
            if L == 0 and role == 1 and cfg.w2pos == 3: e("s_waitcnt vmcnt(0)")
            e("s_barrier")
            le = g.L("Le")
            le7 = g.L("Le")
            if role == 1:
                wave_if("lt", 7, le7)
                def o():
                    e(f"{le7}:")
                    if L == 0 and cfg.probe:
                        probe("s85", 0x2000)
                        e(f"""
                        s_cmp_lt_u32 s85, s84
                        s_cselect_b32 s48, 0x2000, 0
                        v_mov_b32 {t(0)}, s48
                        v_mov_b32 {t(1)}, {L_FL + 48}
                        ds_write_b32 {t(1)}, {t(0)}
                        """)
                        if cfg.stamps: e(f"v_writelane_b32 v{g.vst}, s84, 61\nv_writelane_b32 v{g.vst}, s85, 62")
                    e(f"s_branch {le}")
                g.ool(o)
            def issue():
                e(f"v_mov_b32 {t(10)}, v{vTAG}\ns_mov_b64 exec, 0xffff\nglobal_load_dword {t(10)}, v{vHST}, {sWS} sc1\ns_mov_b64 exec, -1")
                e(f"global_load_dword {t(0)}, v{vHL}, {sWS} sc1\nglobal_load_dword {t(1)}, v{vHL}, {sWS} offset:256 sc1")
                if L == 0:
                    e(f"global_load_dword {t(2)}, v{vHC}, {sWS} sc1\nglobal_load_dword {t(3)}, v{vHC}, {sWS} offset:256 sc1")
            def body():
                e(f"""
                v_xor_b32 {t(10)}, v{vTAG}, {t(10)}
                v_xor_b32 {t(0)}, v{vTAG}, {t(0)}
                v_xor_b32 {t(1)}, v{vTAG}, {t(1)}
                v_add_f32_dpp {t(11)}, {t(10)}, {t(10)} row_ror:4 {DPP}
                v_or3_b32 {t(8)}, {t(0)}, {t(1)}, {t(10)}
                v_add_f32 {t(4)}, {t(0)}, {t(1)}
                v_add_f32_dpp {t(11)}, {t(11)}, {t(11)} row_ror:8 {DPP}
                v_add_f32 {t(5)}, {t(0)}, {t(1)}
                v_readlane_b32 s65, {t(11)}, 1
                v_readlane_b32 s64, {t(11)}, 0
                """)
                if L == 0:
                    e(f"v_xor_b32 {t(2)}, v{vTAG}, {t(2)}\nv_xor_b32 {t(3)}, v{vTAG}, {t(3)}\nv_or3_b32 {t(8)}, {t(8)}, {t(2)}, {t(3)}")
                e(f"""
                v_permlane32_swap_b32 {t(4)}, {t(5)}
                {BYTECHK(t(8))}
                """)
            def first():
                issue()
                if L == 0 and role == 0 and cfg.w2pos == 3:
                    tr128_addr(L_W2)
                    tr128(oW2, 7)
                e(f"v_mov_b32 {t(12)}, {hex(f2u(1.0/512))}")
                if cfg.hpre: hint_send(2 * L + 1, role, 0)
                else: e("s_waitcnt vmcnt(0)")
            poll(issue, body, 0, first=first)
            if not cfg.hpre: hint_send(2 * L + 1, role)
            e(f"""
            v_mul_f32 {t(13)}, s65, {t(12)}
            v_mul_f32 {t(12)}, s64, {t(12)}
            v_add_f32 {t(0)}, {t(4)}, {t(5)}
            v_fma_f32 {t(12)}, -{t(13)}, {t(13)}, {t(12)}
            v_max_f32 {t(12)}, 0, {t(12)}
            v_add_f32 {t(12)}, {hex(f2u(1e-5))}, {t(12)}
            v_rsq_f32 {t(12)}, {t(12)}
            """)
            if L == 0:
                e(f"""
                v_add_f32 {t(4)}, {t(2)}, {t(3)}
                v_add_f32 {t(5)}, {t(2)}, {t(3)}
                s_nop 1
                v_permlane32_swap_b32 {t(4)}, {t(5)}
                v_add_f32 v{vCS1}, {t(4)}, {t(5)}
                """)
            e(f"""
            v_fma_f32 {t(0)}, -{t(13)}, v{vCS1}, {t(0)}
            v_mul_f32 {t(0)}, {t(0)}, {t(12)}
            v_mul_f32 {t(1)}, {hex(f2u(-math.log2(math.e)))}, {t(0)}
            v_exp_f32 {t(1)}, {t(1)}
            s_nop 0
            v_add_f32 {t(1)}, 1.0, {t(1)}
            v_rcp_f32 {t(1)}, {t(1)}
            s_nop 0
            v_mul_f32 {t(0)}, {t(0)}, {t(1)}
            v_cvt_pk_bf16_f32 {t(0)}, {t(0)}, {t(0)}
            ds_write_b16 v{lHW}, {t(0)}
            """)
            e(f"{le}:")
            g.stamp("h_in")
            e("s_waitcnt lgkmcnt(0)\ns_barrier")
            lf = f"L_fin{role}"
            if role == 0:
                for ks in range(7):
                    e(f"ds_read_b128 {R(T+ks*4,4)}, v{lHR} offset:{ks*64}")
                for ks in range(7):
                    e(f"s_waitcnt lgkmcnt({6-ks})")
                    e(f"{MFMA} {R(T+32,4)}, {R(T+ks*4,4)}, {R(oW2+ks*4,4)}, {'0' if ks == 0 else R(T+32,4)}")
                e(f"""
                s_nop 6
                s_mov_b64 exec, 0xffffffff
                v_and_or_b32 {t(32)}, {t(32)}, {sMASK}, v{vTAG}
                global_store_dword v{vEP}, {t(32)}, {sXI[2*L+1]} sc1
                s_mov_b64 exec, -1
                """)
                g.stamp("E_pub")
                if L == 1: e(f"s_cmp_lg_u32 {sG}, {sLO if cfg.fing else 0}\ns_cbranch_scc1 {lf}")
                else: apply_sel()
                nopoll()
            else:
                g.stamp("E_pub")
                if L == 1: e(f"s_cmp_lg_u32 {sG}, {sLO if cfg.fing else 0}\ns_cbranch_scc1 {lf}")
                else: apply_sel()
                lcy = g.L("Lc")
                wave_if("eq", 7, lcy)
                if (cfg.by, cfg.bz)[L]:
                    delay((cfg.by, cfg.bz)[L]); nopoll()
                else:
                    delay(cfg.dhy)
                    hint_wait(2 * L + 1, False)
                delay(cfg.dy)
                e(f"{lcy}:")
            e("s_barrier")
            if L == 0: g.stamp("yh_in")
            else: e(f"s_cmp_lg_u32 {sW}, {sLO}\ns_cbranch_scc1 {lf}")
            xgather(2 * L + 1, 0)
        e(f"global_store_short v{vXO}, {t(14)}, {sOUT}")
        if role == 0:
            e(f"""
            s_cmp_lg_u32 {sR}, 0
            s_cbranch_scc1 L_fin0
            s_mov_b64 exec, 1
            global_store_dword v{vZERO}, v{vTV}, {sWS} offset:{W_EPOCH}
            """)
        e(f"L_fin{role}:")
        if cfg.stamps:
            e("s_mov_b64 exec, -1")
            g.stamp("end"); g.stamp()
            e(f"""
            s_lshl_b32 s48, s2, 3
            s_add_u32 s48, s48, {sW}
            s_lshl_b32 s48, s48, 8
            s_add_u32 s48, s48, {W_STAMP}
            v_lshlrev_b32 {t(0)}, 2, v{vL}
            v_add_u32 {t(0)}, s48, {t(0)}
            v_writelane_b32 v{g.vst}, {sLOC}, 63
            global_store_dword {t(0)}, v{g.vst}, {sWS}
            v_add_u32 {t(0)}, 0x100000, {t(0)}
            global_store_dword {t(0)}, v{vst2}, {sWS}
            """)
        if cfg.fixdur:
            e(f"""
            L_fix{role}:
            s_memrealtime s[94:95]
            s_waitcnt lgkmcnt(0)
            s_sub_u32 s94, s94, s92
            s_cmp_lt_u32 s94, {cfg.fixdur}
            s_cbranch_scc1 L_fix{role}
            """)
        e("s_endpgm")

    program(0)
    program(1)
    nv = (g.nv + 7) // 8 * 8
    src = HEADER + f"; @launch grid=(256,1,1) block=(512,1,1) lds={LDS_BYTES}\n"
    if cfg.stamps: src += "; stamps: " + " ".join(g.names) + "\n"
    src += f""".amdgcn_target "amdgcn-amd-amdhsa--gfx950"
.text
.globl {NAME}_kernel
.p2align 8
.type {NAME}_kernel,@function
{NAME}_kernel:
""" + "\n".join(g.o + g.tail) + f"""
L_end:
s_endpgm
L_pad:
.fill (33024 - (L_pad - {NAME}_kernel)) / 4, 4, 0xbf810000
.section .rodata,"a"
.p2align 6
.amdhsa_kernel {NAME}_kernel
  .amdhsa_next_free_vgpr {nv}
  .amdhsa_next_free_sgpr 102
  .amdhsa_accum_offset {nv}
  .amdhsa_group_segment_fixed_size 0
  .amdhsa_kernarg_size 88
  .amdhsa_user_sgpr_count 2
  .amdhsa_user_sgpr_kernarg_segment_ptr 1
  .amdhsa_system_sgpr_workgroup_id_x 1
.end_amdhsa_kernel
"""
    return src, g

if __name__ == "__main__":
    cfg = Cfg()
    out = "cdna_kernels/%s.s" % NAME
    for a in sys.argv[1:]:
        k, v = a.split("=")
        if k == "out": out = v
        else: setattr(cfg, k, type(getattr(cfg, k))(int(v)))
    src, g = gen(cfg)
    open(out, "w").write(src)
    print("vgprs", g.nv, "lines", len(g.o) + len(g.tail), "stamps", g.nst, "polls", g.npoll)
```

```python
import sys, math, struct

NAME = "interleave_layers__sliding_block_cached__dense_activation_silu__decode"
HEADER = open("cdna_kernels/%s.s.ref" % NAME).read().split("; Override launch")[0]

def f2u(x): return struct.unpack("<I", struct.pack("<f", x))[0]

class Cfg:
    stamps = 0
    lite = 0
    fine = 0
    fixdur = 0
    fixwg = -1
    force_sc1 = False
    rot = 1
    hgap = 50; hwx = 4; hwy = 4; hpre = 0; hdx = 40; hdy = 20; hpoll = 0; bx = 0; by = 0; bz = 0; fgap = 14; fdep = 4; fpre = 0; fsp = 2; lq = 0; lo_ = 0; lh = 0; hq = 0; ho = 0; hx0 = 95; hx = 0; hh = 0; hk = 0; hp = 0; pads = 1; hsp = 1; fing = 1
    hnt = 0; o0nt = 1
    w0 = 2; w1_ = 1
    xpos = 2; w2pos = 2; prom = 1; hold = 9; early = 1; chunk = 24
    order = 10
    win = 4
    hitw = 0
    xpre = 1
    wpos = 0
    q2 = 0
    dq0 = 1
    dsf = 3
    dfq = 0; dfo = 50; dfh = 0
    dfp = 10
    dhx = 20; dhy = 20
    dx = 0; dy = 0
    retry_x = 2
    probe = 1
    thr = 480
    refine = 1
    dr1 = 40
    drest = 50
    selx = 0
    ctouch = 1
    nloc = 8
    prio = 1
    wtail = 5
    ldbg = 0
    noq = 0
    vsig = 2
    setpos = 99

L_WQ, L_V, L_WO, L_W1, L_W2 = 0, 16384, 49152, 81920, 90112
L_K = 118784
L_CR = L_K
L_HS = L_K + 5120
L_XS = L_K + 32768
L_ONES = L_XS + 1280
L_QS = L_ONES + 320
L_PS = L_QS + 1280
L_MS = L_PS + 4096
L_LS = L_MS + 64
L_FL = L_LS + 256
L_CS = L_FL + 64
L_END = L_CS + 1024
LDS_BYTES = 160256
assert L_END <= LDS_BYTES
W_EPOCH = 0
W_ML = 0x002000
W_IND = 0x008000
W_X0 = 0x020000
X_STRIDE = 0x24000
X_HINT = 0x20000
W_PROBE = 0x010000
W_HP = 0x0C0000
W_QP = 0x100000
NREP = 8
W_O = 0x180000
O_LS = 0x40000
ML_LS = 0x2000
QPX = 0x200000
TAGC = 0x3b1d5f27
W_STAMP = 0x800000

class G:
    def __init__(self, cfg):
        self.cfg = cfg
        self.o = []
        self.tail = []
        self.cur = self.o
        self.nv = 0
        self.lab = 0
        self.nst = 0
        self.npoll = 0
        self.names = []
        self.fnames = []
        self.pads = []
        self.fine_on = False
    def e(self, s):
        for ln in s.strip("\n").split("\n"):
            ln = ln.strip()
            if not ln: continue
            self.cur.append(ln if ln.endswith(":") else "    " + ln)
    def ool(self, fn):
        save = self.cur
        self.cur = []
        fn()
        self.tail += self.cur
        self.cur = save
    def v(self, n=1, al=1):
        if n >= 2: al = max(al, 2)
        self.nv = (self.nv + al - 1) // al * al
        r = self.nv
        self.nv += n
        return r
    def L(self, p="L"):
        self.lab += 1
        return f"{p}_{self.lab}"
    def stamp(self, name=""):
        if not self.cfg.stamps: return
        if self.cfg.lite and name not in ("start", "ml_in", "end", ""): return
        i = self.nst
        self.nst += 1
        if len(self.names) <= i: self.names.append(name)
        assert self.names[i] == name, (i, name, self.names[i])
        cur = 96 + 2 * (i & 1)
        prev = 96 + 2 * ((i + 1) & 1)
        if i > 0:
            self.e(f"s_waitcnt lgkmcnt(0)\nv_writelane_b32 v{self.vst}, s{prev}, {i-1}")
        self.e(f"s_memrealtime s[{cur}:{cur+1}]")

    def pad(self):
        if not self.cfg.pads: return
        k = len(self.pads)
        self.pads.append(k)
        self.e(f"L_pad{k}:\nPADJ{k}")
    def fs(self, name):
        if not (self.cfg.fine and self.fine_on): return
        if name not in self.fnames: self.fnames.append(name)
        i = self.fnames.index(name)
        self.e(f"s_memtime s[{100}:{101}]\ns_waitcnt lgkmcnt(0)\nv_writelane_b32 v{self.vst2}, s100, {i}")

def R(a, n): return f"v[{a}:{a+n-1}]"
DPP = "row_mask:0xf bank_mask:0xf"
MFMA = "v_mfma_f32_16x16x32_bf16"

def gen(cfg):
    g = G(cfg)
    e = g.e
    sX, sK, sV, sWQ, sWO, sW1, sW2, sOUT, sWS = "s[4:5]", "s[6:7]", "s[8:9]", "s[10:11]", "s[12:13]", "s[16:17]", "s[18:19]", "s[20:21]", "s[24:25]"
    sG, sR, sHI, sLO, sW, sT = "s26", "s27", "s28", "s29", "s30", "s31"
    sTB = ["s32", "s33", "s34", "s35"]
    sMASK, sLOC = "s36", "s37"
    sQB, sQX = "s[38:39]", "s[40:41]"
    sCNT, sXCC = "s46", "s47"
    sWIN, sJ, sW2K, sVL = "s50", "s51", "s52", "s53"
    sG8, sBP, sG32, sSL, sHI64, sR15, sWH, sW1b = "s54", "s55", "s56", "s57", "s59", "s60", "s61", "s63"
    sXI = ["s[68:69]", "s[70:71]", "s[72:73]", "s[74:75]"]
    sM20 = "s[14:15]"
    g.v(1)
    vL = g.v(); vA = g.v(); vBQ = g.v(); vU = g.v(); vI = g.v()
    vTAG = g.v(); vZERO = g.v(); vTV = g.v(); vHN = g.v()
    g.vst = g.v(); vst2 = g.v(); g.vst2 = vst2
    vXG = g.v(); vHNL = g.v(); vQL = g.v(); vQC = g.v(); vQST = g.v(); vHL = g.v(); vHN2 = g.v(); vHC = g.v(); vHST = g.v(); vOL = g.v(); vML = g.v()
    lXW = g.v(); lXR = g.v(); lQW = g.v(); lCW = g.v(); lHW = g.v(); lMR = g.v(); aW2 = g.v(); vJ = g.v()
    rb = g.v(12)
    lQR, lPW, lMW, vAP, vDS, vMP, vCP, vCP2, lCR, vEP, lHR = [rb + i for i in range(11)]
    vHNS = rb + 11
    vVA, vKA, vDP, aWO, aW1 = [rb + i for i in range(5)]
    lLW = g.v(); vAS = g.v(); lP = g.v(); vOP = g.v(); lTV = g.v()
    vFS = g.v(); vFL = g.v(); vHN3 = g.v(); vHN4 = g.v()
    vXR = g.v(); vCS = g.v(); vCS1 = g.v(); vSC = g.v(); vXO = g.v()
    ob = g.v(76, 4)
    oK, oW2, oWQ = ob, ob + 32, ob + 60
    oV, oW1 = ob, ob + 32
    oWO = g.v(16, 4)
    T = g.v(64, 4)
    t = lambda i: f"v{T+i}"

    def delay(n):
        while n > 0:
            k = min(n, 16)
            e(f"s_nop {k-1}")
            n -= k

    HEATMAX = 64
    HEAT = cfg.hq or cfg.ho or cfg.hx or cfg.hh or cfg.hk or cfg.hp
    def heat(n):
        if n: e(f"s_setprio 0\ns_call_b64 s[94:95], L_heat{n}\ns_setprio 1")
    def heat_w(w, idle, n):
        if not n: return
        a, b = g.L("Lz"), g.L("Lz")
        e(f"s_cmp_eq_u32 {sW}, {w}\ns_cbranch_scc1 {a}\n{b}:")
        g.ool(lambda: (g.pad(), e(f"{a}:"), delay(idle), heat(n), e(f"s_branch {b}")))
    def heat_block():
        for n in range(HEATMAX, 0, -1):
            e(f"L_heat{n}:\nv_mov_b32 {t(62)}, v{vL}\n" + ("s_nop 0" if cfg.hsp else f"v_mov_b32 {t(62)}, v{vL}"))
        e("s_setpc_b64 s[94:95]")

    def xor4(base):
        for i in range(4):
            e(f"v_xor_b32 v{base+i}, {sTB[i]}, v{base+i}")
    BYTECHK = lambda acc: f"v_cmp_ne_u32_sdwa vcc, {acc}, v{vZERO} src0_sel:BYTE_0 src1_sel:DWORD"

    def poll(issue, body, retry=0, first=None, onretry=None, heat=None, second=None):
        top, rt, dn = g.L("Lp"), g.L("Lr"), g.L("Ld")
        e(f"s_mov_b32 {sCNT}, 0")
        if first: first()
        else:
            issue()
            if heat: heat()
            e("s_waitcnt vmcnt(0)")
        e(f"{top}:")
        if g.fine_on:
            g.npf = getattr(g, "npf", 0)
        g.fs("ld" + str(g.npoll))
        body()
        e(f"s_cbranch_vccnz {rt}\n{dn}:")
        def r():
            e(f"{rt}:\ns_add_u32 {sCNT}, {sCNT}, 1\ns_cmp_gt_u32 {sCNT}, 0x8000\ns_cbranch_scc1 {dn}")
            if second:
                l2 = g.L("Lr")
                e(f"s_cmp_lg_u32 {sCNT}, 1\ns_cbranch_scc1 {l2}\ns_waitcnt vmcnt(0)")
                second()
                e(f"s_branch {top}\n{l2}:")
            if onretry: onretry()
            if retry: e(f"s_sleep {retry}")
            issue()
            e(f"s_waitcnt vmcnt(0)\ns_branch {top}")
        g.ool(r)
        if cfg.stamps:
            e(f"v_writelane_b32 v{g.vst}, {sCNT}, {40 + g.npoll}")
            g.npoll += 1

    LOCCMP = f"s_cmp_eq_u32 {sLOC}, 0"
    def lstore(ins):
        if cfg.force_sc1:
            for s in ins: e(s + " sc1" if s.startswith("global") else s)
            return
        a, b = g.L("Ls"), g.L("Ls")
        e(f"s_cbranch_scc1 {a}")
        for s in ins: e(s)
        e(f"{b}:")
        def r():
            e(f"{a}:")
            for s in ins: e(s + " sc1" if s.startswith("global") else s)
            e(f"s_branch {b}")
        g.ool(r)

    def wave_if(cond, imm, label):
        inv = {"lt": "ge", "ge": "lt", "eq": "lg", "lg": "eq"}[cond]
        e(f"s_cmp_{inv}_u32 {sW}, {imm}\ns_cbranch_scc1 {label}")

    e(f"""
    s_cmp_ge_u32 s2, 256
    s_cbranch_scc1 L_end
    s_load_dwordx16 s[4:19], s[0:1], 0
    s_load_dwordx4 s[20:23], s[0:1], 64
    s_load_dwordx2 s[24:25], s[0:1], 80
    """)
    if cfg.ctouch:
        e(f"""
        s_getpc_b64 s[44:45]
        s_lshr_b32 s48, s2, 3
        s_lshl_b32 s48, s48, 10
        v_lshlrev_b32 {t(62)}, 7, v0
        v_add_u32 {t(62)}, s48, {t(62)}
        v_cmp_gt_u32 vcc, 8, v0
        s_and_saveexec_b64 s[42:43], vcc
        s_cbranch_execz L_noct
        global_load_dword {t(63)}, {t(62)}, s[44:45]
        L_noct:
        s_mov_b64 exec, -1
        """)
    if cfg.fixdur: e("s_memrealtime s[98:99]")
    if cfg.stamps: e(f"v_mov_b32 v{g.vst}, 0\nv_mov_b32 v{vst2}, 0")
    g.stamp("start")
    e(f"""
    v_lshrrev_b32 {t(0)}, 6, v0
    v_and_b32 v{vL}, 63, v0
    s_and_b32 {sG}, s2, 7
    v_readfirstlane_b32 {sW}, {t(0)}
    s_lshr_b32 {sR}, s2, 3
    s_lshr_b32 {sHI}, {sR}, 3
    s_and_b32 {sLO}, {sR}, 7
    v_lshrrev_b32 v{vU}, 4, v{vL}
    s_and_b32 {sJ}, {sW}, 3
    s_xor_b32 {sW}, {sW}, 4
    s_cmp_lt_u32 {sW}, 4
    s_cbranch_scc1 L_role0
    v_lshrrev_b32 {t(1)}, 3, v{vL}
    v_and_b32 {t(2)}, 7, v{vL}
    v_lshlrev_b32 {t(3)}, 1, v{vU}
    v_xor_b32 {t(2)}, {t(2)}, {t(3)}
    v_lshlrev_b32 {t(2)}, 4, {t(2)}
    s_lshl_b32 s48, {sHI}, 20
    s_lshl_b32 s49, {sJ}, 16
    s_add_u32 s48, s48, s49
    s_lshl_b32 s49, {sG}, 10
    s_add_u32 s48, s48, s49
    s_lshl_b32 s49, {sLO}, 7
    s_add_u32 s48, s48, s49
    v_lshl_add_u32 {t(4)}, {t(1)}, 13, {t(2)}
    v_add_u32 {t(4)}, s48, {t(4)}
    s_lshl_b32 {sVL}, {sJ}, 10
    s_mov_b32 m0, {sVL}
    s_waitcnt lgkmcnt(0)
    global_load_lds_dwordx4 {t(4)}, {sWQ} nt
    s_add_u32 m0, {sVL}, 4096
    v_add_u32 {t(4)}, 0x40000, {t(4)}
    global_load_lds_dwordx4 {t(4)}, {sWQ} nt
    s_add_u32 m0, {sVL}, 8192
    v_add_u32 {t(4)}, 0x40000, {t(4)}
    global_load_lds_dwordx4 {t(4)}, {sWQ} nt
    s_add_u32 m0, {sVL}, 12288
    v_add_u32 {t(4)}, 0x40000, {t(4)}
    global_load_lds_dwordx4 {t(4)}, {sWQ} nt
    {'s_memrealtime s[100:101]' if cfg.stamps else ''}
    s_branch L_role1
    """)
    assert L_WQ == 0

    def ids():
        e(f"""
        v_and_b32 v{vA}, 3, v{vL}
        v_bfe_u32 v{vBQ}, v{vL}, 2, 2
        s_lshl_b32 s48, {sHI}, 8
        s_lshl_b32 s49, {sW}, 5
        s_add_u32 s48, s48, s49
        v_lshlrev_b32 v{vXO}, 10, v{vBQ}
        v_lshl_add_u32 v{vXO}, v{vA}, 3, v{vXO}
        v_lshl_add_u32 v{vXO}, v{vU}, 1, v{vXO}
        v_add_u32 v{vXO}, s48, v{vXO}
        v_and_b32 v{vI}, 15, v{vL}
        s_lshl_b32 {sW2K}, {sW}, 11
        s_lshl_b32 {sG32}, {sG}, 5
        s_add_u32 {sSL}, {sG32}, {sR}
        """)
    def blkoff(dst, blk):
        if isinstance(blk, int):
            e(f"s_add_u32 {dst}, {sLO}, {blk if cfg.rot else 0}\ns_and_b32 {dst}, {dst}, 7\ns_lshl_b32 {dst}, {dst}, 12\ns_add_u32 {dst}, {dst}, {sWIN}")
            if blk: e(f"s_add_u32 {dst}, {dst}, {blk*32768}")
        else:
            e(f"s_add_u32 {dst}, {sLO}, {blk if cfg.rot else 0}\ns_and_b32 {dst}, {dst}, 7\ns_lshl_b32 {dst}, {dst}, 12\ns_add_u32 {dst}, {dst}, {sWIN}\ns_lshl_b32 s49, {blk}, 15\ns_add_u32 {dst}, {dst}, s49")

    def tags(first=False):
        e(f"""
        s_add_u32 {sT}, {sT}, {TAGC}
        s_min_u32 {sT}, {sT}, -2
        s_and_b32 s32, {sT}, 0xff
        s_bfe_u32 s33, {sT}, 0x80008
        s_bfe_u32 s34, {sT}, 0x80010
        s_lshr_b32 s35, {sT}, 24
        v_lshlrev_b32 {t(16)}, 3, v{vA}
        v_lshrrev_b32 v{vTAG}, {t(16)}, {sT}
        v_and_b32 v{vTAG}, 0xff, v{vTAG}
        v_mov_b32 v{vTV}, {sT}
        """)
        if first: e(f"s_mov_b32 s3, {sT}")

    def setup(role):
        a, b, c, d, f, h = t(40), t(41), t(42), t(43), t(44), t(45)
        e(f"""
        s_getreg_b32 {sXCC}, hwreg(HW_REG_XCC_ID, 0, 4)
        s_mov_b32 {sMASK}, 0xffffff00
        s_mov_b32 {sLOC}, 0
        s_mov_b64 {sQB}, {sWS}
        s_add_u32 s40, s24, {QPX}
        s_addc_u32 s41, s25, 0
        s_lshr_b32 {sWH}, {sW}, 1
        s_and_b32 {sW1b}, {sW}, 1
        s_movk_i32 s62, 320
        s_lshl_b32 s48, {sWH}, 6
        s_lshl_b32 s49, {sW1b}, 3
        s_add_u32 s48, s48, s49
        s_add_u32 s48, s48, {L_XS}
        v_lshlrev_b32 {a}, 4, v{vA}
        v_lshl_add_u32 {a}, v{vU}, 1, {a}
        v_mad_u32_u24 v{lXW}, v{vBQ}, s62, {a}
        v_add_u32 v{lXW}, s48, v{lXW}
        v_lshlrev_b32 {b}, 4, v{vU}
        v_mad_u32_u24 {h}, v{vBQ}, s62, {b}
        v_add_u32 v{lXR}, {L_XS}, {h}
        v_mov_b32 {c}, {L_ONES}
        v_cmp_ne_u32 vcc, 0, v{vA}
        s_lshl_b32 s66, {sG}, 16
        s_add_u32 s66, s66, {W_QP}
        v_cndmask_b32 v{lXR}, v{lXR}, {c}, vcc
        s_lshl_b32 s67, {sG}, 15
        s_add_u32 s67, s67, {W_HP}
        v_lshlrev_b32 {f}, 2, v{vI}
        """)
        e(f"""
        s_lshl_b32 s48, {sLO}, 6
        s_lshl_b32 s49, {sHI}, 4
        s_add_u32 s48, s48, s49
        s_add_u32 s49, s48, s66
        s_add_u32 s49, s49, 0xA000
        v_lshlrev_b32 {c}, 9, v{vU}
        v_add_u32 v{vAS}, s49, {c}
        s_mov_b32 s14, 0x00100001
        s_mov_b32 s15, 0x10000100
        s_lshl_b32 s58, {sJ}, 6
        s_and_b32 {sR15}, {sR}, 15
        s_add_u32 s92, {sLO}, 1
        s_lshr_b32 s92, s92, 3
        """)
        if role == 0:
            e(f"""
            v_add_u32 v{lQR}, {L_QS}, {h}
            s_add_u32 s49, s48, s67
            s_add_u32 s49, s49, 0x5000
            v_add_u32 v{vDS}, s49, {c}
            v_mov_b32 {c}, 0x3f803f80
            v_lshlrev_b32 {d}, 2, v{vL}
            v_add_u32 {d}, {L_ONES}, {d}
            ds_write_b32 {d}, {c}
            s_lshl_b32 s48, {sLO}, 2
            s_add_u32 s48, s48, {sHI}
            s_lshl_b32 s49, s48, 8
            s_add_u32 s49, s49, s58
            s_add_u32 s49, s49, s66
            v_lshl_add_u32 v{vAP}, v{vU}, 13, {f}
            v_add_u32 v{vAP}, s49, v{vAP}
            """)
        else:
            e(f"""
            s_lshl_b32 s48, {sLO}, 2
            s_add_u32 s48, s48, {sHI}
            s_lshl_b32 s49, s48, 7
            s_add_u32 s49, s49, s58
            s_add_u32 s49, s49, s67
            v_lshl_add_u32 v{vDP}, v{vU}, 12, {f}
            v_add_u32 v{vDP}, s49, v{vDP}
            """)
        yield
        e(f"""
        v_lshlrev_b32 {t(47)}, 4, v{vL}
        s_lshl_b32 s48, {sW}, 10
        s_add_u32 s48, s48, s66
        s_add_u32 s49, s48, 0x8000
        v_add_u32 v{vQC}, s49, {t(47)}
        s_lshl_b32 s49, {sHI}, 13
        s_add_u32 s49, s49, s48
        v_add_u32 v{vQL}, s49, {t(47)}
        s_lshl_b32 {sHI64}, {sHI}, 6
        s_lshl_b32 s48, {sHI}, 9
        s_lshl_b32 s49, {sW}, 6
        s_add_u32 s48, s48, s49
        s_add_u32 s49, s48, s66
        s_add_u32 s49, s49, 0xA000
        v_add_u32 v{vQST}, s49, {f}
        s_add_u32 s49, s48, s67
        s_add_u32 s49, s49, 0x5000
        v_add_u32 v{vHST}, s49, {f}
        v_lshlrev_b32 {d}, 2, v{vL}
        s_lshl_b32 s48, {sW}, 9
        s_add_u32 s48, s48, s67
        s_add_u32 s49, s48, 0x4000
        v_add_u32 v{vHC}, s49, {d}
        s_lshl_b32 s49, {sHI}, 12
        s_add_u32 s49, s49, s48
        v_add_u32 v{vHL}, s49, {d}
        """)
        e(f"""
        v_and_b32 {h}, 1, v{vU}
        v_lshrrev_b32 {c}, 5, v{vL}
        v_and_b32 {d}, 31, v{vL}
        v_lshlrev_b32 {d}, 2, {d}
        """)
        for i in range(4):
            e(f"s_add_u32 s{68+2*i}, s24, {W_X0 + i*X_STRIDE}\ns_addc_u32 s{69+2*i}, s25, 0")
        e(f"""
        s_lshl_b32 s48, {sHI}, 15
        s_lshl_b32 s49, {sJ}, 11
        s_add_u32 s48, s48, s49
        s_add_u32 s48, s48, {role * 16384}
        v_add_u32 v{vXG}, s48, {t(47)}
        v_lshlrev_b32 v{vHNL}, 7, v{vI}
        v_add_u32 v{vHNL}, {X_HINT}, v{vHNL}
        s_lshl_b32 {sG8}, {sG}, 8
        s_lshr_b32 {sBP}, {sR}, 4
        s_lshl_b32 s48, {sG}, 11
        s_add_u32 s48, s48, {W_IND}
        s_add_u32 s76, s24, s48
        s_addc_u32 s77, s25, 0
        v_lshlrev_b32 v{vFL}, {cfg.fsp - 2}, {d}
        v_add_u32 v{vFL}, s48, v{vFL}
        s_lshl_b32 s49, {sR}, {cfg.fsp}
        s_add_u32 s48, s48, s49
        v_mov_b32 v{vFS}, s48
        s_lshl_b32 s44, {sG}, 15
        s_lshl_b32 s49, {sBP}, 14
        s_add_u32 s44, s44, s49
        s_add_u32 s44, s44, {W_O}
        s_add_u32 s49, s44, {sW2K}
        v_lshlrev_b32 {a}, 4, v{vL}
        v_add_u32 v{vOL}, s49, {a}
        s_lshl_b32 s45, {sG}, 10
        s_lshl_b32 s49, {sBP}, 9
        s_add_u32 s45, s45, s49
        s_add_u32 s45, s45, {W_ML}
        s_lshl_b32 s49, {sWH}, 6
        s_add_u32 s49, s45, s49
        v_lshl_add_u32 {t(46)}, v{vU}, 2, v{vI}
        v_and_b32 {t(46)}, 7, {t(46)}
        v_lshlrev_b32 {t(46)}, 2, {t(46)}
        v_lshl_add_u32 v{vML}, {c}, 5, {t(46)}
        v_add_u32 v{vML}, s49, v{vML}
        s_mul_i32 s48, {sWH}, 320
        s_lshl_b32 s49, {sW1b}, 7
        s_add_u32 s48, s48, s49
        s_add_u32 s48, s48, {L_QS}
        v_lshlrev_b32 v{lQW}, 3, v{vI}
        v_lshl_add_u32 v{lQW}, v{vU}, 1, v{lQW}
        v_add_u32 v{lQW}, s48, v{lQW}
        v_add_u32 v{lMR}, {L_MS}, {b}
        s_movk_i32 s62, 80
        v_lshl_add_u32 {t(46)}, {c}, 4, v{vI}
        v_lshlrev_b32 {h}, 2, {h}
        v_mad_u32_u24 v{lCW}, {t(46)}, s62, {h}
        s_lshl_b32 s48, {sW}, 3
        s_add_u32 s48, s48, {L_CR}
        v_add_u32 v{lCW}, s48, v{lCW}
        v_lshlrev_b32 {t(46)}, 4, v{vBQ}
        v_lshl_add_u32 v{lHW}, {h}, 1, {t(46)}
        v_lshl_add_u32 v{lHW}, v{vA}, 1, v{lHW}
        s_lshl_b32 s48, {sW}, 6
        s_add_u32 s48, s48, {L_HS}
        v_add_u32 v{lHW}, s48, v{lHW}
        """)
        if role == 0:
            e(f"""
            s_lshr_b32 s48, {sR15}, 1
            s_lshl_b32 s48, s48, 14
            s_and_b32 s49, {sR15}, 1
            s_lshl_b32 s49, s49, 12
            s_add_u32 s48, s48, s49
            s_lshl_b32 s49, {sBP}, 7
            s_add_u32 s49, s49, {sG8}
            s_add_u32 s48, s48, s49
            v_lshl_add_u32 v{vCP}, {c}, 11, {d}
            v_add_u32 v{vCP}, s48, v{vCP}
            v_add_u32 v{vCP2}, 0x2000, v{vCP}
            s_lshl_b32 s48, {sLO}, 14
            s_add_u32 s48, s48, {sW2K}
            s_add_u32 s48, s48, {sG8}
            s_add_u32 s48, s48, {sHI64}
            v_lshl_add_u32 v{vEP}, v{vU}, 13, {f}
            v_add_u32 v{vEP}, s48, v{vEP}
            s_lshl_b32 s49, {sR15}, 2
            s_add_u32 s49, s49, s45
            v_lshlrev_b32 v{vMP}, 6, v{vU}
            v_add_u32 v{vMP}, s49, v{vMP}
            s_lshl_b32 s48, {sW}, 10
            s_add_u32 s48, s48, {L_PS}
            v_add_u32 v{lPW}, s48, {a}
            s_lshl_b32 s48, {sW}, 2
            s_add_u32 s48, s48, {L_MS}
            v_add_u32 v{lMW}, s48, {t(46)}
            s_lshl_b32 s48, {sW}, 4
            s_add_u32 s48, s48, {L_LS}
            v_lshlrev_b32 v{lLW}, 6, v{vBQ}
            v_lshl_add_u32 v{lLW}, v{vU}, 2, v{lLW}
            v_add_u32 v{lLW}, s48, v{lLW}
            v_mul_u32_u24 v{lCR}, 80, v{vL}
            v_add_u32 v{lCR}, {L_CR}, v{lCR}
            v_add_u32 v{lHR}, {L_HS}, {b}
            """)
        if True:
            e(f"""
            s_lshl_b32 s49, {sBP}, 7
            s_add_u32 s49, s49, {sG8}
            s_add_u32 s49, s49, {X_HINT}
            v_bfe_u32 v{vHNS}, v{vL}, 3, 2
            v_lshlrev_b32 v{vHNS}, 11, v{vHNS}
            v_lshl_add_u32 v{vHNS}, {c}, 13, v{vHNS}
            v_and_b32 v{lP}, 7, v{vL}
            v_lshl_add_u32 v{vHNS}, v{lP}, 4, v{vHNS}
            v_add_u32 v{vHNS}, s49, v{vHNS}
            s_xor_b32 s22, {sW}, {cfg.hwx}
            s_or_b32 s22, s22, {sR15}
            s_cselect_b32 s22, 0, 0x01010101
            s_mov_b32 s23, s22
            v_add_u32 v{lP}, {L_PS}, {a}
            s_lshl_b32 s48, {sJ}, 10
            s_add_u32 s48, s48, s44
            s_lshl_b32 s49, {sR15}, 4
            s_add_u32 s48, s48, s49
            v_lshlrev_b32 v{vOP}, 12, v{vU}
            v_lshl_add_u32 v{vOP}, v{vBQ}, 8, v{vOP}
            v_lshl_add_u32 v{vOP}, v{vA}, 2, v{vOP}
            v_add_u32 v{vOP}, s48, v{vOP}
            v_lshl_add_u32 {t(46)}, v{vU}, 2, v{vBQ}
            v_and_b32 v{lTV}, 7, {t(46)}
            s_lshl_b32 s48, {sJ}, 1
            v_xor_b32 v{lTV}, s48, v{lTV}
            v_lshlrev_b32 v{lTV}, 5, v{lTV}
            v_lshl_add_u32 v{lTV}, {t(46)}, 8, v{lTV}
            v_lshl_add_u32 v{lTV}, v{vA}, 3, v{lTV}
            """)
        yield

    def loader_addr():
        e(f"""
        v_lshrrev_b32 {t(11)}, 2, v{vL}
        v_and_b32 {t(12)}, 1, v{vU}
        v_lshlrev_b32 {t(12)}, 1, {t(12)}
        v_xor_b32 {t(12)}, {t(12)}, v{vA}
        v_lshlrev_b32 {t(12)}, 4, {t(12)}
        v_lshl_add_u32 v{aWO}, {t(11)}, 10, {t(12)}
        s_lshl_b32 s48, {sG}, 19
        s_lshl_b32 s49, {sJ}, 14
        s_add_u32 s48, s48, s49
        s_and_b32 s49, {sR}, 15
        s_lshl_b32 s49, s49, 6
        s_add_u32 s48, s48, s49
        v_add_u32 v{aWO}, s48, v{aWO}
        s_lshr_b32 s91, {sR}, 3
        s_and_b32 s91, s91, 2
        s_and_b32 s49, {sR}, 1
        s_or_b32 s91, s91, s49
        s_lshl_b32 {sWIN}, {sHI}, 23
        s_lshl_b32 s49, {sG}, 20
        s_add_u32 {sWIN}, {sWIN}, s49
        s_add_u32 {sWIN}, {sWIN}, 0xC0000
        v_lshl_add_u32 v{aW2}, {t(1)}, 10, {t(2)}
        s_lshl_b32 s48, {sJ}, 2
        v_add_u32 {t(10)}, s48, v{vU}
        v_xor_b32 v{vKA}, {t(10)}, v{vI}
        v_lshlrev_b32 v{vKA}, 4, v{vKA}
        v_lshl_add_u32 v{vKA}, {t(10)}, 8, v{vKA}
        v_and_b32 v{vVA}, 7, {t(10)}
        v_lshlrev_b32 v{vVA}, 1, v{vVA}
        v_xor_b32 v{vVA}, v{vVA}, v{vI}
        v_lshlrev_b32 v{vVA}, 4, v{vVA}
        v_lshl_add_u32 v{vVA}, {t(10)}, 8, v{vVA}
        s_movk_i32 s48, 3584
        v_mad_u32_u24 v{aW1}, {t(11)}, s48, {t(12)}
        s_lshl_b32 s48, {sHI}, 7
        s_lshl_b32 s49, {sJ}, 4
        s_add_u32 s48, s48, s49
        s_mul_i32 s48, s48, 3584
        s_mul_i32 s49, {sG}, 448
        s_add_u32 s48, s48, s49
        s_min_u32 s49, {sLO}, 6
        s_lshl_b32 s49, s49, 6
        s_add_u32 s48, s48, s49
        v_add_u32 v{aW1}, s48, v{aW1}
        s_mul_i32 s48, {sG}, {224*1024}
        s_lshl_b32 s49, {sLO}, 7
        s_add_u32 s48, s48, s49
        v_add_u32 v{aW2}, s48, v{aW2}
        """)
    def item(kind, c):
        if kind in "KV":
            blkoff("s94", c)
            dst = (L_K + (c & 3) * 8192 + (c >> 2) * 4096) if kind == "K" else (L_V + (32 * (c & 3) + 16 * (c >> 2)) * 256)
            e(f"s_add_u32 m0, {sVL}, {dst}\nv_add_u32 {t(61)}, s94, v{vKA if kind == 'K' else vVA}")
            return f"global_load_lds_dwordx4 {t(61)}, {sK if kind == 'K' else sV} nt"
        if kind == "o":
            e(f"""
            s_add_u32 s94, s91, {c >> 1}
            s_and_b32 s94, s94, 3
            s_lshl_b32 s94, s94, 13
            s_add_u32 s94, s94, {(c & 1) * 4096}
            s_lshl_b32 s95, s94, 4
            s_add_u32 s94, s94, {sVL}
            s_add_u32 m0, s94, {L_WO}
            v_add_u32 {t(61)}, s95, v{aWO}
            """)
            return f"global_load_lds_dwordx4 {t(61)}, {sWO} {'nt' if (cfg.hnt if c >= 2 else cfg.o0nt) else ''}"
        if kind == "1":
            e(f"s_add_u32 m0, {sVL}, {L_W1 + c * 4096}\nv_add_u32 {t(61)}, {c * 64 * 3584}, v{aW1}")
            return f"global_load_lds_dwordx4 {t(61)}, {sW1} nt"
        if kind == "r":
            e(f"""
            s_add_u32 s94, {sJ}, {4 * c}
            s_min_u32 s94, s94, 20
            s_mul_i32 s95, {sHI}, 7
            s_add_u32 s94, s94, s95
            s_add_u32 s94, s94, 7
            s_cmp_ge_u32 s94, 28
            s_cselect_b32 s95, 28, 0
            s_sub_u32 s94, s94, s95
            s_lshl_b32 s95, s94, 13
            s_lshl_b32 s94, s94, 10
            s_add_u32 m0, s94, {L_W2}
            v_add_u32 {t(61)}, s95, v{aW2}
            """)
            return f"global_load_lds_dwordx4 {t(61)}, {sW2} {'nt' if cfg.hnt else ''}"
        if kind == "2":
            e(f"""
            s_add_u32 s94, {sJ}, {4 * c}
            s_min_u32 s94, s94, 6
            s_mul_i32 s95, {sHI}, 7
            s_add_u32 s94, s94, s95
            s_lshl_b32 s95, s94, 13
            s_lshl_b32 s94, s94, 10
            s_add_u32 m0, s94, {L_W2}
            v_add_u32 {t(61)}, s95, v{aW2}
            """)
            return f"global_load_lds_dwordx4 {t(61)}, {sW2} nt"
    ORDERS = ["K" * 8 + "V" * 8 + "o" * 8 + "1122",
              "oo" + "K" * 8 + "V" * 8 + "o" * 6 + "1122",
              "K" * 8 + "oo" + "V" * 8 + "o" * 6 + "1122",
              "K" * 8 + "V" * 8 + "oo1122" + "o" * 6,
              "K" * 8 + "V" * 8 + "oooo1122" + "o" * 4,
              "K" * 8 + "V" * 6 + "oo" + "VV" + "1122" + "o" * 6,
              "K" * 8 + "V" * 8 + "o" * 8,
              "K" * 8 + "V" * 4 + "oo" + "VVVV" + "o" * 6,
              "K" * 8 + "oo" + "V" * 8 + "o" * 6,
              "K" * 8 + "V" * 6 + "oo" + "VV" + "11" + "o" * 6,
              "K" * 8 + "V" * 8 + "oo11" + "o" * 6]
    def w2_rest():
        e(f"""
        s_add_u32 s48, {sHI}, {sJ}
        s_add_u32 s48, s48, 1
        s_and_b32 s48, s48, 3
        s_mul_i32 s48, s48, 7
        s_lshl_b32 s49, s48, 13
        v_add_u32 {t(61)}, s49, v{aW2}
        s_lshl_b32 s48, s48, 10
        """)
        for i in range(7):
            e(f"s_add_u32 m0, s48, {L_W2 + i * 1024}\ns_nop 0\nglobal_load_lds_dwordx4 {t(61)}, {sW2} nt")
            if i < 6: e(f"v_add_u32 {t(61)}, 0x2000, {t(61)}")

    def tr128_addr(base):
        e(f"""
        v_lshl_add_u32 {t(40)}, v{vU}, 2, v{vBQ}
        v_bfe_u32 {t(41)}, {t(40)}, 1, 2
        v_xor_b32 {t(41)}, {sJ}, {t(41)}
        v_lshlrev_b32 {t(41)}, 5, {t(41)}
        v_lshl_add_u32 {t(41)}, {t(40)}, 7, {t(41)}
        v_lshl_add_u32 {t(41)}, v{vA}, 3, {t(41)}
        """)
        if base: e(f"v_add_u32 {t(41)}, {base}, {t(41)}")
    def tr128(dst, nks):
        for ks in range(nks):
            for h in range(2):
                e(f"ds_read_b64_tr_b16 {R(dst + ks*4 + h*2, 2)}, {t(41)} offset:{ks*4096 + h*2048}")
    def tr_w1():
        e(f"""
        v_lshl_add_u32 {t(40)}, v{vU}, 2, v{vBQ}
        v_and_b32 {t(41)}, 1, v{vU}
        v_xor_b32 {t(41)}, {sW1b}, {t(41)}
        v_lshlrev_b32 {t(41)}, 5, {t(41)}
        v_lshl_add_u32 {t(41)}, {t(40)}, 6, {t(41)}
        v_lshl_add_u32 {t(41)}, v{vA}, 3, {t(41)}
        v_add_u32 {t(41)}, {L_W1}, {t(41)}
        """)
        for ks in range(4):
            for h in range(2):
                e(f"ds_read_b64_tr_b16 {R(oW1 + ks*4 + h*2, 2)}, {t(41)} offset:{ks*2048 + h*1024}")
    def tr_wo():
        e(f"""
        v_and_b32 {t(40)}, 1, v{vBQ}
        v_lshlrev_b32 {t(40)}, 4, {t(40)}
        v_lshl_add_u32 {t(40)}, v{vU}, 2, {t(40)}
        v_lshrrev_b32 {t(41)}, 1, v{vBQ}
        v_add_u32 {t(40)}, {t(40)}, {t(41)}
        v_and_b32 {t(41)}, 1, v{vU}
        v_lshlrev_b32 {t(41)}, 5, {t(41)}
        v_lshl_add_u32 {t(41)}, {t(40)}, 6, {t(41)}
        v_lshl_add_u32 {t(41)}, v{vA}, 3, {t(41)}
        s_lshl_b32 s48, {sW}, 12
        s_add_u32 s48, s48, {L_WO}
        v_add_u32 {t(41)}, s48, {t(41)}
        v_xor_b32 {t(42)}, 32, {t(41)}
        """)
        for tile in range(2):
            for ks in range(2):
                for h in range(2):
                    e(f"ds_read_b64_tr_b16 {R(oWO + (tile*2+ks)*4 + h*2, 2)}, {t(41+tile)} offset:{ks*2048 + h*128}")
    def tr_v(ops):
        e(f"v_xor_b32 {t(60)}, 32, v{lTV}")
        for ks in range(4):
            for tile in range(2):
                for h in range(2):
                    e(f"ds_read_b64_tr_b16 {R(ops[tile*4+ks] + h*2, 2)}, {f'v{lTV}' if tile == 0 else t(60)} offset:{L_V + ks*8192 + h*4096}")

    def swapred(a, fill1, fill2):
        e(f"v_permlane32_swap_b32 v{a}, v{a+2}\nv_permlane32_swap_b32 v{a+1}, v{a+3}")
        e(f"v_pk_add_f32 {R(a,2)}, {R(a,2)}, {R(a+2,2)}")
        e(fill1)
        e(f"v_permlane16_swap_b32 v{a}, v{a+1}")
        e(fill2)
        e(f"v_add_f32 v{a}, v{a}, v{a+1}")

    def hint_send(inst, role):
        if cfg.hwx // 4 != role: return
        b = g.L("Lh")
        e(f"s_mov_b64 exec, s[22:23]\ns_cbranch_execz {b}\nglobal_store_dword v{vHNS}, v{vTV}, {sXI[inst]} sc1\n{b}:\ns_mov_b64 exec, -1")
    def hint_ld(inst, r, k):
        e(f"global_load_dword v{r}, {f'v{vHNL}' if k < 2 else t(30)}, {sXI[inst]} offset:{(k & 1) * 2048} sc1")
    def hint_first(inst):
        a, b = g.L("Lh"), g.L("Lh")
        e(f"s_cmp_eq_u32 {sW}, 7\ns_cbranch_scc1 {a}\n{b}:")
        g.ool(lambda: (e(f"{a}:\ns_mov_b64 exec, 0xffff"), hint_ld(inst, vHN, 0), e(f"s_mov_b64 exec, -1\ns_branch {b}")))
    def hprep():
        e(f"s_mov_b32 {sCNT}, 0\ns_mov_b64 exec, 0xffff\nv_add_u32 {t(30)}, 4096, v{vHNL}")
    def hint_wait(inst, issued):
        lp, dn = g.L("Lp"), g.L("Ld")
        ld = lambda r, k: hint_ld(inst, r, k)
        if not issued:
            ld(vHN, 0)
            delay(cfg.hgap)
        ld(vHN2, 1)
        chk = lambda r: e(f"s_waitcnt vmcnt(1)\nv_cmp_ne_u32 vcc, {sT}, v{r}\ns_cbranch_vccz {dn}\ns_add_u32 {sCNT}, {sCNT}, 1")
        chk(vHN); ld(vHN, 2)
        chk(vHN2); ld(vHN2, 3)
        e(f"{lp}:")
        for r in (vHN, vHN2):
            chk(r); ld(r, 3)
        e(f"s_cmp_lt_u32 {sCNT}, 0x8000\ns_cbranch_scc1 {lp}\n{dn}:")
        if cfg.stamps:
            e(f"v_writelane_b32 v{g.vst}, {sCNT}, {40 + g.npoll}")
            g.npoll += 1

    def spin2(load, gap, sleep=0):
        lp, dn = g.L("Lp"), g.L("Ld")
        regs = [vHN, vHN2, vHN3, vHN4][:cfg.fdep]
        e(f"s_mov_b32 {sCNT}, 0")
        for i, r in enumerate(regs):
            if i: delay(gap)
            load(r)
        e(f"{lp}:")
        for r in regs:
            e(f"s_waitcnt vmcnt({len(regs) - 1})\nv_subrev_u32 v{r}, s49, v{r}\nv_cmp_le_u32 vcc, 8, v{r}\ns_cbranch_vccz {dn}")
            load(r)
            e(f"s_add_u32 {sCNT}, {sCNT}, 1")
        e(f"s_cmp_lt_u32 {sCNT}, 0x10000\ns_cbranch_scc1 {lp}\n{dn}:")
        if cfg.stamps:
            e(f"v_writelane_b32 v{g.vst}, {sCNT}, {40 + g.npoll}")
            g.npoll += 1
    def gprep(idx, half=False):
        e(f"s_add_u32 s49, s3, {idx}\nv_mov_b32 v{vHN}, s49")
        if half: e(f"s_lshl_b32 s48, {sBP}, 4\ns_lshl_b32 s42, 0xffff, s48")
        else: e("s_mov_b32 s42, -1")
        e(f"s_mov_b32 s43, 0\ns_mov_b64 exec, 1\n{LOCCMP}")
    def gflag(dly):
        delay(dly)
        lstore([f"global_store_dword v{vFS}, v{vHN}, {sWS}"])
        e("s_mov_b64 exec, s[42:43]")
        delay(cfg.dfp)
        spin2(lambda r: e(f"global_load_dword v{r}, v{vFL}, {sWS} sc1"), cfg.fgap)
    def seg(paths, default, stamp, post=None):
        join = g.L("Lj")
        n0, p0 = g.nst, g.npoll
        p1 = p0
        for cond, pre, fn, *aft in paths:
            skip = g.L("Lk")
            g.nst, g.npoll = n0, p0
            e(cond + f"\ns_cbranch_scc0 {skip}")
            if pre: pre()
            g.fs(stamp + "<")
            e("s_waitcnt lgkmcnt(0)\ns_barrier")
            g.fs(stamp + "b")
            fn()
            g.fs(stamp + ">")
            g.stamp(stamp)
            if post: post()
            e(f"s_barrier\ns_mov_b64 exec, -1")
            if aft: aft[0]()
            e(f"s_branch {join}")
            g.pad()
            e(f"{skip}:")
            p1 = max(p1, g.npoll)
        g.nst, g.npoll = n0, p0
        g.fs(stamp + "<")
        e("s_waitcnt lgkmcnt(0)\ns_barrier")
        g.fs(stamp + "b")
        if default: default()
        g.fs(stamp + ">")
        g.stamp(stamp)
        if post: post()
        e(f"s_barrier\n{join}:")
        g.fs(stamp + "j")
        g.npoll = p0 + 1 if cfg.stamps else 0
    WEQ = lambda w: f"s_cmp_eq_u32 {sW}, {w}"
    def nopoll():
        if cfg.stamps: g.npoll += 1

    def xgather(inst, dly, role=1):
        delay(dly)
        def issue():
            e(f"global_load_dwordx4 {R(T,4)}, v{vXG}, {sXI[inst]} sc1\nglobal_load_dwordx4 {R(T+4,4)}, v{vXG}, {sXI[inst]} offset:1024 sc1")
        def body():
            xor4(T); xor4(T+4)
            e(f"""
            v_pk_add_f32 {R(T+8,2)}, {R(T,2)}, {R(T+4,2)}
            v_pk_add_f32 {R(T+10,2)}, {R(T+2,2)}, {R(T+6,2)}
            v_or3_b32 {t(0)}, {t(0)}, {t(1)}, {t(2)}
            v_or3_b32 {t(3)}, {t(3)}, {t(4)}, {t(5)}
            """)
            swapred(T+8, f"v_or3_b32 {t(0)}, {t(0)}, {t(6)}, {t(7)}\nv_or_b32 {t(0)}, {t(0)}, {t(3)}", BYTECHK(t(0)))
            e(f"v_add_f32 {t(8)}, {t(8)}, v{vXR}\nv_cvt_pk_bf16_f32 {t(14)}, {t(8)}, {t(8)}")
        poll(issue, body, cfg.retry_x, heat=(lambda: heat_w(3, cfg.hx0, cfg.hx)) if (role == 0 and inst < 3) else None)

    def xreads():
        for ks in range(4):
            e(f"ds_read_b128 {R(T+16+ks*4,4)}, v{lXR} offset:{ks*64}")
    def tile_gemv(L, oW, pub, base, csoff, dual, tr):
        xreads()
        if tr: tr()
        for ks in range(4):
            e(f"s_waitcnt lgkmcnt({0 if tr else 3-ks})")
            e(f"{MFMA} {R(T+32,4)}, {R(T+16+ks*4,4)}, {R(oW+ks*4,4)}, {'0' if ks == 0 else R(T+32,4)}")
        if L == 0:
            e(f"v_add_u32 {t(36)}, {csoff}, v{pub}\n{LOCCMP}\ns_nop 5")
        else:
            e(f"{LOCCMP}\ns_nop 6")
        e(f"v_and_or_b32 {t(32)}, {t(32)}, {sMASK}, v{vTAG}")
        ins = [f"global_store_dword v{pub}, {t(32)}, {base}"]
        if L == 0:
            e(f"v_and_or_b32 {t(33)}, {t(33)}, {sMASK}, v{vTAG}")
            ins += ["s_mov_b64 exec, 0xffff", f"global_store_dword {t(36)}, {t(33)}, {base}", "s_mov_b64 exec, -1"]
        if dual:
            for s in ins: e(s)
            return [s.replace(base, sQX) + " sc1" if s.startswith("global") else s for s in ins]
        else:
            lstore(ins)
    def gram(stat, base, dual):
        xreads()
        e(f"s_lshl_b32 s48, {sXCC}, 8\ns_or_b32 s48, s48, s34")
        for ks in range(4):
            e(f"s_waitcnt lgkmcnt({3-ks})")
            e(f"{MFMA} {R(T+32,4)}, {R(T+16+ks*4,4)}, {R(T+16+ks*4,4)}, {'0' if ks == 0 else R(T+32,4)}")
        e(f"""
        v_mov_b32 {t(36)}, s32
        v_mov_b32 {t(37)}, s33
        v_mov_b32 {t(38)}, s48
        v_mov_b32 {t(39)}, s35
        s_mov_b64 exec, {sM20}
        {LOCCMP}
        s_nop 1
        v_and_or_b32 {t(36)}, {t(32)}, {sMASK}, {t(36)}
        v_and_or_b32 {t(37)}, {t(33)}, {sMASK}, {t(37)}
        """)
        ins = [f"global_store_dwordx4 v{stat}, {R(T+36,4)}, {base}"]
        if dual:
            e(ins[0])
            e("s_mov_b64 exec, -1")
            for i in range(4): e(f"v_mov_b32 v{oWO+8+i}, {t(36+i)}")
        else: lstore(ins)
        e("s_mov_b64 exec, -1")

    def probe(dst, off):
        e(f"""
        s_memtime s[80:81]
        s_waitcnt lgkmcnt(0)
        s_load_dword s86, s[78:79], {off} glc
        s_waitcnt lgkmcnt(0)
        s_memtime s[82:83]
        s_waitcnt lgkmcnt(0)
        s_sub_u32 {dst}, s82, s80
        """)
    def probe1():
        e(f"""
        s_lshr_b32 s48, s2, 6
        s_lshl_b32 s48, s48, 14
        s_and_b32 s49, s2, 63
        s_lshl_b32 s49, s49, 7
        s_add_u32 s48, s48, s49
        s_add_u32 s48, s48, {W_PROBE}
        s_add_u32 s78, s24, s48
        s_addc_u32 s79, s25, 0
        """)
        probe("s84", 0)
        e(f"""
        s_cmp_gt_u32 s84, {cfg.thr}
        s_cselect_b32 s48, 0x2001, 1
        v_mov_b32 {t(0)}, s48
        v_mov_b32 {t(1)}, {L_FL + 48}
        v_mov_b32 {t(2)}, s84
        ds_write_b32 {t(1)}, {t(2)} offset:8
        ds_write_b32 {t(1)}, {t(0)}
        """)
        if cfg.stamps: e(f"v_writelane_b32 v{g.vst}, s84, 61")
    def probe2():
        e(f"v_mov_b32 {t(1)}, {L_FL + 48}\nds_read_b32 {t(2)}, {t(1)} offset:8\ns_waitcnt lgkmcnt(0)\nv_readfirstlane_b32 s84, {t(2)}")
        probe("s85", 0x2000)
        e(f"""
        s_min_u32 s84, s84, {cfg.thr + 40}
        s_cmp_lt_u32 s85, s84
        s_cselect_b32 s48, 0x2001, 1
        v_mov_b32 {t(0)}, s48
        ds_write_b32 {t(1)}, {t(0)} offset:4
        """)
        if cfg.stamps: e(f"v_writelane_b32 v{g.vst}, s48, 62")
    def selwait(slot=0):
        if cfg.probe != 2: return
        lp, dn = g.L("Lq"), g.L("Lq")
        e(f"""
        v_mov_b32 {t(1)}, {L_FL + 48 + 4 * slot}
        s_mov_b32 {sCNT}, 0
        {lp}:
        ds_read_b32 {t(0)}, {t(1)}
        s_add_u32 {sCNT}, {sCNT}, 1
        s_cmp_gt_u32 {sCNT}, 0x10000
        s_cbranch_scc1 {dn}
        s_waitcnt lgkmcnt(0)
        v_cmp_eq_u32 vcc, 0, {t(0)}
        s_cbranch_vccnz {lp}
        {dn}:
        s_waitcnt lgkmcnt(0)
        s_movk_i32 s48, 0x2000
        v_bfi_b32 v{vXG}, s48, {t(0)}, v{vXG}
        v_bfi_b32 v{vHNL}, s48, {t(0)}, v{vHNL}
        """)
    def apply_sel():
        if cfg.probe != 1: return
        e(f"""
        v_mov_b32 {t(1)}, {L_FL + 48}
        ds_read_b32 {t(0)}, {t(1)}
        s_waitcnt lgkmcnt(0)
        v_subrev_u32 {t(0)}, s88, {t(0)}
        v_add_u32 v{vXG}, v{vXG}, {t(0)}
        v_add_u32 v{vHNL}, v{vHNL}, {t(0)}
        """)
    def set_loc(b):
        e(f"""
        v_and_b32 {t(b)}, {t(b)}, {t(b+1)}
        v_and_b32 {t(b+2)}, {t(b+2)}, {t(b+3)}
        v_and_b32 {t(b)}, {t(b)}, {t(b+2)}
        s_nop 0
        v_readfirstlane_b32 {sLOC}, {t(b)}
        s_nop 0
        {LOCCMP}
        s_cselect_b64 {sQB}, {sQX}, {sWS}
        """)
    def lsignal(k):
        e(f"v_mov_b32 {t(58)}, {k}\nds_write_b32 {t(59)}, {t(58)}")
    def lwait(k, hook=None):
        lsp, lsd = g.L("Lq"), g.L("Lq")
        e(f"""
        v_mov_b32 {t(57)}, {L_FL}
        s_mov_b32 {sCNT}, 0
        {lsp}:
        ds_read_b128 {R(T+48,4)}, {t(57)}
        ds_read_b128 {R(T+52,4)}, {t(57)} offset:16
        s_add_u32 {sCNT}, {sCNT}, 1
        s_cmp_gt_u32 {sCNT}, 0x100000
        s_cbranch_scc1 {lsd}
        """)
        if hook:
            lh, lh2 = g.L("Lq"), g.L("Lq")
            e(f"s_cmp_eq_u32 {sCNT}, 64\ns_cbranch_scc1 {lh}\n{lh2}:")
            g.ool(lambda: (e(f"{lh}:"), hook(), e(f"s_branch {lh2}")))
        e(f"""
        s_waitcnt lgkmcnt(0)
        v_min3_u32 {t(48)}, {t(48)}, {t(49)}, {t(50)}
        v_min3_u32 {t(51)}, {t(51)}, {t(52)}, {t(53)}
        v_min3_u32 {t(48)}, {t(48)}, {t(54)}, {t(55)}
        v_min_u32 {t(48)}, {t(48)}, {t(51)}
        v_cmp_gt_u32 vcc, {k}, {t(48)}
        s_cbranch_vccnz {lsp}
        {lsd}:
        """)
    RSTD = f"""
        v_mul_f32 {t(12)}, s64, {t(12)}
        v_fma_f32 {t(12)}, -{t(13)}, {t(13)}, {t(12)}
        v_max_f32 {t(12)}, 0, {t(12)}
        v_add_f32 {t(12)}, {hex(f2u(1e-5))}, {t(12)}
        v_rsq_f32 {t(12)}, {t(12)}
        """
    def qk_softmax():
        for ks in range(4):
            e(f"ds_read_b128 {R(T+16+ks*4,4)}, v{lQR} offset:{ks*64}")
        e(f"v_mul_f32 v{vSC}, {hex(f2u(128**-0.5 * math.log2(math.e)))}, {t(12)}")
        for ks in range(4):
            e(f"s_waitcnt lgkmcnt({3-ks})")
            for h in range(2):
                e(f"{MFMA} {R(T+32+h*4,4)}, {R(oK+(h*4+ks)*4,4)}, {R(T+16+ks*4,4)}, {'0' if ks == 0 else R(T+32+h*4,4)}")
        e(f"""
        s_nop 6
        v_max3_f32 {t(0)}, {t(32)}, {t(33)}, {t(34)}
        v_max3_f32 {t(1)}, {t(36)}, {t(37)}, {t(38)}
        v_max3_f32 {t(2)}, {t(0)}, {t(35)}, {t(39)}
        v_max_f32 {t(0)}, {t(2)}, {t(1)}
        v_max_f32 {t(1)}, {t(2)}, {t(1)}
        s_nop 1
        v_permlane32_swap_b32 {t(0)}, {t(1)}
        v_max_f32 {t(2)}, {t(0)}, {t(1)}
        v_max_f32 {t(3)}, {t(0)}, {t(1)}
        s_nop 1
        v_permlane16_swap_b32 {t(2)}, {t(3)}
        v_max_f32 {t(0)}, {t(2)}, {t(3)}
        v_mul_f32 {t(0)}, {t(0)}, v{vSC}
        """)
        for i in range(8):
            e(f"v_fma_f32 {t(32+i)}, {t(32+i)}, v{vSC}, -{t(0)}")
        e(f"ds_write_b32 v{lMW}, {t(0)}")
        for i in range(8):
            e(f"v_exp_f32 {t(32+i)}, {t(32+i)}")
        for i in range(4):
            e(f"v_cvt_pk_bf16_f32 {t(4+i)}, {t(32+2*i)}, {t(33+2*i)}")
        e(f"""
        ds_write_b128 v{lPW}, {R(T+4,4)}
        v_pk_add_f32 {R(T+32,2)}, {R(T+32,2)}, {R(T+34,2)}
        v_pk_add_f32 {R(T+36,2)}, {R(T+36,2)}, {R(T+38,2)}
        v_pk_add_f32 {R(T+32,2)}, {R(T+32,2)}, {R(T+36,2)}
        v_add_f32 {t(32)}, {t(32)}, {t(33)}
        ds_write_b32 v{lLW}, {t(32)}
        """)
    def fweights():
        e(f"""
        v_max3_f32 {t(8)}, {t(0)}, {t(1)}, {t(2)}
        v_max_f32 {t(8)}, {t(8)}, {t(3)}
        v_sub_f32 {t(0)}, {t(0)}, {t(8)}
        v_sub_f32 {t(1)}, {t(1)}, {t(8)}
        v_sub_f32 {t(2)}, {t(2)}, {t(8)}
        v_sub_f32 {t(3)}, {t(3)}, {t(8)}
        v_exp_f32 {t(0)}, {t(0)}
        v_exp_f32 {t(1)}, {t(1)}
        v_exp_f32 {t(2)}, {t(2)}
        v_exp_f32 {t(3)}, {t(3)}
        """)
    def pv(ops, fresh):
        e(f"ds_read_b128 {R(T+16,4)}, v{lP}\nds_read_b128 {R(T,4)}, v{lMR}")
        for ks in range(1, 4):
            e(f"ds_read_b128 {R(T+16+ks*4,4)}, v{lP} offset:{ks*1024}")
        if fresh: tr_v(ops)
        mm = lambda ks, tile: e(f"{MFMA} {R(T+32+(tile*4+ks)*4,4)}, {R(T+16+ks*4,4)}, {R(ops[tile*4+ks],4)}, 0")
        wt = lambda ks: e(f"s_waitcnt lgkmcnt({12 - 4*ks if fresh else (4, 2, 1, 0)[ks]})")
        wt(0); mm(0, 0); mm(0, 1)
        wt(1); mm(1, 0)
        e(f"v_max3_f32 {t(8)}, {t(0)}, {t(1)}, {t(2)}\nv_max_f32 {t(8)}, {t(8)}, {t(3)}")
        mm(1, 1)
        e(f"v_sub_f32 {t(0)}, {t(0)}, {t(8)}\nv_sub_f32 {t(1)}, {t(1)}, {t(8)}")
        wt(2); mm(2, 0)
        e(f"v_sub_f32 {t(2)}, {t(2)}, {t(8)}\nv_sub_f32 {t(3)}, {t(3)}, {t(8)}")
        mm(2, 1)
        e(f"v_exp_f32 {t(0)}, {t(0)}")
        wt(3); mm(3, 0)
        e(f"v_exp_f32 {t(1)}, {t(1)}")
        mm(3, 1)
        e(f"""
        v_exp_f32 {t(2)}, {t(2)}
        v_exp_f32 {t(3)}, {t(3)}
        v_mul_f32 {t(12)}, {t(0)}, {t(32)}
        v_mul_f32 {t(13)}, {t(0)}, {t(48)}
        v_fmac_f32 {t(12)}, {t(1)}, {t(36)}
        v_fmac_f32 {t(13)}, {t(1)}, {t(52)}
        v_fmac_f32 {t(12)}, {t(2)}, {t(40)}
        v_fmac_f32 {t(13)}, {t(2)}, {t(56)}
        v_fmac_f32 {t(12)}, {t(3)}, {t(44)}
        v_fmac_f32 {t(13)}, {t(3)}, {t(60)}
        {LOCCMP}
        v_cvt_pk_bf16_f32 {t(12)}, {t(12)}, {t(13)}
        v_min_u32 {t(12)}, -2, {t(12)}
        """)
        lstore([f"global_store_dword v{vOP}, {t(12)}, {sWS}"])
    def ml_store(have_f):
        e(f"v_lshlrev_b32 {t(14)}, 6, v{vU}\nv_add_u32 {t(14)}, {L_LS}, {t(14)}")
        if not have_f: e(f"ds_read_b128 {R(T,4)}, v{lMR}")
        for i in range(4):
            e(f"ds_read_b128 {R(T+16+4*i,4)}, {t(14)} offset:{16*i}")
        if not have_f:
            e("s_waitcnt lgkmcnt(4)")
            fweights()
        e("s_waitcnt lgkmcnt(0)")
        for i in range(4):
            e(f"v_pk_add_f32 {R(T+16+4*i,2)}, {R(T+16+4*i,2)}, {R(T+18+4*i,2)}")
        for i in range(4):
            e(f"v_add_f32 {t(16+4*i)}, {t(16+4*i)}, {t(17+4*i)}")
        e(f"""
        v_mul_f32 {t(9)}, {t(0)}, {t(16)}
        v_fmac_f32 {t(9)}, {t(1)}, {t(20)}
        v_fmac_f32 {t(9)}, {t(2)}, {t(24)}
        v_fmac_f32 {t(9)}, {t(3)}, {t(28)}
        s_mov_b32 s42, 0x00010001
        s_mov_b32 s43, 0x00010001
        v_min_u32 {t(8)}, -2, {t(8)}
        v_min_u32 {t(9)}, -2, {t(9)}
        s_mov_b64 exec, s[42:43]
        {LOCCMP}
        """)
        lstore([f"global_store_dword v{vMP}, {t(8)}, {sWS}", f"global_store_dword v{vMP}, {t(9)}, {sWS} offset:256"])
        e("s_mov_b64 exec, -1")
    def oflag(L):
        gprep(1, True)
        gflag(0)
        e("s_mov_b64 exec, -1")
    def ml_issue():
        e(f"global_load_dword {t(8)}, v{vML}, {sWS} sc1\nglobal_load_dword {t(13)}, v{vML}, {sWS} offset:256 sc1")
    OPS1 = [oV + 4 * i for i in range(8)]
    OPS0 = [oW2 + 4 * i for i in range(7)] + [oWO]

    WL = lambda m: ['', f'global_load_dword {t(63)}, v{vJ}, {sWS}', f'global_load_dword {t(63)}, v{vJ}, {sWS} nt', f'global_load_dword {t(63)}, v{vJ}, {sWS} sc1'][m]
    def front_loader():
        e("L_role1:")
        ids()
        e(f"v_mov_b32 v{vZERO}, 0")
        loader_addr()
        e("s_barrier")
        seq = [("q", i) for i in range(4)]
        cnt = {}
        for ch in ORDERS[cfg.order] + ("r" * 6 if cfg.w2pos == 0 else "") + "x":
            seq.append((ch, cnt.get(ch, 0))); cnt[ch] = cnt.get(ch, 0) + 1
        marks = [max(i for i, x in enumerate(seq) if x[0] == k) for k in "qKV"]
        names = ["A_in", "K_in", "V_in"]
        extra = {"A_in": ["A_pub"], "K_in": ["q_in", "P_out"], "V_in": []}
        wt = [0 if ((k == "o" and c >= 2 and not cfg.hitw) or k in "xr") else 1 for k, c in seq]
        landed = -1
        nsig = 0
        def signals():
            nonlocal nsig
            while nsig < 3 and marks[nsig] <= landed:
                lsignal(nsig + 1)
                g.stamp(names[nsig])
                for x in extra[names[nsig]]: g.stamp(x)
                nsig += 1
        e(f"s_lshl_b32 s48, {sJ}, 2\ns_add_u32 s48, s48, {L_FL}\nv_mov_b32 {t(59)}, s48")
        def lsetup():
            e(f"s_load_dword {sT}, {sWS}, {W_EPOCH}")
            for _ in setup(1): pass
            e(f"""
            s_lshr_b32 s48, s2, 6
            s_lshl_b32 s48, s48, 14
            s_and_b32 s49, s2, 63
            s_lshl_b32 s49, s49, 7
            s_add_u32 s48, s48, s49
            s_add_u32 s48, s48, {W_PROBE}
            s_add_u32 s78, s24, s48
            s_addc_u32 s79, s25, 0
            s_mov_b32 s84, 0
            """)
            e("s_waitcnt lgkmcnt(0)")
            tags(True)
        g.stamp("setup")
        save = g.cur; g.cur = []; lsetup(); pend = g.cur; g.cur = save
        def drip(n):
            k = min(n, len(pend))
            while k < len(pend) and (pend[k].split()[0] in ("s_addc_u32", "v_cndmask_b32", "s_cselect_b32") or pend[k-1].split()[0].startswith("v_cmp")): k += 1
            g.cur.extend(pend[:k]); del pend[:k]
        for i in range(4, len(seq)):
            j, acc = i, wt[i]
            while j > 0 and acc + wt[j-1] <= (cfg.win if i <= marks[2] else cfg.wtail):
                j -= 1; acc += wt[j]
            if i == marks[2] + 1 + cfg.vsig and landed < marks[2]:
                e(f"s_waitcnt vmcnt({cfg.vsig})")
                landed = marks[2]
                signals()
            if i == 4 and cfg.hold < 4:
                drip(cfg.chunk * 4)
                j = max(j, 4 - cfg.hold)
            ins = item(*seq[i]) if seq[i][0] != "x" else f"global_load_ushort {t(14)}, v{vXO}, {sX}"
            if j - 1 > landed:
                e(f"s_waitcnt vmcnt({i - j})")
            e(ins)
            if cfg.ldbg:
                e(f"s_memrealtime s[92:93]\ns_waitcnt lgkmcnt(0)\nv_writelane_b32 v{vst2}, s92, {i}")
            landed = max(landed, j - 1)
            signals()
            drip(cfg.chunk * (3 if i == 4 else 1))
        while nsig < 3:
            landed = marks[nsig]
            e(f"s_waitcnt vmcnt({len(seq) - 1 - landed})")
            signals()
        drip(10000)
        nopoll(); nopoll()
        e(f"s_waitcnt vmcnt(0)\nv_lshlrev_b32 v{vXR}, 16, {t(14)}")

    def front_role0():
        lc, lc2, lc3, lc4 = g.L("Lc"), g.L("Lc"), g.L("Lc"), g.L("Lc")
        e("L_role0:")
        if cfg.prio: e("s_setprio 2")
        ids()
        e(f"""
        v_mov_b32 v{vZERO}, 0
        v_lshlrev_b32 {t(12)}, 2, v{vI}
        v_add_u32 {t(12)}, {L_FL}, {t(12)}
        ds_write_b32 {t(12)}, v{vZERO}
        s_waitcnt lgkmcnt(0)
        global_load_ushort {t(14)}, v{vXO}, {sX}
        global_load_ushort {t(15)}, v{vXO}, {sX} offset:128
        v_mov_b32 {t(8)}, -1
        v_mov_b32 {t(9)}, -1
        v_mov_b32 {t(10)}, -1
        v_mov_b32 {t(11)}, -1
        v_lshlrev_b32 {t(13)}, 4, v{vL}
        v_mov_b32 {t(5)}, 0
        s_cmp_lt_u32 {sW}, 2
        s_cbranch_scc1 {lc}
        s_lshl_b32 s48, {sSL}, 10
        s_and_b32 s49, {sW}, 1
        s_lshl_b32 s49, s49, {int(math.log2(O_LS))}
        s_add_u32 s48, s48, s49
        s_add_u32 s48, s48, {W_O}
        v_add_u32 v{vJ}, s48, {t(13)}
        global_store_dwordx4 v{vJ}, {R(T+8,4)}, {sWS} sc1
        {'' if cfg.xpre else f's_branch {lc3}'}
        s_and_b32 s48, {sR}, 15
        s_cbranch_scc1 {lc3}
        s_and_b32 s49, {sW}, 1
        s_mul_i32 s49, s49, {2 * X_STRIDE}
        s_lshl_b32 s48, {sG}, 8
        s_add_u32 s48, s48, s49
        s_lshl_b32 s49, {sR}, 3
        s_add_u32 s48, s48, s49
        s_add_u32 s48, s48, {W_X0 + X_HINT}
        v_lshrrev_b32 {t(12)}, 3, v{vL}
        v_and_b32 {t(13)}, 0x70, {t(13)}
        v_lshl_add_u32 {t(12)}, {t(12)}, 11, {t(13)}
        v_add_u32 {t(12)}, s48, {t(12)}
        global_store_dwordx4 {t(12)}, {R(T+8,4)}, {sWS} sc1
        v_add_u32 {t(12)}, {X_STRIDE}, {t(12)}
        global_store_dwordx4 {t(12)}, {R(T+8,4)}, {sWS} sc1
        s_branch {lc3}
        {lc}:
        s_lshr_b32 s48, {sR}, 2
        s_lshl_b32 s48, s48, 14
        s_and_b32 s49, {sR}, 3
        s_lshl_b32 s49, s49, 11
        s_add_u32 s48, s48, s49
        s_lshl_b32 s49, {sG}, 8
        s_add_u32 s48, s48, s49
        s_mul_i32 s49, {sW}, {2 * X_STRIDE}
        s_add_u32 s48, s48, s49
        s_add_u32 s48, s48, {W_X0}
        v_and_b32 {t(12)}, 1, v{vU}
        v_lshlrev_b32 {t(12)}, 13, {t(12)}
        v_lshl_add_u32 {t(12)}, v{vI}, 4, {t(12)}
        v_lshrrev_b32 {t(7)}, 5, v{vL}
        s_mov_b32 s49, {X_STRIDE}
        v_mad_u32_u24 {t(6)}, {t(7)}, s49, {t(12)}
        v_add_u32 {t(6)}, s48, {t(6)}
        {f'global_store_dwordx4 {t(6)}, {R(T+8,4)}, {sWS} sc1' if cfg.xpre == 1 else ''}
        s_cmp_eq_u32 {sW}, 0
        s_cbranch_scc1 {lc4}
        s_lshr_b32 s48, s2, 6
        s_lshl_b32 s48, s48, 14
        s_and_b32 s49, s2, 63
        s_lshl_b32 s49, s49, 7
        s_add_u32 s48, s48, s49
        s_add_u32 s48, s48, {W_PROBE}
        v_add_u32 {t(12)}, s48, {t(12)}
        s_mov_b64 exec, 0x00ff00ff
        global_store_dwordx4 {t(12)}, {R(T+8,4)}, {sWS} sc1
        s_mov_b64 exec, -1
        s_lshl_b32 s48, {sG}, 10
        s_and_b32 s49, {sR}, 1
        s_lshl_b32 s49, s49, {int(math.log2(ML_LS))}
        s_add_u32 s48, s48, s49
        s_add_u32 s48, s48, {W_ML}
        v_add_u32 v{vJ}, s48, {t(13)}
        s_cmp_gt_u32 {sR}, 1
        s_cbranch_scc1 {lc3}
        global_store_dwordx4 v{vJ}, {R(T+8,4)}, {sWS} sc1
        s_branch {lc3}
        {lc4}:
        s_lshl_b32 s48, {sG}, 16
        s_mul_i32 s49, {sR}, {11*128}
        s_add_u32 s48, s48, s49
        s_add_u32 s48, s48, {W_QP}
        v_lshlrev_b32 {t(12)}, 7, v{vI}
        v_add_u32 v{vJ}, s48, {t(12)}
        s_lshl_b32 s48, {sG}, 11
        s_add_u32 s48, s48, {W_IND}
        v_add_u32 {t(12)}, s48, {t(12)}
        v_cmp_gt_u32 vcc, 16, v{vL}
        s_cmp_eq_u32 {sR}, 0
        s_cselect_b32 s42, 0xffff0000, 0
        s_or_b32 s42, s42, 0x7ff
        s_mov_b32 s43, 0
        v_cndmask_b32 v{vJ}, {t(12)}, v{vJ}, vcc
        s_mov_b64 exec, s[42:43]
        {WL(cfg.w0)}
        s_mov_b64 exec, -1
        v_mov_b32 {t(5)}, v{vJ}
        s_mov_b64 s[90:91], s[42:43]
        s_lshl_b32 s48, {sG}, 15
        s_mul_i32 s49, {sR}, {6*128}
        s_add_u32 s48, s48, s49
        s_add_u32 s48, s48, {W_HP}
        v_add_u32 v{vJ}, s48, {t(13)}
        {lc3}:
        {'s_memrealtime s[100:101]' if cfg.stamps else ''}
        s_load_dword {sT}, {sWS}, {W_EPOCH}
        s_barrier
        """)
        for _ in setup(0): pass
        tr128_addr(L_WQ)
        e(f"s_lshl_b32 s48, {sW}, 2\ns_add_u32 s48, s48, {L_FL + 16}\nv_mov_b32 {t(59)}, s48\ns_waitcnt lgkmcnt(0)")
        tags(True)
        g.stamp("setup")
        e(f"s_waitcnt vmcnt(0)\nds_write_b16 v{lXW}, {t(14)}\nds_write_b16 v{lXW}, {t(15)} offset:128\nv_lshlrev_b32 v{vXR}, 16, {t(14)}")
        lsignal(1)
        if cfg.prom:
            lpr = g.L("Lw")
            e(f"s_cmp_lg_u32 {sW}, 0\ns_cbranch_scc1 {lpr}\ns_mov_b64 exec, s[90:91]\nglobal_load_dword {t(63)}, {t(5)}, {sWS}\ns_mov_b64 exec, -1\n{lpr}:")
        lwait(1)
        g.stamp("A_in")
        later = tile_gemv(0, oWQ, vAP, sQB, 0x8000, True, lambda: tr128(oWQ, 4))
        la, lb = g.L("La"), g.L("La")
        e(f"v_mov_b32 v{oWO+4}, {t(32)}\nv_mov_b32 v{oWO+5}, {t(33)}\ns_mov_b32 s89, 0")
        wave_if("eq", 3, la)
        gram(vAS, sQB, True)
        e(f"""
        v_lshlrev_b32 {t(47)}, 7, v{vL}
        v_add_u32 {t(47)}, {sR}, {t(47)}
        s_mov_b64 exec, {(1 << NREP) - 1}
        global_store_byte {t(47)}, v{vTV}, s[76:77] offset:1024
        s_mov_b64 exec, -1
        {la}:
        """)
        g.stamp("A_pub")
        lgo, lp = g.L("Ln"), g.L("Lw")
        def wt_copy():
            ld = g.L("Lt")
            e(f"""
            s_cmp_lg_u32 s89, 0
            s_cbranch_scc1 {ld}
            s_mov_b32 s89, 1
            v_add_u32 v{oWO+6}, 0x8000, v{vAP}
            global_store_dword v{vAP}, v{oWO+4}, {sQX} sc1
            s_mov_b64 exec, 0xffff
            global_store_dword v{oWO+6}, v{oWO+5}, {sQX} sc1
            s_mov_b64 exec, -1
            s_cmp_lg_u32 {sW}, 3
            s_cbranch_scc1 {ld}
            s_mov_b64 exec, {sM20}
            global_store_dwordx4 v{vAS}, {R(oWO+8,4)}, {sQX} sc1
            s_mov_b64 exec, -1
            {ld}:
            """)
        lw = g.L("Lw")
        e(f"""
        s_sub_u32 s48, {sW}, 1
        s_cmp_gt_u32 s48, 1
        s_cbranch_scc1 {lw}
        s_mov_b32 s42, 0x01010101
        s_mov_b32 s43, 0x01010101
        s_mov_b64 exec, s[42:43]
        {WL(cfg.w1_)}
        s_mov_b64 exec, -1
        {lw}:
        """)
        e(f"""
        s_mul_i32 s78, s32, 0x01010101
        s_mov_b32 s79, s78
        v_add_u32 {t(44)}, 0x1000, v{vQL}
        v_add_u32 {t(45)}, 0x1000, v{vQC}
        v_lshl_add_u32 {t(46)}, v{vU}, 8, v{vQST}
        v_xor_b32 {t(40)}, v{vU}, v{vI}
        v_lshlrev_b32 {t(40)}, 4, {t(40)}
        v_lshl_add_u32 {t(40)}, v{vI}, 8, {t(40)}
        s_lshl_b32 s48, {sW}, 13
        s_add_u32 s48, s48, {L_K}
        v_add_u32 {t(40)}, s48, {t(40)}
        v_xor_b32 {t(41)}, 64, {t(40)}
        v_xor_b32 {t(42)}, 0x80, {t(40)}
        v_xor_b32 {t(43)}, 0xc0, {t(40)}
        """)
        def walk():
            if not cfg.pads: return
            ld = g.L("Lw")
            for w in range(4):
                nx = g.L("Lw")
                if w < 3: e(f"s_cmp_lg_u32 {sW}, {w}\ns_cbranch_scc1 {nx}")
                e(f"s_call_b64 s[94:95], L_pad{w}")
                if w == 0 and HEAT: e(f"s_call_b64 s[94:95], L_heat{HEATMAX}")
                if w < 3: e(f"s_branch {ld}\n{nx}:")
            e(f"{ld}:")
        if cfg.wpos == 0: walk()
        for k in range(NREP):
            e(f"""
            s_sleep {cfg.dq0 if k == 0 else cfg.dsf}
            s_load_dwordx8 s[80:87], s[76:77], {1024 + k*128}
            s_waitcnt lgkmcnt(0)
            s_xor_b64 s[80:81], s[80:81], s[78:79]
            s_xor_b64 s[82:83], s[82:83], s[78:79]
            s_xor_b64 s[84:85], s[84:85], s[78:79]
            s_xor_b64 s[86:87], s[86:87], s[78:79]
            s_or_b64 s[80:81], s[80:81], s[82:83]
            s_or_b64 s[84:85], s[84:85], s[86:87]
            s_or_b64 s[80:81], s[80:81], s[84:85]
            s_cbranch_scc0 {lgo}
            """)
            if cfg.stamps: e(f"v_writelane_b32 v{g.vst}, {k+1}, 59")
        e(f"{lgo}:")
        if cfg.noq:
            e(f"v_mov_b32 {t(58)}, 3\nds_write_b32 {t(59)}, {t(58)}")
            lwait(3)
            e(f"s_sleep 4\nv_mov_b32 {t(58)}, 1\nds_write_b32 {t(59)}, {t(58)}\ns_sleep 4")
        g.stamp("K_in")
        def issue():
            e(f"v_mov_b32 {t(10)}, v{vTAG}\ns_mov_b64 exec, 0xffffffff\nglobal_load_dword {t(10)}, {t(46)}, {sQB} sc1\ns_mov_b64 exec, -1")
            e(f"global_load_dwordx4 {R(T,4)}, v{vQL}, {sQB} sc1\nglobal_load_dwordx4 {R(T+4,4)}, v{vQC}, {sQB} sc1")
            e(f"global_load_dwordx4 {R(T+16,4)}, {t(44)}, {sQB} sc1\nglobal_load_dwordx4 {R(T+20,4)}, {t(45)}, {sQB} sc1")
            e(f"v_mov_b32 {t(12)}, {hex(f2u(1.0/512))}")
        def body():
            e(f"v_xor_b32 {t(10)}, v{vTAG}, {t(10)}")
            for b_ in (0, 4, 16, 20): xor4(T + b_)
            e(f"v_add_f32_dpp {t(11)}, {t(10)}, {t(10)} row_ror:4 {DPP}")
            e(f"v_or3_b32 {t(8)}, {t(0)}, {t(1)}, {t(2)}\nv_or3_b32 {t(8)}, {t(8)}, {t(3)}, {t(10)}")
            e(f"v_add_f32_dpp {t(11)}, {t(11)}, {t(11)} row_ror:8 {DPP}")
            for b_ in (4, 6, 16, 18, 20, 22):
                e(f"v_or3_b32 {t(8)}, {t(8)}, {t(b_)}, {t(b_+1)}")
            e(f"v_readlane_b32 s65, {t(11)}, 1\nv_readlane_b32 s64, {t(11)}, 0\n{BYTECHK(t(8))}")
            for b_ in (0, 4, 16, 20): swapred(T + b_, "s_nop 1", "")
            e(f"""
            v_mul_f32 {t(13)}, s65, {t(12)}
            v_mov_b32 v{vCS}, {t(4)}
            v_fma_f32 {t(0)}, -{t(13)}, {t(4)}, {t(0)}
            v_fma_f32 {t(16)}, -{t(13)}, {t(20)}, {t(16)}
            v_cvt_pk_bf16_f32 {t(4)}, {t(0)}, {t(0)}
            v_cvt_pk_bf16_f32 {t(5)}, {t(16)}, {t(16)}
            """)
        def onretry():
            lr = g.L("Lt")
            e(f"s_cmp_lt_u32 {sCNT}, {cfg.nloc}\ns_cbranch_scc1 {lr}")
            wt_copy()
            e(f"s_bitcmp1_b32 {sCNT}, 0\ns_cselect_b64 {sQB}, {sWS}, {sQX}\n{lr}:")
        B2 = oW2
        def first2():
            issue()
            e(f"s_sleep {cfg.q2}")
            e(f"v_mov_b32 v{B2+16}, v{vTAG}\ns_mov_b64 exec, 0xffffffff\nglobal_load_dword v{B2+16}, {t(46)}, {sQB} sc1\ns_mov_b64 exec, -1")
            e(f"global_load_dwordx4 {R(B2,4)}, v{vQL}, {sQB} sc1\nglobal_load_dwordx4 {R(B2+4,4)}, v{vQC}, {sQB} sc1")
            e(f"global_load_dwordx4 {R(B2+8,4)}, {t(44)}, {sQB} sc1\nglobal_load_dwordx4 {R(B2+12,4)}, {t(45)}, {sQB} sc1")
            if cfg.wpos: walk()
            e("s_waitcnt vmcnt(5)")
        def second():
            e(f"v_mov_b32 {t(10)}, v{B2+16}")
            for i in range(8):
                e(f"v_mov_b32 {t(i)}, v{B2+i}\nv_mov_b32 {t(16+i)}, v{B2+8+i}")
        if cfg.q2:
            poll(issue, body, 1, onretry=onretry, first=first2, second=second)
        else:
            poll(issue, body, 1, onretry=onretry, heat=walk if cfg.wpos else None)
        e(f"""
        ds_write_b16 v{lQW}, {t(4)}
        ds_write_b16 v{lQW}, {t(5)} offset:640
        s_lshl_b32 s48, {sW}, 8
        s_add_u32 s48, s48, {L_CS}
        v_lshlrev_b32 {t(14)}, 2, v{vL}
        v_add_u32 {t(14)}, s48, {t(14)}
        ds_write_b32 {t(14)}, {t(20)}
        s_lshl_b32 s48, {sXCC}, 8
        v_cmp_ne_u32 vcc, s48, {t(10)}
        s_and_b32 s48, vcc_lo, 0x44444444
        s_cselect_b32 s48, 0, 1
        v_mov_b32 {t(14)}, s48
        ds_write_b32 {t(59)}, {t(14)} offset:16
        """)
        lsignal(2)
        g.stamp("q_in")
        e(RSTD)
        lwait(2, wt_copy)
        e(f"ds_read_b128 {R(T+52,4)}, {t(57)} offset:32")
        for h in range(2):
            for ks in range(4):
                e(f"ds_read_b128 {R(oK + (h*4+ks)*4, 4)}, {t(40+ks)} offset:{h*4096}")
        qk_softmax()
        lsignal(3)
        set_loc(52)
        l1, l2, l3 = g.L("Lt"), g.L("Lt"), g.L("Lt")
        e(f"s_cbranch_scc1 {l1}\n{l2}:")
        g.ool(lambda: (e(f"{l1}:"), wt_copy(), e(f"s_branch {l2}")))
        g.stamp("P_out")
        if cfg.q2: e("s_waitcnt vmcnt(0)")
        lwait(3)
        g.stamp("V_in")
        pv(OPS0, True)
        if cfg.xpos == 1: late_warm()
        lm, lm2 = g.L("Lm"), g.L("Lm")
        wave_if("eq", 1, lm)
        ml_store(True)
        e(f"{lm2}:")
        g.ool(lambda: (g.pad(), e(f"{lm}:"), wave_if("eq", 2, lm2), oflag(0), e(f"s_branch {lm2}")))

    def late_warm():
        l1 = g.L("Lx")
        e(f"""
        s_sub_u32 s48, {sW}, 1
        s_cmp_le_u32 s48, 1
        s_cbranch_scc1 {l1}
        s_mov_b32 s42, 0x01010101
        s_mov_b32 s43, 0x01010101
        s_mov_b64 exec, s[42:43]
        global_load_dword {t(63)}, v{vJ}, {sWS}
        s_mov_b64 exec, -1
        {l1}:
        """)

    C512 = hex(f2u(1.0/512))
    def program(role):
        g.nst = 1 if cfg.stamps else 0
        g.npoll = 0
        for L in range(2):
            g.fine_on = (L == 1 and cfg.fine == 1)
            if L == 0:
                if role == 0: front_role0()
                else: front_loader()
                g.stamp("O_pub")
                e(f"""
                s_lshr_b32 s48, {sG}, 2
                s_xor_b32 s48, s48, {cfg.selx}
                s_lshl_b32 s88, s48, 13
                v_add_u32 v{vXG}, s88, v{vXG}
                v_add_u32 v{vHNL}, s88, v{vHNL}
                s_setprio 1
                s_waitcnt vmcnt(0)
                s_barrier
                """)
            else:
                g.stamp("A_in")
                e(f"ds_write_b16 v{lXW}, {t(14)}\nv_lshlrev_b32 v{vXR}, 16, {t(14)}")
                tags()
                if role == 0:
                    seg([], lambda: tile_gemv(L, oWQ, vAP, sQB, 0x8000, False, None), "A_pub")
                else:
                    seg([(WEQ(7), None, lambda: gram(vAS, sQB, False)),
                         (WEQ(6), lambda: gprep(3), lambda: gflag(cfg.dfq))], None, "A_pub")
                def issue():
                    e(f"global_load_dword {t(10)}, v{vQST}, {sQB} sc1\nglobal_load_dwordx4 {R(T,4)}, v{vQL}, {sQB} sc1\nv_mov_b32 {t(12)}, {C512}")
                def body():
                    e(f"v_xor_b32 {t(10)}, v{vTAG}, {t(10)}")
                    xor4(T)
                    e(f"v_add_f32_dpp {t(11)}, {t(10)}, {t(10)} row_ror:4 {DPP}")
                    e(f"v_or3_b32 {t(8)}, {t(0)}, {t(1)}, {t(2)}\nv_or3_b32 {t(8)}, {t(8)}, {t(3)}, {t(10)}")
                    e(f"v_add_f32_dpp {t(11)}, {t(11)}, {t(11)} row_ror:8 {DPP}")
                    swapred(T, BYTECHK(t(8)) + f"\nv_mul_f32_dpp {t(13)}, {t(11)}, {t(12)} row_newbcast:1 {DPP}", "")
                    e(f"v_fma_f32 {t(0)}, -{t(13)}, v{vCS}, {t(0)}\nv_cvt_pk_bf16_f32 {t(4)}, {t(0)}, {t(0)}")
                poll(issue, body, 0, heat=(lambda: heat_w(2, 0, cfg.hq)) if role == 0 else None)
                e(f"ds_write_b16 v{lQW}, {t(4)}")
                g.stamp("q_in")
                if role == 0: e(RSTD.replace(f"v_mul_f32 {t(12)}, s64, {t(12)}", f"v_mul_f32_dpp {t(12)}, {t(11)}, {t(12)} row_newbcast:0 {DPP}"))
                g.fs("q<")
                e("s_waitcnt lgkmcnt(0)\ns_barrier")
                g.fs("qb")
                if role == 0: qk_softmax()
                else: heat_w(7, 0, cfg.hk)
                g.stamp("P_out")
                g.stamp("V_in")
                if role == 1:
                    seg([], lambda: pv(OPS1, False), "O_pub")
                else:
                    seg([(WEQ(1), None, lambda: ml_store(False)),
                         (WEQ(2), lambda: gprep(4, True), lambda: gflag(cfg.dfo))], lambda: heat_w(0, 0, cfg.hp), "O_pub")
            if cfg.fine == 2:
                g.fine_on = (L == 0)
                g.fs("ml")
            g.stamp("ml_in")
            def issue():
                ml_issue()
                e(f"global_load_dwordx4 {R(T,4)}, v{vOL}, {sWS} sc1\nglobal_load_dwordx4 {R(T+4,4)}, v{vOL}, {sWS} offset:1024 sc1")
            rest = [(k, c) for k in "12" if k not in ORDERS[cfg.order] for c in range(2)] if (L == 0 and role == 1) else []
            NR = len(rest)
            def first():
                issue()
                if rest:
                    delay(cfg.drest)
                    for it in rest: e(item(*it))
                if L == 0:
                    tr_wo()
                    e("s_waitcnt lgkmcnt(0)")
                elif role == 0: heat_w(2, 0, cfg.ho)
            def body():
                e(f"""
                s_waitcnt vmcnt({2 + NR})
                v_max_f32_dpp {t(9)}, {t(8)}, {t(8)} row_ror:1 {DPP}
                v_max_u32 {t(14)}, {t(8)}, {t(13)}
                s_nop 0
                v_max_f32_dpp {t(9)}, {t(9)}, {t(9)} row_ror:2 {DPP}
                s_waitcnt vmcnt({1 + NR})
                {MFMA} {R(T+16,4)}, {R(T,4)}, {R(oWO,4)}, 0
                v_max_f32_dpp {t(9)}, {t(9)}, {t(9)} row_ror:4 {DPP}
                v_sub_f32 {t(12)}, {t(8)}, {t(9)}
                {MFMA} {R(T+20,4)}, {R(T,4)}, {R(oWO+8,4)}, 0
                v_exp_f32 {t(12)}, {t(12)}
                s_waitcnt vmcnt({NR})
                {MFMA} {R(T+16,4)}, {R(T+4,4)}, {R(oWO+4,4)}, {R(T+16,4)}
                v_mul_f32 {t(9)}, {t(12)}, {t(13)}
                v_max3_u32 {t(10)}, {t(0)}, {t(1)}, {t(2)}
                {MFMA} {R(T+20,4)}, {R(T+4,4)}, {R(oWO+12,4)}, {R(T+20,4)}
                v_add_f32_dpp {t(9)}, {t(9)}, {t(9)} row_ror:1 {DPP}
                v_max3_u32 {t(11)}, {t(3)}, {t(4)}, {t(5)}
                v_max3_u32 {t(10)}, {t(10)}, {t(6)}, {t(7)}
                v_add_f32_dpp {t(9)}, {t(9)}, {t(9)} row_ror:2 {DPP}
                v_max3_u32 {t(10)}, {t(10)}, {t(11)}, {t(14)}
                v_cmp_eq_u32 vcc, -1, {t(10)}
                v_add_f32_dpp {t(9)}, {t(9)}, {t(9)} row_ror:4 {DPP}
                v_mul_f32_dpp {t(10)}, {t(12)}, {t(16)} row_newbcast:0 {DPP}
                v_rcp_f32 {t(9)}, {t(9)}
                """)
            poll(issue, body, 0, first=first)
            hint_send(2 * L, role)
            for r in range(1, 4):
                e(f"v_fmac_f32_dpp {t(10)}, {t(12)}, {t(16+r)} row_newbcast:{r} {DPP}")
            e(f"v_mul_f32_dpp {t(11)}, {t(12)}, {t(20)} row_newbcast:0 {DPP}")
            e(f"v_mul_f32 {t(10)}, {t(10)}, {t(9)}")
            e(f"v_fmac_f32_dpp {t(11)}, {t(12)}, {t(21)} row_newbcast:1 {DPP}")
            e(f"ds_write_b32 v{lCW}, {t(10)}")
            for r in range(2, 4):
                e(f"v_fmac_f32_dpp {t(11)}, {t(12)}, {t(20+r)} row_newbcast:{r} {DPP}")
            e(f"v_mul_f32 {t(11)}, {t(11)}, {t(9)}")
            e(f"ds_write_b32 v{lCW}, {t(11)} offset:{32*80}")
            if L == 0 and role == 0: late_warm()
            g.stamp("O_in")
            def cfin():
                for i in range(4):
                    e(f"ds_read_b128 {R(T+i*4,4)}, v{lCR} offset:{i*16}")
                e("s_waitcnt lgkmcnt(2)")
                e(f"v_pk_add_f32 {R(T,2)}, {R(T,2)}, {R(T+4,2)}\nv_pk_add_f32 {R(T+2,2)}, {R(T+2,2)}, {R(T+6,2)}")
                e(f"v_pk_add_f32 {R(T,2)}, {R(T,2)}, {R(T+2,2)}")
                e("s_waitcnt lgkmcnt(0)")
                e(f"""
                v_pk_add_f32 {R(T+8,2)}, {R(T+8,2)}, {R(T+12,2)}
                v_pk_add_f32 {R(T+10,2)}, {R(T+10,2)}, {R(T+14,2)}
                v_pk_add_f32 {R(T,2)}, {R(T,2)}, {R(T+8,2)}
                v_pk_add_f32 {R(T,2)}, {R(T,2)}, {R(T+10,2)}
                v_add_f32 {t(0)}, {t(0)}, {t(1)}
                v_and_or_b32 {t(0)}, {t(0)}, {sMASK}, v{vTAG}
                global_store_dword v{vCP}, {t(0)}, {sXI[2*L]} sc1
                global_store_dword v{vCP2}, {t(0)}, {sXI[2*L]} sc1
                """)
            def adv():
                if L == 0:
                    e(f"v_add_u32 v{vOL}, {O_LS}, v{vOL}\nv_add_u32 v{vML}, {ML_LS}, v{vML}")
                    e(f"v_add_u32 v{vMP}, {ML_LS}, v{vMP}" if role == 0 else f"v_add_u32 v{vOP}, {O_LS}, v{vOP}")
            def r1_reads():
                adv()
                tr_v(OPS1)
                if "1" in ORDERS[cfg.order]: tr_w1()
                e(f"""
                v_mov_b32 {t(59)}, {L_FL + 32}
                ds_read_b128 {R(T+52,4)}, {t(59)}
                s_lshl_b32 s48, {sJ}, 8
                s_add_u32 s48, s48, {L_CS}
                v_lshlrev_b32 {t(59)}, 2, v{vL}
                v_add_u32 {t(59)}, s48, {t(59)}
                ds_read_b32 v{vCS}, {t(59)}
                s_waitcnt lgkmcnt(0)
                """)
                set_loc(52)
            if role == 0:
                sw = selwait if L == 0 else (lambda: None)
                paths = [(WEQ(0), None, lambda: (cfin(), adv(), sw())),
                         (WEQ(3), lambda: (adv(), hprep()), lambda: (delay(cfg.dhx), hint_wait(2 * L, False), delay(cfg.dx)), sw)]
                if L == 0 and cfg.probe == 2: paths.append((WEQ(1), None, lambda: (probe1(), adv(), sw())))
                seg(paths, lambda: (adv(), sw()), "C_pub")
            elif L == 0:
                seg([(WEQ(7), None, lambda: (delay(cfg.dr1), r1_reads(), selwait()))],
                    lambda: (delay(cfg.dr1), w2_rest() if cfg.w2pos == 2 else None, r1_reads(), selwait()), "C_pub")
            else:
                seg([], None, "C_pub")
            g.stamp("xh_in")
            xgather(2 * L, 0, role)
            e(f"ds_write_b16 v{lXW}, {t(14)}\nv_lshlrev_b32 v{vXR}, 16, {t(14)}")
            g.stamp("x_in")
            if role == 1:
                paths = [(f"s_lshr_b32 s48, {sW}, 1\ns_sub_u32 s48, s48, 2\ns_or_b32 s48, s48, s92\ns_cmp_eq_u32 s48, 0", None,
                          lambda: tile_gemv(L, oW1, vDP, sWS, 0x4000, False, tr_w1 if (L == 0 and "1" not in ORDERS[cfg.order]) else None))]
                if L == 0 and cfg.probe == 1: paths.append((WEQ(7), None, lambda: probe("s84", 0)))
                seg(paths, None, "D_pub")
            else:
                seg([(f"s_xor_b32 s48, {sW}, 2\ns_or_b32 s48, s48, s92\ns_cmp_eq_u32 s48, 0", None, lambda: gram(vDS, sWS, False)),
                     (WEQ(3), lambda: gprep(2 + 3 * L), lambda: gflag(cfg.dfh + ((5 if "1" in ORDERS[cfg.order] else 30) if L == 0 else 0)))], None, "D_pub")
            le = g.L("Le")
            le7 = g.L("Le")
            if role == 1:
                wave_if("lt", 7, le7)
                def o():
                    g.pad()
                    e(f"{le7}:")
                    if L == 0 and cfg.probe == 1:
                        probe("s85", 0x2000)
                        e(f"""
                        s_cmp_lt_u32 s85, s84
                        s_cselect_b32 s48, 0x2000, 0
                        v_mov_b32 {t(0)}, s48
                        v_mov_b32 {t(1)}, {L_FL + 48}
                        ds_write_b32 {t(1)}, {t(0)}
                        s_sub_u32 s48, s48, s88
                        v_add_u32 v{vXG}, s48, v{vXG}
                        v_add_u32 v{vHNL}, s48, v{vHNL}
                        """)
                        if cfg.stamps: e(f"v_writelane_b32 v{g.vst}, s84, 61\nv_writelane_b32 v{g.vst}, s85, 62")
                    elif cfg.hh:
                        delay(25); heat(cfg.hh)
                    e(f"s_branch {le}")
                g.ool(o)
            def issue():
                e(f"global_load_dword {t(10)}, v{vHST}, {sWS} sc1\nglobal_load_dword {t(0)}, v{vHL}, {sWS} sc1\nglobal_load_dword {t(1)}, v{vHL}, {sWS} offset:256 sc1")
                if L == 0:
                    e(f"global_load_dword {t(2)}, v{vHC}, {sWS} sc1\nglobal_load_dword {t(3)}, v{vHC}, {sWS} offset:256 sc1")
                e(f"v_mov_b32 {t(12)}, {C512}")
            def body():
                e(f"""
                v_xor_b32 {t(10)}, v{vTAG}, {t(10)}
                v_xor_b32 {t(0)}, v{vTAG}, {t(0)}
                v_xor_b32 {t(1)}, v{vTAG}, {t(1)}
                v_add_f32_dpp {t(11)}, {t(10)}, {t(10)} row_ror:4 {DPP}
                v_add_f32 {t(4)}, {t(0)}, {t(1)}
                v_add_f32 {t(5)}, {t(0)}, {t(1)}
                v_add_f32_dpp {t(11)}, {t(11)}, {t(11)} row_ror:8 {DPP}
                v_or3_b32 {t(8)}, {t(0)}, {t(1)}, {t(10)}
                v_permlane32_swap_b32 {t(4)}, {t(5)}
                """)
                if L == 0:
                    e(f"""
                    v_xor_b32 {t(2)}, v{vTAG}, {t(2)}
                    v_xor_b32 {t(3)}, v{vTAG}, {t(3)}
                    v_add_f32 {t(6)}, {t(2)}, {t(3)}
                    v_add_f32 {t(7)}, {t(2)}, {t(3)}
                    v_or3_b32 {t(8)}, {t(8)}, {t(2)}, {t(3)}
                    s_nop 0
                    v_permlane32_swap_b32 {t(6)}, {t(7)}
                    v_add_f32 v{vCS1}, {t(6)}, {t(7)}
                    """)
                e(f"""
                v_mul_f32_dpp {t(13)}, {t(11)}, {t(12)} row_newbcast:1 {DPP}
                v_mul_f32_dpp {t(12)}, {t(11)}, {t(12)} row_newbcast:0 {DPP}
                {BYTECHK(t(8))}
                v_fma_f32 {t(12)}, -{t(13)}, {t(13)}, {t(12)}
                v_add_f32 {t(0)}, {t(4)}, {t(5)}
                v_max_f32 {t(12)}, 0, {t(12)}
                v_add_f32 {t(12)}, {hex(f2u(1e-5))}, {t(12)}
                v_rsq_f32 {t(12)}, {t(12)}
                v_fma_f32 {t(0)}, -{t(13)}, v{vCS1}, {t(0)}
                """)
            def first():
                issue()
                if L == 0 and role == 0:
                    tr128_addr(L_W2)
                    tr128(oW2, 7)
                e("s_waitcnt vmcnt(0)")
            poll(issue, body, 0, first=first)
            hint_send(2 * L + 1, role)
            e(f"""
            v_mul_f32 {t(0)}, {t(0)}, {t(12)}
            v_mul_f32 {t(1)}, {hex(f2u(-math.log2(math.e)))}, {t(0)}
            v_exp_f32 {t(1)}, {t(1)}
            s_nop 0
            v_add_f32 {t(1)}, 1.0, {t(1)}
            v_rcp_f32 {t(1)}, {t(1)}
            s_nop 0
            v_mul_f32 {t(0)}, {t(0)}, {t(1)}
            v_cvt_pk_bf16_f32 {t(0)}, {t(0)}, {t(0)}
            ds_write_b16 v{lHW}, {t(0)}
            """)
            e(f"{le}:")
            g.stamp("h_in")
            lf = f"L_fin{role}"
            FIN = (lambda: e(f"s_cmp_lg_u32 {sG}, {sLO}\ns_cbranch_scc1 {lf}")) if L == 1 else None
            def efin():
                for ks in range(7):
                    e(f"ds_read_b128 {R(T+ks*4,4)}, v{lHR} offset:{ks*64}")
                for ks in range(7):
                    e(f"s_waitcnt lgkmcnt({6-ks})")
                    e(f"{MFMA} {R(T+32,4)}, {R(T+ks*4,4)}, {R(oW2+ks*4,4)}, {'0' if ks == 0 else R(T+32,4)}")
                e(f"""
                s_nop 6
                s_mov_b64 exec, 0xffffffff
                v_and_or_b32 {t(32)}, {t(32)}, {sMASK}, v{vTAG}
                global_store_dword v{vEP}, {t(32)}, {sXI[2*L+1]} sc1
                s_mov_b64 exec, -1
                """)
                if L == 0: fin_sel()
            ref = L == 0 and cfg.probe == 2 and cfg.refine
            def fin_sel():
                apply_sel()
                if ref: selwait(1)
            if role == 0:
                seg([], efin, "E_pub", post=FIN)
            else:
                cond = WEQ(7) if L == 0 else f"s_xor_b32 s48, {sG}, {sLO}\ns_xor_b32 s49, {sW}, 7\ns_or_b32 s48, s48, s49\ns_cmp_eq_u32 s48, 0"
                paths = [(cond, hprep, lambda: (delay(cfg.dhy), hint_wait(2 * L + 1, False), delay(cfg.dy)), lambda: selwait(1) if ref else None)]
                if ref: paths.append((WEQ(6), None, lambda: (probe2(), selwait(1))))
                seg(paths, fin_sel if L == 0 else None, "E_pub", post=FIN)
            if L == 0: g.stamp("yh_in")
            else: e(f"s_cmp_lg_u32 {sW}, {sLO}\ns_cbranch_scc1 {lf}")
            xgather(2 * L + 1, 0, role)
        e(f"global_store_short v{vXO}, {t(14)}, {sOUT}")
        if role == 0:
            e(f"""
            s_cmp_lg_u32 {sR}, 0
            s_cbranch_scc1 L_fin0
            s_mov_b64 exec, 1
            global_store_dword v{vZERO}, v{vTV}, {sWS} offset:{W_EPOCH}
            """)
        e(f"L_fin{role}:")
        if cfg.stamps:
            e("s_mov_b64 exec, -1")
            g.stamp("end"); g.stamp()
            e(f"""
            s_lshl_b32 s48, s2, 3
            s_add_u32 s48, s48, {sW}
            s_lshl_b32 s48, s48, 8
            s_add_u32 s48, s48, {W_STAMP}
            v_lshlrev_b32 {t(0)}, 2, v{vL}
            v_add_u32 {t(0)}, s48, {t(0)}
            v_writelane_b32 v{g.vst}, {sLOC}, 63
            v_writelane_b32 v{g.vst}, s100, 60
            global_store_dword {t(0)}, v{g.vst}, {sWS}
            v_add_u32 {t(0)}, 0x100000, {t(0)}
            global_store_dword {t(0)}, v{vst2}, {sWS}
            """)
        if cfg.fixdur:
            if cfg.fixwg >= 0: e(f"s_cmp_lg_u32 s2, {cfg.fixwg}\ns_cbranch_scc1 L_end")
            e(f"""
            L_fix{role}:
            s_memrealtime s[94:95]
            s_waitcnt lgkmcnt(0)
            s_sub_u32 s94, s94, s98
            s_cmp_lt_u32 s94, {cfg.fixdur}
            s_cbranch_scc1 L_fix{role}
            """)
        e("s_endpgm")

    program(0)
    program(1)
    if HEAT: g.ool(heat_block)
    def fixpads(txt):
        n = len(g.pads)
        for k in reversed(range(n)):
            txt = txt.replace(f"PADJ{k}\n", (f"s_branch L_pad{k+4}" if k + 4 < n else "s_setpc_b64 s[94:95]") + "\n")
        return txt
    nv = (g.nv + 7) // 8 * 8
    src = HEADER + f"; @launch grid=(256,1,1) block=(512,1,1) lds={LDS_BYTES}\n"
    if cfg.stamps: src += "; stamps: " + " ".join(g.names) + "\n"
    if cfg.fine: src += "; fine: " + " ".join(g.fnames) + "\n"
    src += f""".amdgcn_target "amdgcn-amd-amdhsa--gfx950"
.text
.globl {NAME}_kernel
.p2align 8
.type {NAME}_kernel,@function
{NAME}_kernel:
""" + fixpads("\n".join(g.o + g.tail)) + f"""
L_end:
s_endpgm
L_pad:
.fill (33024 - (L_pad - {NAME}_kernel)) / 4, 4, 0xbf810000
.section .rodata,"a"
.p2align 6
.amdhsa_kernel {NAME}_kernel
  .amdhsa_next_free_vgpr {nv}
  .amdhsa_next_free_sgpr 102
  .amdhsa_accum_offset {nv}
  .amdhsa_group_segment_fixed_size 0
  .amdhsa_kernarg_size 88
  .amdhsa_user_sgpr_count 2
  .amdhsa_user_sgpr_kernarg_segment_ptr 1
  .amdhsa_system_sgpr_workgroup_id_x 1
.end_amdhsa_kernel
"""
    return src, g

if __name__ == "__main__":
    cfg = Cfg()
    out = "cdna_kernels/%s.s" % NAME
    for a in sys.argv[1:]:
        k, v = a.split("=")
        if k == "out": out = v
        else: setattr(cfg, k, type(getattr(cfg, k))(int(v)))
    src, g = gen(cfg)
    open(out, "w").write(src)
    print("vgprs", g.nv, "lines", len(g.o) + len(g.tail), "stamps", g.nst, "polls", g.npoll)
```

```python
import sys, math, struct

NAME = "interleave_layers__sliding_block_cached__dense_activation_silu__decode"
HEADER = open("cdna_kernels/%s.s.ref" % NAME).read().split("; Override launch")[0]

def f2u(x): return struct.unpack("<I", struct.pack("<f", x))[0]

class Cfg:
    stamps = 0
    lite = 0
    osc = 0
    epos = 1
    wb = 0
    nont = 0
    fine = 0
    fixdur = 0
    fixwg = -1
    fixat = 0
    force_sc1 = False
    rot = 1
    hgap = 35; hwx = 4; hwy = 4; hpre = 0; hdx = 40; hdy = 20; hpoll = 0; bx = 0; by = 0; bz = 0; fgap = 14; fdep = 4; fpre = 0; fsp = 2; lq = 0; lo_ = 0; lh = 0; hq = 0; ho = 0; hx0 = 95; hx = 0; hh = 0; hk = 0; hp = 0; pads = 1; hsp = 1; fing = 1
    hnt = 0; o0nt = 0; wnt = 0
    w0 = 1; w1_ = 1
    xpos = 0; w2pos = 2; prom = 0; hold = 9; early = 1; chunk = 12
    order = 10
    win = 5
    hitw = 0
    xpre = 1
    wpos = 0
    q2 = 0
    dq0 = 1
    dsf = 3
    dfq = 0; dfo = 50; dfh = 0
    dfp = 20
    dhx = 40; dhy = 40
    dx = 0; dy = 0
    retry_x = 2
    probe = 2
    thr = 480
    refine = 1
    dr1 = 60
    dx0 = 0
    hfar = 0; hfx = 40; hfy = 0
    drest = 70
    selx = 0
    ctouch = 1
    nloc = 8
    prio = 1
    winv = 5; vfrom = 4
    wtail = 5
    ldbg = 0
    noq = 0
    vsig = 4
    setpos = 99

L_WQ, L_V, L_WO, L_W1, L_W2 = 0, 16384, 49152, 81920, 90112
L_K = 118784
L_CR = L_K
L_HS = L_K + 5120
L_XS = L_K + 32768
L_ONES = L_XS + 1280
L_QS = L_ONES + 320
L_PS = L_QS + 1280
L_MS = L_PS + 4096
L_LS = L_MS + 64
L_FL = L_LS + 256
L_CS = L_FL + 64
L_END = L_CS + 1024
LDS_BYTES = 160256
assert L_END <= LDS_BYTES
W_EPOCH = 0
W_ML = 0x002000
W_IND = 0x008000
W_X0 = 0x020000
X_STRIDE = 0x24000
X_HINT = 0x20000
W_PROBE = 0x010000
W_HP = 0x0C0000
W_QP = 0x100000
NREP = 8
W_O = 0x180000
O_LS = 0x40000
ML_LS = 0x2000
QPX = 0x200000
TAGC = 0x3b1d5f27
W_STAMP = 0x800000

class G:
    def __init__(self, cfg):
        self.cfg = cfg
        self.o = []
        self.tail = []
        self.cur = self.o
        self.nv = 0
        self.lab = 0
        self.nst = 0
        self.npoll = 0
        self.names = []
        self.npt = 0
        self.fixname = None
        self.fnames = []
        self.pads = []
        self.fine_on = False
    def e(self, s):
        for ln in s.strip("\n").split("\n"):
            ln = ln.strip()
            if not ln: continue
            self.cur.append(ln if ln.endswith(":") else "    " + ln)
    def ool(self, fn):
        save = self.cur
        self.cur = []
        fn()
        self.tail += self.cur
        self.cur = save
    def v(self, n=1, al=1):
        if n >= 2: al = max(al, 2)
        self.nv = (self.nv + al - 1) // al * al
        r = self.nv
        self.nv += n
        return r
    def L(self, p="L"):
        self.lab += 1
        return f"{p}_{self.lab}"
    def stamp(self, name=""):
        self.npt += 1
        if self.cfg.fixat and self.npt == self.cfg.fixat:
            self.e("s_memrealtime s[98:99]"); self.fixname = name
        if not self.cfg.stamps: return
        if self.cfg.lite and name not in ("start", "ml_in", "end", ""): return
        i = self.nst
        self.nst += 1
        if len(self.names) <= i: self.names.append(name)
        assert self.names[i] == name, (i, name, self.names[i])
        cur = 96 + 2 * (i & 1)
        prev = 96 + 2 * ((i + 1) & 1)
        if i > 0:
            self.e(f"s_waitcnt lgkmcnt(0)\nv_writelane_b32 v{self.vst}, s{prev}, {i-1}")
        self.e(f"s_memrealtime s[{cur}:{cur+1}]")

    def pad(self):
        if not self.cfg.pads: return
        k = len(self.pads)
        self.pads.append(k)
        self.e(f"L_pad{k}:\nPADJ{k}")
    def fs(self, name):
        if not (self.cfg.fine and self.fine_on): return
        if name not in self.fnames: self.fnames.append(name)
        i = self.fnames.index(name)
        self.e(f"s_memtime s[{100}:{101}]\ns_waitcnt lgkmcnt(0)\nv_writelane_b32 v{self.vst2}, s100, {i}")

def R(a, n): return f"v[{a}:{a+n-1}]"
DPP = "row_mask:0xf bank_mask:0xf"
MFMA = "v_mfma_f32_16x16x32_bf16"

def gen(cfg):
    g = G(cfg)
    e = g.e
    sX, sK, sV, sWQ, sWO, sW1, sW2, sOUT, sWS = "s[4:5]", "s[6:7]", "s[8:9]", "s[10:11]", "s[12:13]", "s[16:17]", "s[18:19]", "s[20:21]", "s[24:25]"
    sG, sR, sHI, sLO, sW, sT = "s26", "s27", "s28", "s29", "s30", "s31"
    sTB = ["s32", "s33", "s34", "s35"]
    sMASK, sLOC = "s36", "s37"
    sQB, sQX = "s[38:39]", "s[40:41]"
    sCNT, sXCC = "s46", "s47"
    sWIN, sJ, sW2K, sVL = "s50", "s51", "s52", "s53"
    sG8, sBP, sG32, sSL, sHI64, sR15, sWH, sW1b = "s54", "s55", "s56", "s57", "s59", "s60", "s61", "s63"
    sXI = ["s[68:69]", "s[70:71]", "s[72:73]", "s[74:75]"]
    sM20 = "s[14:15]"
    g.v(1)
    vL = g.v(); vA = g.v(); vBQ = g.v(); vU = g.v(); vI = g.v()
    vTAG = g.v(); vZERO = g.v(); vTV = g.v(); vHN = g.v()
    g.vst = g.v(); vst2 = g.v(); g.vst2 = vst2
    vXG = g.v(); vHNL = g.v(); vQL = g.v(); vQC = g.v(); vQST = g.v(); vHL = g.v(); vHN2 = g.v(); vHC = g.v(); vHST = g.v(); vOL = g.v(); vML = g.v()
    lXW = g.v(); lXR = g.v(); lQW = g.v(); lCW = g.v(); lHW = g.v(); lMR = g.v(); aW2 = g.v(); vJ = g.v()
    rb = g.v(12)
    lQR, lPW, lMW, vAP, vDS, vMP, vCP, vCP2, lCR, vEP, lHR = [rb + i for i in range(11)]
    vHNS = rb + 11
    vVA, vKA, vDP, aWO, aW1 = [rb + i for i in range(5)]
    lLW = g.v(); vAS = g.v(); lP = g.v(); vOP = g.v(); lTV = g.v()
    vFS = g.v(); vFL = g.v(); vHN3 = g.v(); vHN4 = g.v()
    vXR = g.v(2); vCS = g.v(); vCS1 = g.v(); vSC = g.v(); vXO = g.v()
    ob = g.v(76, 4)
    oK, oW2, oWQ = ob, ob + 32, ob + 60
    oV, oW1 = ob, ob + 32
    oWO = g.v(16, 4)
    T = g.v(64, 4)
    t = lambda i: f"v{T+i}"

    def delay(n):
        while n > 0:
            k = min(n, 16)
            e(f"s_nop {k-1}")
            n -= k

    HEATMAX = 64
    HEAT = cfg.hq or cfg.ho or cfg.hx or cfg.hh or cfg.hk or cfg.hp
    def heat(n):
        if n: e(f"s_setprio 0\ns_call_b64 s[94:95], L_heat{n}\ns_setprio 1")
    def heat_w(w, idle, n):
        if not n: return
        a, b = g.L("Lz"), g.L("Lz")
        e(f"s_cmp_eq_u32 {sW}, {w}\ns_cbranch_scc1 {a}\n{b}:")
        g.ool(lambda: (g.pad(), e(f"{a}:"), delay(idle), heat(n), e(f"s_branch {b}")))
    def heat_block():
        for n in range(HEATMAX, 0, -1):
            e(f"L_heat{n}:\nv_mov_b32 {t(62)}, v{vL}\n" + ("s_nop 0" if cfg.hsp else f"v_mov_b32 {t(62)}, v{vL}"))
        e("s_setpc_b64 s[94:95]")

    def xor4(base):
        for i in range(4):
            e(f"v_xor_b32 v{base+i}, {sTB[i]}, v{base+i}")
    BYTECHK = lambda acc: f"v_cmp_ne_u32_sdwa vcc, {acc}, v{vZERO} src0_sel:BYTE_0 src1_sel:DWORD"

    def poll(issue, body, retry=0, first=None, onretry=None, heat=None, second=None):
        top, rt, dn = g.L("Lp"), g.L("Lr"), g.L("Ld")
        e(f"s_mov_b32 {sCNT}, 0")
        if first: first()
        else:
            issue()
            if heat: heat()
            e("s_waitcnt vmcnt(0)")
        e(f"{top}:")
        if g.fine_on:
            g.npf = getattr(g, "npf", 0)
        g.fs("ld" + str(g.npoll))
        body()
        e(f"s_cbranch_vccnz {rt}\n{dn}:")
        def r():
            e(f"{rt}:\ns_add_u32 {sCNT}, {sCNT}, 1\ns_cmp_gt_u32 {sCNT}, 0x8000\ns_cbranch_scc1 {dn}")
            if second:
                l2 = g.L("Lr")
                e(f"s_cmp_lg_u32 {sCNT}, 1\ns_cbranch_scc1 {l2}\ns_waitcnt vmcnt(0)")
                second()
                e(f"s_branch {top}\n{l2}:")
            if onretry: onretry()
            if retry: e(f"s_sleep {retry}")
            issue()
            e(f"s_waitcnt vmcnt(0)\ns_branch {top}")
        g.ool(r)
        if cfg.stamps:
            e(f"v_writelane_b32 v{g.vst}, {sCNT}, {40 + g.npoll}")
            g.npoll += 1

    LOCCMP = f"s_cmp_eq_u32 {sLOC}, 0"
    def lstore(ins):
        if cfg.force_sc1:
            for s in ins: e(s + " sc1" if s.startswith("global") else s)
            return
        a, b = g.L("Ls"), g.L("Ls")
        e(f"s_cbranch_scc1 {a}")
        for s in ins: e(s)
        e(f"{b}:")
        def r():
            e(f"{a}:")
            for s in ins: e(s + " sc1" if s.startswith("global") else s)
            e(f"s_branch {b}")
        g.ool(r)

    def wave_if(cond, imm, label):
        inv = {"lt": "ge", "ge": "lt", "eq": "lg", "lg": "eq"}[cond]
        e(f"s_cmp_{inv}_u32 {sW}, {imm}\ns_cbranch_scc1 {label}")

    e(f"""
    s_cmp_ge_u32 s2, 256
    s_cbranch_scc1 L_end
    s_load_dwordx16 s[4:19], s[0:1], 0
    s_load_dwordx4 s[20:23], s[0:1], 64
    s_load_dwordx2 s[24:25], s[0:1], 80
    """)
    if cfg.ctouch:
        e(f"""
        s_getpc_b64 s[44:45]
        s_lshr_b32 s48, s2, 3
        s_lshl_b32 s48, s48, 10
        v_lshlrev_b32 {t(62)}, 7, v0
        v_add_u32 {t(62)}, s48, {t(62)}
        v_cmp_gt_u32 vcc, 8, v0
        s_and_saveexec_b64 s[42:43], vcc
        s_cbranch_execz L_noct
        global_load_dword {t(63)}, {t(62)}, s[44:45]
        L_noct:
        s_mov_b64 exec, -1
        """)
    if cfg.fixdur: e("s_memrealtime s[98:99]")
    if cfg.stamps: e(f"v_mov_b32 v{g.vst}, 0\nv_mov_b32 v{vst2}, 0")
    g.stamp("start")
    e(f"""
    v_lshrrev_b32 {t(0)}, 6, v0
    v_and_b32 v{vL}, 63, v0
    s_and_b32 {sG}, s2, 7
    v_readfirstlane_b32 {sW}, {t(0)}
    s_lshr_b32 {sR}, s2, 3
    s_lshr_b32 {sHI}, {sR}, 3
    s_and_b32 {sLO}, {sR}, 7
    v_lshrrev_b32 v{vU}, 4, v{vL}
    s_and_b32 {sJ}, {sW}, 3
    s_xor_b32 {sW}, {sW}, 4
    s_cmp_lt_u32 {sW}, 4
    s_cbranch_scc1 L_role0
    v_lshrrev_b32 {t(1)}, 3, v{vL}
    v_and_b32 {t(2)}, 7, v{vL}
    v_lshlrev_b32 {t(3)}, 1, v{vU}
    v_xor_b32 {t(2)}, {t(2)}, {t(3)}
    v_lshlrev_b32 {t(2)}, 4, {t(2)}
    s_lshl_b32 s48, {sHI}, 20
    s_lshl_b32 s49, {sJ}, 16
    s_add_u32 s48, s48, s49
    s_lshl_b32 s49, {sG}, 10
    s_add_u32 s48, s48, s49
    s_lshl_b32 s49, {sLO}, 7
    s_add_u32 s48, s48, s49
    v_lshl_add_u32 {t(4)}, {t(1)}, 13, {t(2)}
    v_add_u32 {t(4)}, s48, {t(4)}
    s_lshl_b32 {sVL}, {sJ}, 10
    s_mov_b32 m0, {sVL}
    s_waitcnt lgkmcnt(0)
    global_load_lds_dwordx4 {t(4)}, {sWQ} nt
    s_add_u32 m0, {sVL}, 4096
    v_add_u32 {t(4)}, 0x40000, {t(4)}
    global_load_lds_dwordx4 {t(4)}, {sWQ} nt
    s_add_u32 m0, {sVL}, 8192
    v_add_u32 {t(4)}, 0x40000, {t(4)}
    global_load_lds_dwordx4 {t(4)}, {sWQ} nt
    s_add_u32 m0, {sVL}, 12288
    v_add_u32 {t(4)}, 0x40000, {t(4)}
    global_load_lds_dwordx4 {t(4)}, {sWQ} nt
    {'s_memrealtime s[100:101]' if cfg.stamps else ''}
    s_branch L_role1
    """)
    assert L_WQ == 0

    def ids():
        e(f"""
        v_and_b32 v{vA}, 3, v{vL}
        v_bfe_u32 v{vBQ}, v{vL}, 2, 2
        s_lshr_b32 {sWH}, {sW}, 1
        s_and_b32 {sW1b}, {sW}, 1
        s_lshl_b32 s48, {sHI}, 8
        s_lshl_b32 s49, {sWH}, 10
        s_add_u32 s48, s48, s49
        s_lshl_b32 s49, {sW1b}, 7
        s_add_u32 s48, s48, s49
        v_and_b32 v{vXO}, 7, v{vL}
        v_lshlrev_b32 v{vXO}, 4, v{vXO}
        v_lshl_add_u32 v{vXO}, v{vU}, 2, v{vXO}
        v_add_u32 v{vXO}, s48, v{vXO}
        v_and_b32 v{vI}, 15, v{vL}
        s_lshl_b32 {sW2K}, {sW}, 11
        s_lshl_b32 {sG32}, {sG}, 5
        s_add_u32 {sSL}, {sG32}, {sR}
        """)
    def blkoff(dst, blk):
        if isinstance(blk, int):
            e(f"s_add_u32 {dst}, {sLO}, {blk if cfg.rot else 0}\ns_and_b32 {dst}, {dst}, 7\ns_lshl_b32 {dst}, {dst}, 12\ns_add_u32 {dst}, {dst}, {sWIN}")
            if blk: e(f"s_add_u32 {dst}, {dst}, {blk*32768}")
        else:
            e(f"s_add_u32 {dst}, {sLO}, {blk if cfg.rot else 0}\ns_and_b32 {dst}, {dst}, 7\ns_lshl_b32 {dst}, {dst}, 12\ns_add_u32 {dst}, {dst}, {sWIN}\ns_lshl_b32 s49, {blk}, 15\ns_add_u32 {dst}, {dst}, s49")

    def tags(first=False):
        e(f"""
        s_add_u32 {sT}, {sT}, {TAGC}
        s_min_u32 {sT}, {sT}, -2
        s_and_b32 s32, {sT}, 0xff
        s_bfe_u32 s33, {sT}, 0x80008
        s_bfe_u32 s34, {sT}, 0x80010
        s_lshr_b32 s35, {sT}, 24
        v_lshlrev_b32 {t(16)}, 3, v{vA}
        v_lshrrev_b32 v{vTAG}, {t(16)}, {sT}
        v_and_b32 v{vTAG}, 0xff, v{vTAG}
        v_mov_b32 v{vTV}, {sT}
        """)
        if first: e(f"s_mov_b32 s3, {sT}")

    def setup(role):
        a, b, c, d, f, h = t(40), t(41), t(42), t(43), t(44), t(45)
        e(f"""
        s_getreg_b32 {sXCC}, hwreg(HW_REG_XCC_ID, 0, 4)
        s_mov_b32 {sMASK}, 0xffffff00
        s_mov_b32 {sLOC}, 0
        s_mov_b64 {sQB}, {sWS}
        s_add_u32 s40, s24, {QPX}
        s_addc_u32 s41, s25, 0
        s_movk_i32 s62, 320
        s_mul_i32 s48, {sWH}, 320
        s_lshl_b32 s49, {sW1b}, 7
        s_add_u32 s48, s48, s49
        s_add_u32 s48, s48, {L_XS}
        v_bfe_u32 {a}, v{vL}, 2, 1
        v_lshlrev_b32 v{lXW}, 6, {a}
        v_and_b32 {a}, 1, v{vL}
        v_lshl_add_u32 v{lXW}, {a}, 5, v{lXW}
        v_lshrrev_b32 {a}, 5, v{vL}
        v_lshl_add_u32 v{lXW}, {a}, 4, v{lXW}
        v_bfe_u32 {a}, v{vL}, 1, 1
        v_lshl_add_u32 v{lXW}, {a}, 3, v{lXW}
        v_bfe_u32 {a}, v{vL}, 4, 1
        v_lshl_add_u32 v{lXW}, {a}, 2, v{lXW}
        v_add_u32 v{lXW}, s48, v{lXW}
        v_lshlrev_b32 {b}, 4, v{vU}
        v_mad_u32_u24 {h}, v{vBQ}, s62, {b}
        v_add_u32 v{lXR}, {L_XS}, {h}
        v_mov_b32 {c}, {L_ONES}
        v_cmp_ne_u32 vcc, 0, v{vA}
        s_lshl_b32 s66, {sG}, 16
        s_add_u32 s66, s66, {W_QP}
        v_cndmask_b32 v{lXR}, v{lXR}, {c}, vcc
        s_lshl_b32 s67, {sG}, 15
        s_add_u32 s67, s67, {W_HP}
        v_lshlrev_b32 {f}, 2, v{vI}
        """)
        e(f"""
        s_lshl_b32 s48, {sLO}, 6
        s_lshl_b32 s49, {sHI}, 4
        s_add_u32 s48, s48, s49
        s_add_u32 s49, s48, s66
        s_add_u32 s49, s49, 0xA000
        v_lshlrev_b32 {c}, 9, v{vU}
        v_add_u32 v{vAS}, s49, {c}
        s_mov_b32 s14, 0x00100001
        s_mov_b32 s15, 0x10000100
        s_lshl_b32 s58, {sJ}, 6
        s_and_b32 {sR15}, {sR}, 15
        s_add_u32 s92, {sLO}, 1
        s_lshr_b32 s92, s92, 3
        """)
        if role == 0:
            e(f"""
            v_add_u32 v{lQR}, {L_QS}, {h}
            s_add_u32 s49, s48, s67
            s_add_u32 s49, s49, 0x5000
            v_add_u32 v{vDS}, s49, {c}
            v_mov_b32 {c}, 0x3f803f80
            v_lshlrev_b32 {d}, 2, v{vL}
            v_add_u32 {d}, {L_ONES}, {d}
            ds_write_b32 {d}, {c}
            s_lshl_b32 s48, {sLO}, 2
            s_add_u32 s48, s48, {sHI}
            s_lshl_b32 s49, s48, 8
            s_add_u32 s49, s49, s58
            s_add_u32 s49, s49, s66
            v_lshl_add_u32 v{vAP}, v{vU}, 13, {f}
            v_add_u32 v{vAP}, s49, v{vAP}
            """)
        else:
            e(f"""
            s_lshl_b32 s48, {sLO}, 2
            s_add_u32 s48, s48, {sHI}
            s_lshl_b32 s49, s48, 7
            s_add_u32 s49, s49, s58
            s_add_u32 s49, s49, s67
            v_lshl_add_u32 v{vDP}, v{vU}, 12, {f}
            v_add_u32 v{vDP}, s49, v{vDP}
            """)
        yield
        e(f"""
        v_lshlrev_b32 {t(47)}, 4, v{vL}
        s_lshl_b32 s48, {sW}, 10
        s_add_u32 s48, s48, s66
        s_add_u32 s49, s48, 0x8000
        v_add_u32 v{vQC}, s49, {t(47)}
        s_lshl_b32 s49, {sHI}, 13
        s_add_u32 s49, s49, s48
        v_add_u32 v{vQL}, s49, {t(47)}
        s_lshl_b32 {sHI64}, {sHI}, 6
        s_lshl_b32 s48, {sHI}, 9
        s_lshl_b32 s49, {sW}, 6
        s_add_u32 s48, s48, s49
        s_add_u32 s49, s48, s66
        s_add_u32 s49, s49, 0xA000
        v_add_u32 v{vQST}, s49, {f}
        s_add_u32 s49, s48, s67
        s_add_u32 s49, s49, 0x5000
        v_add_u32 v{vHST}, s49, {f}
        v_lshlrev_b32 {d}, 2, v{vL}
        s_lshl_b32 s48, {sW}, 9
        s_add_u32 s48, s48, s67
        s_add_u32 s49, s48, 0x4000
        v_add_u32 v{vHC}, s49, {d}
        s_lshl_b32 s49, {sHI}, 12
        s_add_u32 s49, s49, s48
        v_add_u32 v{vHL}, s49, {d}
        """)
        e(f"""
        v_and_b32 {h}, 1, v{vU}
        v_lshrrev_b32 {c}, 5, v{vL}
        v_and_b32 {d}, 31, v{vL}
        v_lshlrev_b32 {d}, 2, {d}
        """)
        for i in range(4):
            e(f"s_add_u32 s{68+2*i}, s24, {W_X0 + i*X_STRIDE}\ns_addc_u32 s{69+2*i}, s25, 0")
        e(f"""
        s_lshl_b32 s48, {sWH}, 14
        s_lshl_b32 s49, {sHI}, 11
        s_add_u32 s48, s48, s49
        s_lshl_b32 s49, {sW1b}, 10
        s_add_u32 s48, s48, s49
        v_add_u32 v{vXG}, s48, {t(47)}
        v_lshlrev_b32 v{vHNL}, 7, v{vI}
        v_add_u32 v{vHNL}, {X_HINT}, v{vHNL}
        s_lshl_b32 {sG8}, {sG}, 8
        s_lshr_b32 {sBP}, {sR}, 4
        s_lshl_b32 s48, {sG}, 11
        s_add_u32 s48, s48, {W_IND}
        s_add_u32 s76, s24, s48
        s_addc_u32 s77, s25, 0
        v_lshlrev_b32 v{vFL}, {cfg.fsp - 2}, {d}
        v_add_u32 v{vFL}, s48, v{vFL}
        s_lshl_b32 s49, {sR}, {cfg.fsp}
        s_add_u32 s48, s48, s49
        v_mov_b32 v{vFS}, s48
        s_lshl_b32 s44, {sG}, 15
        s_lshl_b32 s49, {sBP}, 14
        s_add_u32 s44, s44, s49
        s_add_u32 s44, s44, {W_O}
        s_add_u32 s49, s44, {sW2K}
        v_lshlrev_b32 {a}, 4, v{vL}
        v_add_u32 v{vOL}, s49, {a}
        s_lshl_b32 s45, {sG}, 10
        s_lshl_b32 s49, {sBP}, 9
        s_add_u32 s45, s45, s49
        s_add_u32 s45, s45, {W_ML}
        s_lshl_b32 s49, {sWH}, 6
        s_add_u32 s49, s45, s49
        v_lshl_add_u32 {t(46)}, v{vU}, 2, v{vI}
        v_and_b32 {t(46)}, 7, {t(46)}
        v_lshlrev_b32 {t(46)}, 2, {t(46)}
        v_lshl_add_u32 v{vML}, {c}, 5, {t(46)}
        v_add_u32 v{vML}, s49, v{vML}
        s_mul_i32 s48, {sWH}, 320
        s_lshl_b32 s49, {sW1b}, 7
        s_add_u32 s48, s48, s49
        s_add_u32 s48, s48, {L_QS}
        v_lshlrev_b32 v{lQW}, 3, v{vI}
        v_lshl_add_u32 v{lQW}, v{vU}, 1, v{lQW}
        v_add_u32 v{lQW}, s48, v{lQW}
        v_add_u32 v{lMR}, {L_MS}, {b}
        s_movk_i32 s62, 80
        v_lshl_add_u32 {t(46)}, {c}, 4, v{vI}
        v_lshlrev_b32 {h}, 2, {h}
        v_mad_u32_u24 v{lCW}, {t(46)}, s62, {h}
        s_lshl_b32 s48, {sW}, 3
        s_add_u32 s48, s48, {L_CR}
        v_add_u32 v{lCW}, s48, v{lCW}
        v_lshlrev_b32 {t(46)}, 4, v{vBQ}
        v_lshl_add_u32 v{lHW}, {h}, 1, {t(46)}
        v_lshl_add_u32 v{lHW}, v{vA}, 1, v{lHW}
        s_lshl_b32 s48, {sW}, 6
        s_add_u32 s48, s48, {L_HS}
        v_add_u32 v{lHW}, s48, v{lHW}
        """)
        if role == 0:
            e(f"""
            v_and_b32 v{vEP}, 1, v{vL}
            v_lshlrev_b32 v{vEP}, 13, v{vEP}
            v_bfe_u32 v{vCP}, v{vL}, 1, 3
            v_lshl_add_u32 v{vEP}, v{vCP}, 2, v{vEP}
            s_lshr_b32 s48, {sR15}, 1
            s_lshl_b32 s48, s48, 10
            s_and_b32 s49, {sR15}, 1
            s_lshl_b32 s49, s49, 6
            s_add_u32 s48, s48, s49
            s_lshl_b32 s49, {sBP}, 15
            s_add_u32 s48, s48, s49
            s_lshl_b32 s58, {sG}, 7
            s_add_u32 s48, s48, s58
            v_lshl_add_u32 v{vCP}, {h}, 12, v{vEP}
            v_lshl_add_u32 v{vCP}, {c}, 5, v{vCP}
            v_add_u32 v{vCP}, s48, v{vCP}
            s_lshl_b32 s48, {sHI}, 14
            s_lshl_b32 s49, {sLO}, 10
            s_add_u32 s48, s48, s49
            s_lshl_b32 s49, {sW}, 5
            s_add_u32 s48, s48, s49
            s_add_u32 s48, s48, s58
            v_add_u32 v{vEP}, s48, v{vEP}
            s_lshl_b32 s49, {sR15}, 2
            s_add_u32 s49, s49, s45
            v_lshlrev_b32 v{vMP}, 6, v{vU}
            v_add_u32 v{vMP}, s49, v{vMP}
            s_lshl_b32 s48, {sW}, 10
            s_add_u32 s48, s48, {L_PS}
            v_add_u32 v{lPW}, s48, {a}
            s_lshl_b32 s48, {sW}, 2
            s_add_u32 s48, s48, {L_MS}
            v_add_u32 v{lMW}, s48, {t(46)}
            s_lshl_b32 s48, {sW}, 4
            s_add_u32 s48, s48, {L_LS}
            v_lshlrev_b32 v{lLW}, 6, v{vBQ}
            v_lshl_add_u32 v{lLW}, v{vU}, 2, v{lLW}
            v_add_u32 v{lLW}, s48, v{lLW}
            v_mul_u32_u24 v{lCR}, 80, v{vL}
            v_add_u32 v{lCR}, {L_CR}, v{lCR}
            v_add_u32 v{lHR}, {L_HS}, {b}
            """)
        if True:
            e(f"""
            s_lshl_b32 s49, {sBP}, 7
            s_add_u32 s49, s49, {sG8}
            s_add_u32 s49, s49, {X_HINT}
            v_bfe_u32 v{vHNS}, v{vL}, 3, 2
            v_lshlrev_b32 v{vHNS}, 11, v{vHNS}
            v_lshl_add_u32 v{vHNS}, {c}, 13, v{vHNS}
            v_and_b32 v{lP}, 7, v{vL}
            v_lshl_add_u32 v{vHNS}, v{lP}, 4, v{vHNS}
            v_add_u32 v{vHNS}, s49, v{vHNS}
            s_xor_b32 s22, {sW}, {cfg.hwx}
            s_or_b32 s22, s22, {sR15}
            s_cselect_b32 s22, 0, 0x01010101
            s_mov_b32 s23, s22
            v_add_u32 v{lP}, {L_PS}, {a}
            s_lshl_b32 s48, {sJ}, 10
            s_add_u32 s48, s48, s44
            s_lshl_b32 s49, {sR15}, 4
            s_add_u32 s48, s48, s49
            v_lshlrev_b32 v{vOP}, 12, v{vU}
            v_lshl_add_u32 v{vOP}, v{vBQ}, 8, v{vOP}
            v_lshl_add_u32 v{vOP}, v{vA}, 2, v{vOP}
            v_add_u32 v{vOP}, s48, v{vOP}
            v_lshl_add_u32 {t(46)}, v{vU}, 2, v{vBQ}
            v_and_b32 v{lTV}, 7, {t(46)}
            s_lshl_b32 s48, {sJ}, 1
            v_xor_b32 v{lTV}, s48, v{lTV}
            v_lshlrev_b32 v{lTV}, 5, v{lTV}
            v_lshl_add_u32 v{lTV}, {t(46)}, 8, v{lTV}
            v_lshl_add_u32 v{lTV}, v{vA}, 3, v{lTV}
            """)
        yield

    def loader_addr():
        e(f"""
        v_lshrrev_b32 {t(11)}, 2, v{vL}
        v_and_b32 {t(12)}, 1, v{vU}
        v_lshlrev_b32 {t(12)}, 1, {t(12)}
        v_xor_b32 {t(12)}, {t(12)}, v{vA}
        v_lshlrev_b32 {t(12)}, 4, {t(12)}
        v_lshl_add_u32 v{aWO}, {t(11)}, 10, {t(12)}
        s_lshl_b32 s48, {sG}, 19
        s_lshl_b32 s49, {sJ}, 14
        s_add_u32 s48, s48, s49
        s_and_b32 s49, {sR}, 15
        s_lshl_b32 s49, s49, 6
        s_add_u32 s48, s48, s49
        v_add_u32 v{aWO}, s48, v{aWO}
        s_lshr_b32 s91, {sR}, 3
        s_and_b32 s91, s91, 2
        s_and_b32 s49, {sR}, 1
        s_or_b32 s91, s91, s49
        s_lshl_b32 {sWIN}, {sHI}, 23
        s_lshl_b32 s49, {sG}, 20
        s_add_u32 {sWIN}, {sWIN}, s49
        s_add_u32 {sWIN}, {sWIN}, 0xC0000
        v_lshl_add_u32 v{aW2}, {t(1)}, 10, {t(2)}
        s_lshl_b32 s48, {sJ}, 2
        v_add_u32 {t(10)}, s48, v{vU}
        v_xor_b32 v{vKA}, {t(10)}, v{vI}
        v_lshlrev_b32 v{vKA}, 4, v{vKA}
        v_lshl_add_u32 v{vKA}, {t(10)}, 8, v{vKA}
        v_and_b32 v{vVA}, 7, {t(10)}
        v_lshlrev_b32 v{vVA}, 1, v{vVA}
        v_xor_b32 v{vVA}, v{vVA}, v{vI}
        v_lshlrev_b32 v{vVA}, 4, v{vVA}
        v_lshl_add_u32 v{vVA}, {t(10)}, 8, v{vVA}
        s_movk_i32 s48, 3584
        v_mad_u32_u24 v{aW1}, {t(11)}, s48, {t(12)}
        s_lshl_b32 s48, {sHI}, 7
        s_lshl_b32 s49, {sJ}, 4
        s_add_u32 s48, s48, s49
        s_mul_i32 s48, s48, 3584
        s_mul_i32 s49, {sG}, 448
        s_add_u32 s48, s48, s49
        s_min_u32 s49, {sLO}, 6
        s_lshl_b32 s49, s49, 6
        s_add_u32 s48, s48, s49
        v_add_u32 v{aW1}, s48, v{aW1}
        s_mul_i32 s48, {sG}, {224*1024}
        s_lshl_b32 s49, {sLO}, 7
        s_add_u32 s48, s48, s49
        v_add_u32 v{aW2}, s48, v{aW2}
        """)
    def item(kind, c):
        if kind in "KV":
            blkoff("s94", c)
            dst = (L_K + (c & 3) * 8192 + (c >> 2) * 4096) if kind == "K" else (L_V + (32 * (c & 3) + 16 * (c >> 2)) * 256)
            e(f"s_add_u32 m0, {sVL}, {dst}\nv_add_u32 {t(61)}, s94, v{vKA if kind == 'K' else vVA}")
            return f"global_load_lds_dwordx4 {t(61)}, {sK if kind == 'K' else sV} nt"
        if kind == "o":
            e(f"""
            s_add_u32 s94, s91, {c >> 1}
            s_and_b32 s94, s94, 3
            s_lshl_b32 s94, s94, 13
            s_add_u32 s94, s94, {(c & 1) * 4096}
            s_lshl_b32 s95, s94, 4
            s_add_u32 s94, s94, {sVL}
            s_add_u32 m0, s94, {L_WO}
            v_add_u32 {t(61)}, s95, v{aWO}
            """)
            return f"global_load_lds_dwordx4 {t(61)}, {sWO} {'nt' if (cfg.hnt if c >= 2 else cfg.o0nt) else ''}"
        if kind == "1":
            e(f"s_add_u32 m0, {sVL}, {L_W1 + c * 4096}\nv_add_u32 {t(61)}, {c * 64 * 3584}, v{aW1}")
            return f"global_load_lds_dwordx4 {t(61)}, {sW1} {'nt' if cfg.wnt else ''}"
        if kind == "r":
            e(f"""
            s_add_u32 s94, {sJ}, {4 * c}
            s_min_u32 s94, s94, 20
            s_mul_i32 s95, {sHI}, 7
            s_add_u32 s94, s94, s95
            s_add_u32 s94, s94, 7
            s_cmp_ge_u32 s94, 28
            s_cselect_b32 s95, 28, 0
            s_sub_u32 s94, s94, s95
            s_lshl_b32 s95, s94, 13
            s_lshl_b32 s94, s94, 10
            s_add_u32 m0, s94, {L_W2}
            v_add_u32 {t(61)}, s95, v{aW2}
            """)
            return f"global_load_lds_dwordx4 {t(61)}, {sW2} {'nt' if cfg.hnt else ''}"
        if kind == "2":
            e(f"""
            s_add_u32 s94, {sJ}, {4 * c}
            s_min_u32 s94, s94, 6
            s_mul_i32 s95, {sHI}, 7
            s_add_u32 s94, s94, s95
            s_lshl_b32 s95, s94, 13
            s_lshl_b32 s94, s94, 10
            s_add_u32 m0, s94, {L_W2}
            v_add_u32 {t(61)}, s95, v{aW2}
            """)
            return f"global_load_lds_dwordx4 {t(61)}, {sW2} {'nt' if cfg.wnt else ''}"
    ORDERS = ["K" * 8 + "V" * 8 + "o" * 8 + "1122",
              "oo" + "K" * 8 + "V" * 8 + "o" * 6 + "1122",
              "K" * 8 + "oo" + "V" * 8 + "o" * 6 + "1122",
              "K" * 8 + "V" * 8 + "oo1122" + "o" * 6,
              "K" * 8 + "V" * 8 + "oooo1122" + "o" * 4,
              "K" * 8 + "V" * 6 + "oo" + "VV" + "1122" + "o" * 6,
              "K" * 8 + "V" * 8 + "o" * 8,
              "K" * 8 + "V" * 4 + "oo" + "VVVV" + "o" * 6,
              "K" * 8 + "oo" + "V" * 8 + "o" * 6,
              "K" * 8 + "V" * 6 + "oo" + "VV" + "11" + "o" * 6,
              "K" * 8 + "V" * 8 + "oo11" + "o" * 6,
              "oo11" + "K" * 8 + "V" * 8 + "o" * 6,
              "oo11" + "K" * 8 + "o" * 6 + "V" * 8,
              "oo11" + "K" * 8 + "VoVoVoVoVoVoVV",
              "oo" + "K" * 8 + "VoVoVoVoVoVoVV" + "11",
              "oo1122" + "K" * 8 + "VoVoVoVoVoVoVV",
              "11" + "K" * 8 + "V" * 8 + "o" * 8,
              "1122" + "K" * 8 + "V" * 8 + "o" * 8,
              "oo" + "K" * 8 + "V" * 8 + "11" + "o" * 6]
    def w2_rest():
        e(f"""
        s_add_u32 s48, {sHI}, {sJ}
        s_add_u32 s48, s48, 1
        s_and_b32 s48, s48, 3
        s_mul_i32 s48, s48, 7
        s_lshl_b32 s49, s48, 13
        v_add_u32 {t(61)}, s49, v{aW2}
        s_lshl_b32 s48, s48, 10
        """)
        for i in range(7):
            e(f"s_add_u32 m0, s48, {L_W2 + i * 1024}\ns_nop 0\nglobal_load_lds_dwordx4 {t(61)}, {sW2}")
            if i < 6: e(f"v_add_u32 {t(61)}, 0x2000, {t(61)}")

    def tr128_addr(base):
        e(f"""
        v_lshl_add_u32 {t(40)}, v{vU}, 2, v{vBQ}
        v_bfe_u32 {t(41)}, {t(40)}, 1, 2
        v_xor_b32 {t(41)}, {sJ}, {t(41)}
        v_lshlrev_b32 {t(41)}, 5, {t(41)}
        v_lshl_add_u32 {t(41)}, {t(40)}, 7, {t(41)}
        v_lshl_add_u32 {t(41)}, v{vA}, 3, {t(41)}
        """)
        if base: e(f"v_add_u32 {t(41)}, {base}, {t(41)}")
    def tr128(dst, nks):
        for ks in range(nks):
            for h in range(2):
                e(f"ds_read_b64_tr_b16 {R(dst + ks*4 + h*2, 2)}, {t(41)} offset:{ks*4096 + h*2048}")
    def tr_w1():
        e(f"""
        v_lshl_add_u32 {t(40)}, v{vU}, 2, v{vBQ}
        v_and_b32 {t(41)}, 1, v{vU}
        v_xor_b32 {t(41)}, {sW1b}, {t(41)}
        v_lshlrev_b32 {t(41)}, 5, {t(41)}
        v_lshl_add_u32 {t(41)}, {t(40)}, 6, {t(41)}
        v_lshl_add_u32 {t(41)}, v{vA}, 3, {t(41)}
        v_add_u32 {t(41)}, {L_W1}, {t(41)}
        """)
        for ks in range(4):
            for h in range(2):
                e(f"ds_read_b64_tr_b16 {R(oW1 + ks*4 + h*2, 2)}, {t(41)} offset:{ks*2048 + h*1024}")
    def tr_wo():
        e(f"""
        v_and_b32 {t(40)}, 1, v{vBQ}
        v_lshlrev_b32 {t(40)}, 4, {t(40)}
        v_lshl_add_u32 {t(40)}, v{vU}, 2, {t(40)}
        v_lshrrev_b32 {t(41)}, 1, v{vBQ}
        v_add_u32 {t(40)}, {t(40)}, {t(41)}
        v_and_b32 {t(41)}, 1, v{vU}
        v_lshlrev_b32 {t(41)}, 5, {t(41)}
        v_lshl_add_u32 {t(41)}, {t(40)}, 6, {t(41)}
        v_lshl_add_u32 {t(41)}, v{vA}, 3, {t(41)}
        s_lshl_b32 s48, {sW}, 12
        s_add_u32 s48, s48, {L_WO}
        v_add_u32 {t(41)}, s48, {t(41)}
        v_xor_b32 {t(42)}, 32, {t(41)}
        """)
        for tile in range(2):
            for ks in range(2):
                for h in range(2):
                    e(f"ds_read_b64_tr_b16 {R(oWO + (tile*2+ks)*4 + h*2, 2)}, {t(41+tile)} offset:{ks*2048 + h*128}")
    def tr_v(ops):
        e(f"v_xor_b32 {t(60)}, 32, v{lTV}")
        for ks in range(4):
            for tile in range(2):
                for h in range(2):
                    e(f"ds_read_b64_tr_b16 {R(ops[tile*4+ks] + h*2, 2)}, {f'v{lTV}' if tile == 0 else t(60)} offset:{L_V + ks*8192 + h*4096}")

    def swapred(a, fill1, fill2):
        e(f"v_permlane32_swap_b32 v{a}, v{a+2}\nv_permlane32_swap_b32 v{a+1}, v{a+3}")
        e(f"v_pk_add_f32 {R(a,2)}, {R(a,2)}, {R(a+2,2)}")
        e(fill1)
        e(f"v_permlane16_swap_b32 v{a}, v{a+1}")
        e(fill2)
        e(f"v_add_f32 v{a}, v{a}, v{a+1}")

    def hint_send(inst, role):
        if cfg.hwx // 4 != role: return
        b = g.L("Lh")
        m = "s[80:81]" if (cfg.hfar and inst > 0) else "s[22:23]"
        e(f"s_mov_b64 exec, {m}\ns_cbranch_execz {b}\nglobal_store_dword v{vHNS}, v{vTV}, {sXI[inst]} sc1\n{b}:\ns_mov_b64 exec, -1")
    def hint_far(inst, role):
        if cfg.hwx // 4 != role or not cfg.hfar or inst == 0: return
        b = g.L("Lh")
        e(f"""
        s_mov_b64 s[80:81], 0
        s_cmp_eq_u32 s22, 0
        s_cbranch_scc1 {b}
        v_readfirstlane_b32 s82, v{vXG}
        v_readfirstlane_b32 s83, v{vHNS}
        s_add_u32 s86, {sT}, 1
        s_and_b32 s82, s82, 0x2000
        s_cselect_b32 s80, 0, s22
        s_cselect_b32 s81, s22, 0
        s_xor_b32 s82, s82, 0x2000
        s_add_u32 s83, s83, s82
        """)
        delay(cfg.hfx if inst % 2 == 0 else cfg.hfy)
        for k in range(4):
            e(f"s_atomic_add s86, {sXI[inst]}, s83")
            if k < 3: e("s_add_u32 s83, s83, 2048")
        e(f"{b}:")
    def hint_ld(inst, r, k):
        e(f"global_load_dword v{r}, {f'v{vHNL}' if k < 2 else t(30)}, {sXI[inst]} offset:{(k & 1) * 2048} sc1")
    def hint_first(inst):
        a, b = g.L("Lh"), g.L("Lh")
        e(f"s_cmp_eq_u32 {sW}, 7\ns_cbranch_scc1 {a}\n{b}:")
        g.ool(lambda: (e(f"{a}:\ns_mov_b64 exec, 0xffff"), hint_ld(inst, vHN, 0), e(f"s_mov_b64 exec, -1\ns_branch {b}")))
    def hprep():
        e(f"s_mov_b32 {sCNT}, 0\ns_mov_b64 exec, 0xffff\nv_add_u32 {t(30)}, 4096, v{vHNL}")
    def hint_wait(inst, issued):
        lp, dn = g.L("Lp"), g.L("Ld")
        ld = lambda r, k: hint_ld(inst, r, k)
        if not issued:
            ld(vHN, 0)
            delay(cfg.hgap)
        ld(vHN2, 1)
        chk = lambda r: e(f"s_waitcnt vmcnt(1)\nv_cmp_ne_u32 vcc, {sT}, v{r}\ns_cbranch_vccz {dn}\ns_add_u32 {sCNT}, {sCNT}, 1")
        chk(vHN); ld(vHN, 2)
        chk(vHN2); ld(vHN2, 3)
        e(f"{lp}:")
        for r in (vHN, vHN2):
            chk(r); ld(r, 3)
        e(f"s_cmp_lt_u32 {sCNT}, 0x8000\ns_cbranch_scc1 {lp}\n{dn}:")
        if cfg.stamps:
            e(f"v_writelane_b32 v{g.vst}, {sCNT}, {40 + g.npoll}")
            g.npoll += 1

    def spin2(load, gap, sleep=0):
        lp, dn = g.L("Lp"), g.L("Ld")
        regs = [vHN, vHN2, vHN3, vHN4][:cfg.fdep]
        e(f"s_mov_b32 {sCNT}, 0")
        for i, r in enumerate(regs):
            if i: delay(gap)
            load(r)
        e(f"{lp}:")
        for r in regs:
            e(f"s_waitcnt vmcnt({len(regs) - 1})\nv_subrev_u32 v{r}, s49, v{r}\nv_cmp_le_u32 vcc, 8, v{r}\ns_cbranch_vccz {dn}")
            load(r)
            e(f"s_add_u32 {sCNT}, {sCNT}, 1")
        e(f"s_cmp_lt_u32 {sCNT}, 0x10000\ns_cbranch_scc1 {lp}\n{dn}:")
        if cfg.stamps:
            e(f"v_writelane_b32 v{g.vst}, {sCNT}, {40 + g.npoll}")
            g.npoll += 1
    def gprep(idx, half=False):
        e(f"s_add_u32 s49, s3, {idx}\nv_mov_b32 v{vHN}, s49")
        if half: e(f"s_lshl_b32 s48, {sBP}, 4\ns_lshl_b32 s42, 0xffff, s48")
        else: e("s_mov_b32 s42, -1")
        e(f"s_mov_b32 s43, 0\ns_mov_b64 exec, 1\n{LOCCMP}")
    def gflag(dly):
        delay(dly)
        lstore([f"global_store_dword v{vFS}, v{vHN}, {sWS}"])
        e("s_mov_b64 exec, s[42:43]")
        delay(cfg.dfp)
        spin2(lambda r: e(f"global_load_dword v{r}, v{vFL}, {sWS} sc1"), cfg.fgap)
    def seg(paths, default, stamp, post=None):
        join = g.L("Lj")
        n0, p0 = g.nst, g.npoll
        t0_ = g.npt
        p1 = p0
        for cond, pre, fn, *aft in paths:
            skip = g.L("Lk")
            g.nst, g.npoll = n0, p0
            g.npt = t0_
            e(cond + f"\ns_cbranch_scc0 {skip}")
            if pre: pre()
            g.fs(stamp + "<")
            e("s_waitcnt lgkmcnt(0)\ns_barrier")
            g.fs(stamp + "b")
            fn()
            g.fs(stamp + ">")
            g.stamp(stamp)
            if post: post()
            e(f"s_barrier\ns_mov_b64 exec, -1")
            if aft: aft[0]()
            e(f"s_branch {join}")
            g.pad()
            e(f"{skip}:")
            p1 = max(p1, g.npoll)
        g.nst, g.npoll = n0, p0
        g.npt = t0_
        g.fs(stamp + "<")
        e("s_waitcnt lgkmcnt(0)\ns_barrier")
        g.fs(stamp + "b")
        if default: default()
        g.fs(stamp + ">")
        g.stamp(stamp)
        if post: post()
        e(f"s_barrier\n{join}:")
        g.fs(stamp + "j")
        g.npoll = p0 + 1 if cfg.stamps else 0
    WEQ = lambda w: f"s_cmp_eq_u32 {sW}, {w}"
    def nopoll():
        if cfg.stamps: g.npoll += 1

    def xgather(inst, dly, role=1):
        delay(dly)
        def issue():
            e(f"global_load_dwordx4 {R(T,4)}, v{vXG}, {sXI[inst]} sc1")
        def body():
            for j in (0, 2, 1, 3):
                e(f"v_lshlrev_b32 {t(4+2*j)}, 16, {t(j)}\nv_and_b32 {t(5+2*j)}, 0xffff0000, {t(j)}")
            e(f"""
            v_permlane32_swap_b32 {t(4)}, {t(8)}
            v_permlane32_swap_b32 {t(5)}, {t(9)}
            v_permlane32_swap_b32 {t(6)}, {t(10)}
            v_permlane32_swap_b32 {t(7)}, {t(11)}
            v_pk_add_f32 {R(T+4,2)}, {R(T+4,2)}, {R(T+8,2)}
            v_pk_add_f32 {R(T+6,2)}, {R(T+6,2)}, {R(T+10,2)}
            v_max3_u32 {t(0)}, {t(0)}, {t(1)}, {t(2)}
            s_nop 0
            v_permlane16_swap_b32 {t(4)}, {t(6)}
            v_permlane16_swap_b32 {t(5)}, {t(7)}
            v_pk_add_f32 {R(T+4,2)}, {R(T+4,2)}, {R(T+6,2)}
            v_max_u32 {t(0)}, {t(0)}, {t(3)}
            v_cmp_eq_u32 vcc, -1, {t(0)}
            v_add_f32_dpp {t(6)}, {t(4)}, {t(4)} row_ror:8 {DPP}
            v_add_f32_dpp {t(7)}, {t(5)}, {t(5)} row_ror:8 {DPP}
            v_pk_add_f32 {R(T+6,2)}, {R(T+6,2)}, {R(vXR,2)}
            v_cvt_pk_bf16_f32 {t(14)}, {t(6)}, {t(7)}
            """)
        poll(issue, body, cfg.retry_x, heat=(lambda: heat_w(3, cfg.hx0, cfg.hx)) if (role == 0 and inst < 3) else None)

    def xreads():
        for ks in range(4):
            e(f"ds_read_b128 {R(T+16+ks*4,4)}, v{lXR} offset:{ks*64}")
    def tile_gemv(L, oW, pub, base, csoff, dual, tr):
        xreads()
        if tr: tr()
        for ks in range(4):
            e(f"s_waitcnt lgkmcnt({0 if tr else 3-ks})")
            e(f"{MFMA} {R(T+32,4)}, {R(T+16+ks*4,4)}, {R(oW+ks*4,4)}, {'0' if ks == 0 else R(T+32,4)}")
        if L == 0:
            e(f"v_add_u32 {t(36)}, {csoff}, v{pub}\n{LOCCMP}\ns_nop 5")
        else:
            e(f"{LOCCMP}\ns_nop 6")
        e(f"v_and_or_b32 {t(32)}, {t(32)}, {sMASK}, v{vTAG}")
        ins = [f"global_store_dword v{pub}, {t(32)}, {base}"]
        if L == 0:
            e(f"v_and_or_b32 {t(33)}, {t(33)}, {sMASK}, v{vTAG}")
            ins += ["s_mov_b64 exec, 0xffff", f"global_store_dword {t(36)}, {t(33)}, {base}", "s_mov_b64 exec, -1"]
        if dual:
            for s in ins: e(s)
            return [s.replace(base, sQX) + " sc1" if s.startswith("global") else s for s in ins]
        else:
            lstore(ins)
    def gram(stat, base, dual):
        xreads()
        e(f"s_lshl_b32 s48, {sXCC}, 8\ns_or_b32 s48, s48, s34")
        for ks in range(4):
            e(f"s_waitcnt lgkmcnt({3-ks})")
            e(f"{MFMA} {R(T+32,4)}, {R(T+16+ks*4,4)}, {R(T+16+ks*4,4)}, {'0' if ks == 0 else R(T+32,4)}")
        e(f"""
        v_mov_b32 {t(36)}, s32
        v_mov_b32 {t(37)}, s33
        v_mov_b32 {t(38)}, s48
        v_mov_b32 {t(39)}, s35
        s_mov_b64 exec, {sM20}
        {LOCCMP}
        s_nop 1
        v_and_or_b32 {t(36)}, {t(32)}, {sMASK}, {t(36)}
        v_and_or_b32 {t(37)}, {t(33)}, {sMASK}, {t(37)}
        """)
        ins = [f"global_store_dwordx4 v{stat}, {R(T+36,4)}, {base}"]
        if dual:
            e(ins[0])
            e("s_mov_b64 exec, -1")
            for i in range(4): e(f"v_mov_b32 v{oWO+8+i}, {t(36+i)}")
        else: lstore(ins)
        e("s_mov_b64 exec, -1")

    def probe(dst, off):
        e(f"""
        s_memtime s[80:81]
        s_waitcnt lgkmcnt(0)
        s_load_dword s86, s[78:79], {off} glc
        s_waitcnt lgkmcnt(0)
        s_memtime s[82:83]
        s_waitcnt lgkmcnt(0)
        s_sub_u32 {dst}, s82, s80
        """)
    def probe1():
        e(f"""
        s_lshr_b32 s48, s2, 6
        s_lshl_b32 s48, s48, 14
        s_and_b32 s49, s2, 63
        s_lshl_b32 s49, s49, 7
        s_add_u32 s48, s48, s49
        s_add_u32 s48, s48, {W_PROBE}
        s_add_u32 s78, s24, s48
        s_addc_u32 s79, s25, 0
        """)
        probe("s84", 0)
        e(f"""
        s_cmp_gt_u32 s84, {cfg.thr}
        s_cselect_b32 s48, 0x2001, 1
        v_mov_b32 {t(0)}, s48
        v_mov_b32 {t(1)}, {L_FL + 48}
        v_mov_b32 {t(2)}, s84
        ds_write_b32 {t(1)}, {t(2)} offset:8
        ds_write_b32 {t(1)}, {t(0)}
        """)
        if cfg.stamps: e(f"v_writelane_b32 v{g.vst}, s84, 61")
    def probe2():
        e(f"v_mov_b32 {t(1)}, {L_FL + 48}\nds_read_b32 {t(2)}, {t(1)} offset:8\ns_waitcnt lgkmcnt(0)\nv_readfirstlane_b32 s84, {t(2)}")
        probe("s85", 0x2000)
        e(f"""
        s_min_u32 s84, s84, {cfg.thr + 40}
        s_cmp_lt_u32 s85, s84
        s_cselect_b32 s48, 0x2001, 1
        v_mov_b32 {t(0)}, s48
        ds_write_b32 {t(1)}, {t(0)} offset:4
        """)
        if cfg.stamps: e(f"v_writelane_b32 v{g.vst}, s48, 62")
    def selwait(slot=0):
        if cfg.probe != 2: return
        lp, dn = g.L("Lq"), g.L("Lq")
        e(f"""
        v_mov_b32 {t(1)}, {L_FL + 48 + 4 * slot}
        s_mov_b32 {sCNT}, 0
        {lp}:
        ds_read_b32 {t(0)}, {t(1)}
        s_add_u32 {sCNT}, {sCNT}, 1
        s_cmp_gt_u32 {sCNT}, 0x10000
        s_cbranch_scc1 {dn}
        s_waitcnt lgkmcnt(0)
        v_cmp_eq_u32 vcc, 0, {t(0)}
        s_cbranch_vccnz {lp}
        {dn}:
        s_waitcnt lgkmcnt(0)
        s_movk_i32 s48, 0x2000
        v_bfi_b32 v{vXG}, s48, {t(0)}, v{vXG}
        v_bfi_b32 v{vHNL}, s48, {t(0)}, v{vHNL}
        """)
    def apply_sel():
        if cfg.probe != 1: return
        e(f"""
        v_mov_b32 {t(1)}, {L_FL + 48}
        ds_read_b32 {t(0)}, {t(1)}
        s_waitcnt lgkmcnt(0)
        v_subrev_u32 {t(0)}, s88, {t(0)}
        v_add_u32 v{vXG}, v{vXG}, {t(0)}
        v_add_u32 v{vHNL}, v{vHNL}, {t(0)}
        """)
    def set_loc(b):
        e(f"""
        v_and_b32 {t(b)}, {t(b)}, {t(b+1)}
        v_and_b32 {t(b+2)}, {t(b+2)}, {t(b+3)}
        v_and_b32 {t(b)}, {t(b)}, {t(b+2)}
        s_nop 0
        v_readfirstlane_b32 {sLOC}, {t(b)}
        s_nop 0
        {LOCCMP}
        s_cselect_b64 {sQB}, {sQX}, {sWS}
        """)
    def lsignal(k):
        e(f"v_mov_b32 {t(58)}, {k}\nds_write_b32 {t(59)}, {t(58)}")
    def lwait(k, hook=None):
        lsp, lsd = g.L("Lq"), g.L("Lq")
        e(f"""
        v_mov_b32 {t(57)}, {L_FL}
        s_mov_b32 {sCNT}, 0
        {lsp}:
        ds_read_b128 {R(T+48,4)}, {t(57)}
        ds_read_b128 {R(T+52,4)}, {t(57)} offset:16
        s_add_u32 {sCNT}, {sCNT}, 1
        s_cmp_gt_u32 {sCNT}, 0x100000
        s_cbranch_scc1 {lsd}
        """)
        if hook:
            lh, lh2 = g.L("Lq"), g.L("Lq")
            e(f"s_cmp_eq_u32 {sCNT}, 64\ns_cbranch_scc1 {lh}\n{lh2}:")
            g.ool(lambda: (e(f"{lh}:"), hook(), e(f"s_branch {lh2}")))
        e(f"""
        s_waitcnt lgkmcnt(0)
        v_min3_u32 {t(48)}, {t(48)}, {t(49)}, {t(50)}
        v_min3_u32 {t(51)}, {t(51)}, {t(52)}, {t(53)}
        v_min3_u32 {t(48)}, {t(48)}, {t(54)}, {t(55)}
        v_min_u32 {t(48)}, {t(48)}, {t(51)}
        v_cmp_gt_u32 vcc, {k}, {t(48)}
        s_cbranch_vccnz {lsp}
        {lsd}:
        """)
    RSTD = f"""
        v_mul_f32 {t(12)}, s64, {t(12)}
        v_fma_f32 {t(12)}, -{t(13)}, {t(13)}, {t(12)}
        v_max_f32 {t(12)}, 0, {t(12)}
        v_add_f32 {t(12)}, {hex(f2u(1e-5))}, {t(12)}
        v_rsq_f32 {t(12)}, {t(12)}
        """
    def qk_softmax():
        for ks in range(4):
            e(f"ds_read_b128 {R(T+16+ks*4,4)}, v{lQR} offset:{ks*64}")
        e(f"v_mul_f32 v{vSC}, {hex(f2u(128**-0.5 * math.log2(math.e)))}, {t(12)}")
        for ks in range(4):
            e(f"s_waitcnt lgkmcnt({3-ks})")
            for h in range(2):
                e(f"{MFMA} {R(T+32+h*4,4)}, {R(oK+(h*4+ks)*4,4)}, {R(T+16+ks*4,4)}, {'0' if ks == 0 else R(T+32+h*4,4)}")
        e(f"""
        s_nop 6
        v_max3_f32 {t(0)}, {t(32)}, {t(33)}, {t(34)}
        v_max3_f32 {t(1)}, {t(36)}, {t(37)}, {t(38)}
        v_max3_f32 {t(2)}, {t(0)}, {t(35)}, {t(39)}
        v_max_f32 {t(0)}, {t(2)}, {t(1)}
        v_max_f32 {t(1)}, {t(2)}, {t(1)}
        s_nop 1
        v_permlane32_swap_b32 {t(0)}, {t(1)}
        v_max_f32 {t(2)}, {t(0)}, {t(1)}
        v_max_f32 {t(3)}, {t(0)}, {t(1)}
        s_nop 1
        v_permlane16_swap_b32 {t(2)}, {t(3)}
        v_max_f32 {t(0)}, {t(2)}, {t(3)}
        v_mul_f32 {t(0)}, {t(0)}, v{vSC}
        """)
        for i in range(8):
            e(f"v_fma_f32 {t(32+i)}, {t(32+i)}, v{vSC}, -{t(0)}")
        e(f"ds_write_b32 v{lMW}, {t(0)}")
        for i in range(8):
            e(f"v_exp_f32 {t(32+i)}, {t(32+i)}")
        for i in range(4):
            e(f"v_cvt_pk_bf16_f32 {t(4+i)}, {t(32+2*i)}, {t(33+2*i)}")
        e(f"""
        ds_write_b128 v{lPW}, {R(T+4,4)}
        v_pk_add_f32 {R(T+32,2)}, {R(T+32,2)}, {R(T+34,2)}
        v_pk_add_f32 {R(T+36,2)}, {R(T+36,2)}, {R(T+38,2)}
        v_pk_add_f32 {R(T+32,2)}, {R(T+32,2)}, {R(T+36,2)}
        v_add_f32 {t(32)}, {t(32)}, {t(33)}
        ds_write_b32 v{lLW}, {t(32)}
        """)
    def fweights():
        e(f"""
        v_max3_f32 {t(8)}, {t(0)}, {t(1)}, {t(2)}
        v_max_f32 {t(8)}, {t(8)}, {t(3)}
        v_sub_f32 {t(0)}, {t(0)}, {t(8)}
        v_sub_f32 {t(1)}, {t(1)}, {t(8)}
        v_sub_f32 {t(2)}, {t(2)}, {t(8)}
        v_sub_f32 {t(3)}, {t(3)}, {t(8)}
        v_exp_f32 {t(0)}, {t(0)}
        v_exp_f32 {t(1)}, {t(1)}
        v_exp_f32 {t(2)}, {t(2)}
        v_exp_f32 {t(3)}, {t(3)}
        """)
    def pv(ops, fresh):
        e(f"ds_read_b128 {R(T+16,4)}, v{lP}\nds_read_b128 {R(T,4)}, v{lMR}")
        for ks in range(1, 4):
            e(f"ds_read_b128 {R(T+16+ks*4,4)}, v{lP} offset:{ks*1024}")
        if fresh: tr_v(ops)
        mm = lambda ks, tile: e(f"{MFMA} {R(T+32+(tile*4+ks)*4,4)}, {R(T+16+ks*4,4)}, {R(ops[tile*4+ks],4)}, 0")
        wt = lambda ks: e(f"s_waitcnt lgkmcnt({12 - 4*ks if fresh else (4, 2, 1, 0)[ks]})")
        wt(0); mm(0, 0); mm(0, 1)
        wt(1); mm(1, 0)
        e(f"v_max3_f32 {t(8)}, {t(0)}, {t(1)}, {t(2)}\nv_max_f32 {t(8)}, {t(8)}, {t(3)}")
        mm(1, 1)
        e(f"v_sub_f32 {t(0)}, {t(0)}, {t(8)}\nv_sub_f32 {t(1)}, {t(1)}, {t(8)}")
        wt(2); mm(2, 0)
        e(f"v_sub_f32 {t(2)}, {t(2)}, {t(8)}\nv_sub_f32 {t(3)}, {t(3)}, {t(8)}")
        mm(2, 1)
        e(f"v_exp_f32 {t(0)}, {t(0)}")
        wt(3); mm(3, 0)
        e(f"v_exp_f32 {t(1)}, {t(1)}")
        mm(3, 1)
        e(f"""
        v_exp_f32 {t(2)}, {t(2)}
        v_exp_f32 {t(3)}, {t(3)}
        v_mul_f32 {t(12)}, {t(0)}, {t(32)}
        v_mul_f32 {t(13)}, {t(0)}, {t(48)}
        v_fmac_f32 {t(12)}, {t(1)}, {t(36)}
        v_fmac_f32 {t(13)}, {t(1)}, {t(52)}
        v_fmac_f32 {t(12)}, {t(2)}, {t(40)}
        v_fmac_f32 {t(13)}, {t(2)}, {t(56)}
        v_fmac_f32 {t(12)}, {t(3)}, {t(44)}
        v_fmac_f32 {t(13)}, {t(3)}, {t(60)}
        {LOCCMP}
        v_cvt_pk_bf16_f32 {t(12)}, {t(12)}, {t(13)}
        v_min_u32 {t(12)}, -2, {t(12)}
        """)
        lstore([f"global_store_dword v{vOP}, {t(12)}, {sWS}"])
    def ml_pre():
        e(f"v_lshlrev_b32 {t(14)}, 6, v{vU}\nv_add_u32 {t(14)}, {L_LS}, {t(14)}\ns_mov_b32 s42, 0x00010001\ns_mov_b32 s43, 0x00010001\ns_mov_b64 exec, s[42:43]\n{LOCCMP}")
    def ml_store(have_f):
        if not have_f: e(f"ds_read_b128 {R(T,4)}, v{lMR}")
        for i in range(4):
            e(f"ds_read_b128 {R(T+16+4*i,4)}, {t(14)} offset:{16*i}")
        if not have_f:
            e("s_waitcnt lgkmcnt(4)")
            fweights()
        e(f"v_min_u32 {t(8)}, -2, {t(8)}\ns_waitcnt lgkmcnt(0)")
        for i in range(4):
            e(f"v_pk_add_f32 {R(T+16+4*i,2)}, {R(T+16+4*i,2)}, {R(T+18+4*i,2)}")
        e(f"""
        v_pk_mul_f32 {R(T+16,2)}, {R(T+16,2)}, {R(T,2)} op_sel_hi:[1,0]
        v_pk_fma_f32 {R(T+16,2)}, {R(T+20,2)}, {R(T,2)}, {R(T+16,2)} op_sel:[0,1,0] op_sel_hi:[1,1,1]
        v_pk_fma_f32 {R(T+16,2)}, {R(T+24,2)}, {R(T+2,2)}, {R(T+16,2)} op_sel_hi:[1,0,1]
        v_pk_fma_f32 {R(T+16,2)}, {R(T+28,2)}, {R(T+2,2)}, {R(T+16,2)} op_sel:[0,1,0] op_sel_hi:[1,1,1]
        v_add_f32 {t(9)}, {t(16)}, {t(17)}
        v_min_u32 {t(9)}, -2, {t(9)}
        """)
        lstore([f"global_store_dword v{vMP}, {t(8)}, {sWS}", f"global_store_dword v{vMP}, {t(9)}, {sWS} offset:256"])
        e("s_mov_b64 exec, -1")
    def oflag(L):
        gprep(1, True)
        gflag(0)
        e("s_mov_b64 exec, -1")
    def ml_issue():
        e(f"global_load_dword {t(8)}, v{vML}, {sWS} sc1\nglobal_load_dword {t(13)}, v{vML}, {sWS} offset:256 sc1")
    OPS1 = [oV + 4 * i for i in range(8)]
    OPS0 = [oW2 + 4 * i for i in range(7)] + [oWO]

    WL = lambda m: ['', f'global_load_dword {t(63)}, v{vJ}, {sWS}', f'global_load_dword {t(63)}, v{vJ}, {sWS} nt', f'global_load_dword {t(63)}, v{vJ}, {sWS} sc1'][m]
    def front_loader():
        e("L_role1:")
        ids()
        e(f"v_mov_b32 v{vZERO}, 0")
        loader_addr()
        e("s_barrier")
        seq = [("q", i) for i in range(4)]
        cnt = {}
        for ch in ORDERS[cfg.order] + ("r" * 6 if cfg.w2pos == 0 else "") + "x":
            seq.append((ch, cnt.get(ch, 0))); cnt[ch] = cnt.get(ch, 0) + 1
        marks = [max(i for i, x in enumerate(seq) if x[0] == k) for k in "qKV"]
        names = ["A_in", "K_in", "V_in"]
        extra = {"A_in": ["A_pub"], "K_in": ["q_in", "P_out"], "V_in": []}
        wt = [0 if ((k == "o" and c >= 2 and not cfg.hitw) or k in "xr") else 1 for k, c in seq]
        landed = -1
        nsig = 0
        def signals():
            nonlocal nsig
            while nsig < 3 and marks[nsig] <= landed:
                lsignal(nsig + 1)
                g.stamp(names[nsig])
                for x in extra[names[nsig]]: g.stamp(x)
                nsig += 1
        e(f"s_lshl_b32 s48, {sJ}, 2\ns_add_u32 s48, s48, {L_FL}\nv_mov_b32 {t(59)}, s48")
        def lsetup():
            e(f"s_load_dword {sT}, {sWS}, {W_EPOCH}")
            for _ in setup(1): pass
            e(f"""
            s_lshr_b32 s48, s2, 6
            s_lshl_b32 s48, s48, 14
            s_and_b32 s49, s2, 63
            s_lshl_b32 s49, s49, 7
            s_add_u32 s48, s48, s49
            s_add_u32 s48, s48, {W_PROBE}
            s_add_u32 s78, s24, s48
            s_addc_u32 s79, s25, 0
            s_mov_b32 s84, 0
            """)
            e("s_waitcnt lgkmcnt(0)")
            tags(True)
        g.stamp("setup")
        save = g.cur; g.cur = []; lsetup(); pend = g.cur; g.cur = save
        def drip(n):
            k = min(n, len(pend))
            while k < len(pend) and (pend[k].split()[0] in ("s_addc_u32", "v_cndmask_b32", "s_cselect_b32") or pend[k-1].split()[0].startswith("v_cmp")): k += 1
            g.cur.extend(pend[:k]); del pend[:k]
        for i in range(4, len(seq)):
            j, acc = i, wt[i]
            while j > 0 and acc + wt[j-1] <= (cfg.win if i <= marks[1] + cfg.vfrom else cfg.winv if i <= marks[2] else cfg.wtail):
                j -= 1; acc += wt[j]
            if i == marks[2] + 1 + cfg.vsig and landed < marks[2]:
                e(f"s_waitcnt vmcnt({cfg.vsig})")
                landed = marks[2]
                signals()
            if i == 4 and cfg.hold < 4:
                drip(cfg.chunk * 4)
                j = max(j, 4 - cfg.hold)
            ins = item(*seq[i]) if seq[i][0] != "x" else f"global_load_dword {t(14)}, v{vXO}, {sX}"
            if j - 1 > landed:
                e(f"s_waitcnt vmcnt({i - j})")
            e(ins)
            if cfg.ldbg:
                e(f"s_memrealtime s[92:93]\ns_waitcnt lgkmcnt(0)\nv_writelane_b32 v{vst2}, s92, {i}")
            landed = max(landed, j - 1)
            signals()
            drip(cfg.chunk * (3 if i == 4 else 1))
        while nsig < 3:
            landed = marks[nsig]
            e(f"s_waitcnt vmcnt({len(seq) - 1 - landed})")
            signals()
        drip(10000)
        nopoll(); nopoll()
        e(f"s_waitcnt vmcnt(0)\nv_lshlrev_b32 v{vXR}, 16, {t(14)}\nv_and_b32 v{vXR+1}, 0xffff0000, {t(14)}")

    def front_role0():
        lc, lc2, lc3, lc4 = g.L("Lc"), g.L("Lc"), g.L("Lc"), g.L("Lc")
        e("L_role0:")
        if cfg.prio: e("s_setprio 2")
        ids()
        e(f"""
        v_mov_b32 v{vZERO}, 0
        v_lshlrev_b32 {t(12)}, 2, v{vI}
        v_add_u32 {t(12)}, {L_FL}, {t(12)}
        ds_write_b32 {t(12)}, v{vZERO}
        s_waitcnt lgkmcnt(0)
        global_load_dword {t(14)}, v{vXO}, {sX}
        global_load_dword {t(15)}, v{vXO}, {sX} offset:2048
        v_mov_b32 {t(8)}, -1
        v_mov_b32 {t(9)}, -1
        v_mov_b32 {t(10)}, -1
        v_mov_b32 {t(11)}, -1
        v_lshlrev_b32 {t(13)}, 4, v{vL}
        v_mov_b32 {t(5)}, 0
        s_cmp_lt_u32 {sW}, 2
        s_cbranch_scc1 {lc}
        s_lshl_b32 s48, {sSL}, 10
        s_and_b32 s49, {sW}, 1
        s_lshl_b32 s49, s49, {int(math.log2(O_LS))}
        s_add_u32 s48, s48, s49
        s_add_u32 s48, s48, {W_O}
        v_add_u32 v{vJ}, s48, {t(13)}
        global_store_dwordx4 v{vJ}, {R(T+8,4)}, {sWS} sc1
        {'' if cfg.xpre else f's_branch {lc3}'}
        s_and_b32 s48, {sR}, 15
        s_cbranch_scc1 {lc3}
        s_and_b32 s49, {sW}, 1
        s_mul_i32 s49, s49, {2 * X_STRIDE}
        s_lshl_b32 s48, {sG}, 8
        s_add_u32 s48, s48, s49
        s_lshl_b32 s49, {sR}, 3
        s_add_u32 s48, s48, s49
        s_add_u32 s48, s48, {W_X0 + X_HINT}
        v_lshrrev_b32 {t(12)}, 3, v{vL}
        v_and_b32 {t(13)}, 0x70, {t(13)}
        v_lshl_add_u32 {t(12)}, {t(12)}, 11, {t(13)}
        v_add_u32 {t(12)}, s48, {t(12)}
        global_store_dwordx4 {t(12)}, {R(T+8,4)}, {sWS} sc1
        v_add_u32 {t(12)}, {X_STRIDE}, {t(12)}
        global_store_dwordx4 {t(12)}, {R(T+8,4)}, {sWS} sc1
        s_branch {lc3}
        {lc}:
        v_bfe_u32 {t(12)}, v{vL}, 3, 1
        v_lshlrev_b32 {t(12)}, 13, {t(12)}
        v_and_b32 {t(7)}, 0x70, {t(13)}
        v_add_u32 {t(12)}, {t(12)}, {t(7)}
        s_cmp_eq_u32 {sW}, 1
        s_cbranch_scc1 {lc2}
        s_lshl_b32 s48, {sHI}, 14
        s_lshl_b32 s49, {sLO}, 10
        s_add_u32 s48, s48, s49
        s_lshl_b32 s49, {sG}, 7
        s_add_u32 s48, s48, s49
        s_add_u32 s48, s48, {W_X0}
        s_mov_b32 s49, {X_STRIDE}
        v_mad_u32_u24 {t(6)}, v{vU}, s49, {t(12)}
        v_add_u32 {t(6)}, s48, {t(6)}
        global_store_dwordx4 {t(6)}, {R(T+8,4)}, {sWS} sc1
        s_branch {lc4}
        {lc2}:
        s_lshr_b32 s48, s2, 6
        s_lshl_b32 s48, s48, 14
        s_and_b32 s49, s2, 63
        s_lshl_b32 s49, s49, 7
        s_add_u32 s48, s48, s49
        s_add_u32 s48, s48, {W_PROBE}
        v_add_u32 {t(12)}, s48, {t(12)}
        s_mov_b64 exec, 0xffff
        global_store_dwordx4 {t(12)}, {R(T+8,4)}, {sWS} sc1
        s_mov_b64 exec, -1
        s_lshl_b32 s48, {sG}, 10
        s_and_b32 s49, {sR}, 1
        s_lshl_b32 s49, s49, {int(math.log2(ML_LS))}
        s_add_u32 s48, s48, s49
        s_add_u32 s48, s48, {W_ML}
        v_add_u32 v{vJ}, s48, {t(13)}
        s_cmp_gt_u32 {sR}, 1
        s_cbranch_scc1 {lc3}
        global_store_dwordx4 v{vJ}, {R(T+8,4)}, {sWS} sc1
        s_branch {lc3}
        {lc4}:
        s_lshl_b32 s48, {sG}, 16
        s_mul_i32 s49, {sR}, {11*128}
        s_add_u32 s48, s48, s49
        s_add_u32 s48, s48, {W_QP}
        v_lshlrev_b32 {t(12)}, 7, v{vI}
        v_add_u32 v{vJ}, s48, {t(12)}
        s_lshl_b32 s48, {sG}, 11
        s_add_u32 s48, s48, {W_IND}
        v_add_u32 {t(12)}, s48, {t(12)}
        v_cmp_gt_u32 vcc, 16, v{vL}
        s_cmp_eq_u32 {sR}, 0
        s_cselect_b32 s42, 0xffff0000, 0
        s_or_b32 s42, s42, 0x7ff
        s_mov_b32 s43, 0
        v_cndmask_b32 v{vJ}, {t(12)}, v{vJ}, vcc
        s_mov_b64 exec, s[42:43]
        {WL(cfg.w0)}
        s_mov_b64 exec, -1
        v_mov_b32 {t(5)}, v{vJ}
        s_mov_b64 s[90:91], s[42:43]
        s_lshl_b32 s48, {sG}, 15
        s_mul_i32 s49, {sR}, {6*128}
        s_add_u32 s48, s48, s49
        s_add_u32 s48, s48, {W_HP}
        v_add_u32 v{vJ}, s48, {t(13)}
        {lc3}:
        {'s_memrealtime s[100:101]' if cfg.stamps else ''}
        s_load_dword {sT}, {sWS}, {W_EPOCH}
        s_barrier
        """)
        for _ in setup(0): pass
        tr128_addr(L_WQ)
        e(f"s_lshl_b32 s48, {sW}, 2\ns_add_u32 s48, s48, {L_FL + 16}\nv_mov_b32 {t(59)}, s48\ns_waitcnt lgkmcnt(0)")
        tags(True)
        g.stamp("setup")
        e(f"s_waitcnt vmcnt(0)\nds_write_b32 v{lXW}, {t(14)}\nds_write_b32 v{lXW}, {t(15)} offset:640\nv_lshlrev_b32 v{vXR}, 16, {t(14)}\nv_and_b32 v{vXR+1}, 0xffff0000, {t(14)}")
        lsignal(1)
        if cfg.prom:
            lpr = g.L("Lw")
            e(f"s_cmp_lg_u32 {sW}, 0\ns_cbranch_scc1 {lpr}\ns_mov_b64 exec, s[90:91]\nglobal_load_dword {t(63)}, {t(5)}, {sWS}\ns_mov_b64 exec, -1\n{lpr}:")
        lwait(1)
        g.stamp("A_in")
        later = tile_gemv(0, oWQ, vAP, sQB, 0x8000, True, lambda: tr128(oWQ, 4))
        la, lb = g.L("La"), g.L("La")
        e(f"v_mov_b32 v{oWO+4}, {t(32)}\nv_mov_b32 v{oWO+5}, {t(33)}\ns_mov_b32 s89, 0")
        wave_if("eq", 3, la)
        gram(vAS, sQB, True)
        e(f"""
        v_lshlrev_b32 {t(47)}, 7, v{vL}
        v_add_u32 {t(47)}, {sR}, {t(47)}
        s_mov_b64 exec, {(1 << NREP) - 1}
        global_store_byte {t(47)}, v{vTV}, s[76:77] offset:1024
        s_mov_b64 exec, -1
        {la}:
        """)
        g.stamp("A_pub")
        lgo, lp = g.L("Ln"), g.L("Lw")
        def wt_copy():
            ld = g.L("Lt")
            e(f"""
            s_cmp_lg_u32 s89, 0
            s_cbranch_scc1 {ld}
            s_mov_b32 s89, 1
            v_add_u32 v{oWO+6}, 0x8000, v{vAP}
            global_store_dword v{vAP}, v{oWO+4}, {sQX} sc1
            s_mov_b64 exec, 0xffff
            global_store_dword v{oWO+6}, v{oWO+5}, {sQX} sc1
            s_mov_b64 exec, -1
            s_cmp_lg_u32 {sW}, 3
            s_cbranch_scc1 {ld}
            s_mov_b64 exec, {sM20}
            global_store_dwordx4 v{vAS}, {R(oWO+8,4)}, {sQX} sc1
            s_mov_b64 exec, -1
            {ld}:
            """)
        lw = g.L("Lw")
        e(f"""
        s_sub_u32 s48, {sW}, {1 if cfg.xpos else 0}
        s_cmp_gt_u32 s48, {1 if cfg.xpos else 2}
        s_cbranch_scc1 {lw}
        s_mov_b32 s42, 0x01010101
        s_mov_b32 s43, 0x01010101
        s_mov_b64 exec, s[42:43]
        {WL(cfg.w1_)}
        s_mov_b64 exec, -1
        {lw}:
        """)
        e(f"""
        s_mul_i32 s78, s32, 0x01010101
        s_mov_b32 s79, s78
        v_add_u32 {t(44)}, 0x1000, v{vQL}
        v_add_u32 {t(45)}, 0x1000, v{vQC}
        v_lshl_add_u32 {t(46)}, v{vU}, 8, v{vQST}
        v_xor_b32 {t(40)}, v{vU}, v{vI}
        v_lshlrev_b32 {t(40)}, 4, {t(40)}
        v_lshl_add_u32 {t(40)}, v{vI}, 8, {t(40)}
        s_lshl_b32 s48, {sW}, 13
        s_add_u32 s48, s48, {L_K}
        v_add_u32 {t(40)}, s48, {t(40)}
        v_xor_b32 {t(41)}, 64, {t(40)}
        v_xor_b32 {t(42)}, 0x80, {t(40)}
        v_xor_b32 {t(43)}, 0xc0, {t(40)}
        """)
        def walk():
            if not cfg.pads: return
            ld = g.L("Lw")
            for w in range(4):
                nx = g.L("Lw")
                if w < 3: e(f"s_cmp_lg_u32 {sW}, {w}\ns_cbranch_scc1 {nx}")
                e(f"s_call_b64 s[94:95], L_pad{w}")
                if w == 0 and HEAT: e(f"s_call_b64 s[94:95], L_heat{HEATMAX}")
                if w < 3: e(f"s_branch {ld}\n{nx}:")
            e(f"{ld}:")
        if cfg.wpos == 0: walk()
        for k in range(NREP):
            e(f"""
            s_sleep {cfg.dq0 if k == 0 else cfg.dsf}
            s_load_dwordx8 s[80:87], s[76:77], {1024 + k*128}
            s_waitcnt lgkmcnt(0)
            s_xor_b64 s[80:81], s[80:81], s[78:79]
            s_xor_b64 s[82:83], s[82:83], s[78:79]
            s_xor_b64 s[84:85], s[84:85], s[78:79]
            s_xor_b64 s[86:87], s[86:87], s[78:79]
            s_or_b64 s[80:81], s[80:81], s[82:83]
            s_or_b64 s[84:85], s[84:85], s[86:87]
            s_or_b64 s[80:81], s[80:81], s[84:85]
            s_cbranch_scc0 {lgo}
            """)
            if cfg.stamps: e(f"v_writelane_b32 v{g.vst}, {k+1}, 59")
        e(f"{lgo}:")
        if cfg.noq:
            e(f"v_mov_b32 {t(58)}, 3\nds_write_b32 {t(59)}, {t(58)}")
            lwait(3)
            e(f"s_sleep 4\nv_mov_b32 {t(58)}, 1\nds_write_b32 {t(59)}, {t(58)}\ns_sleep 4")
        g.stamp("K_in")
        def issue():
            e(f"v_mov_b32 {t(10)}, v{vTAG}\ns_mov_b64 exec, 0xffffffff\nglobal_load_dword {t(10)}, {t(46)}, {sQB} sc1\ns_mov_b64 exec, -1")
            e(f"global_load_dwordx4 {R(T,4)}, v{vQL}, {sQB} sc1\nglobal_load_dwordx4 {R(T+4,4)}, v{vQC}, {sQB} sc1")
            e(f"global_load_dwordx4 {R(T+16,4)}, {t(44)}, {sQB} sc1\nglobal_load_dwordx4 {R(T+20,4)}, {t(45)}, {sQB} sc1")
            e(f"v_mov_b32 {t(12)}, {hex(f2u(1.0/512))}")
        def body():
            e(f"v_xor_b32 {t(10)}, v{vTAG}, {t(10)}")
            for b_ in (0, 4, 16, 20): xor4(T + b_)
            e(f"v_add_f32_dpp {t(11)}, {t(10)}, {t(10)} row_ror:4 {DPP}")
            e(f"v_or3_b32 {t(8)}, {t(0)}, {t(1)}, {t(2)}\nv_or3_b32 {t(8)}, {t(8)}, {t(3)}, {t(10)}")
            e(f"v_add_f32_dpp {t(11)}, {t(11)}, {t(11)} row_ror:8 {DPP}")
            for b_ in (4, 6, 16, 18, 20, 22):
                e(f"v_or3_b32 {t(8)}, {t(8)}, {t(b_)}, {t(b_+1)}")
            e(f"v_readlane_b32 s65, {t(11)}, 1\nv_readlane_b32 s64, {t(11)}, 0\n{BYTECHK(t(8))}")
            for b_ in (0, 4, 16, 20): swapred(T + b_, "s_nop 1", "")
            e(f"""
            v_mul_f32 {t(13)}, s65, {t(12)}
            v_mov_b32 v{vCS}, {t(4)}
            v_fma_f32 {t(0)}, -{t(13)}, {t(4)}, {t(0)}
            v_fma_f32 {t(16)}, -{t(13)}, {t(20)}, {t(16)}
            v_cvt_pk_bf16_f32 {t(4)}, {t(0)}, {t(0)}
            v_cvt_pk_bf16_f32 {t(5)}, {t(16)}, {t(16)}
            """)
        def onretry():
            lr = g.L("Lt")
            e(f"s_cmp_lt_u32 {sCNT}, {cfg.nloc}\ns_cbranch_scc1 {lr}")
            wt_copy()
            e(f"s_bitcmp1_b32 {sCNT}, 0\ns_cselect_b64 {sQB}, {sWS}, {sQX}\n{lr}:")
        B2 = oW2
        def first2():
            issue()
            e(f"s_sleep {cfg.q2}")
            e(f"v_mov_b32 v{B2+16}, v{vTAG}\ns_mov_b64 exec, 0xffffffff\nglobal_load_dword v{B2+16}, {t(46)}, {sQB} sc1\ns_mov_b64 exec, -1")
            e(f"global_load_dwordx4 {R(B2,4)}, v{vQL}, {sQB} sc1\nglobal_load_dwordx4 {R(B2+4,4)}, v{vQC}, {sQB} sc1")
            e(f"global_load_dwordx4 {R(B2+8,4)}, {t(44)}, {sQB} sc1\nglobal_load_dwordx4 {R(B2+12,4)}, {t(45)}, {sQB} sc1")
            if cfg.wpos: walk()
            e("s_waitcnt vmcnt(5)")
        def second():
            e(f"v_mov_b32 {t(10)}, v{B2+16}")
            for i in range(8):
                e(f"v_mov_b32 {t(i)}, v{B2+i}\nv_mov_b32 {t(16+i)}, v{B2+8+i}")
        if cfg.q2:
            poll(issue, body, 1, onretry=onretry, first=first2, second=second)
        else:
            poll(issue, body, 1, onretry=onretry, heat=walk if cfg.wpos else None)
        e(f"""
        ds_write_b16 v{lQW}, {t(4)}
        ds_write_b16 v{lQW}, {t(5)} offset:640
        s_lshl_b32 s48, {sW}, 8
        s_add_u32 s48, s48, {L_CS}
        v_lshlrev_b32 {t(14)}, 2, v{vL}
        v_add_u32 {t(14)}, s48, {t(14)}
        ds_write_b32 {t(14)}, {t(20)}
        s_lshl_b32 s48, {sXCC}, 8
        v_cmp_ne_u32 vcc, s48, {t(10)}
        s_and_b32 s48, vcc_lo, 0x44444444
        s_cselect_b32 s48, 0, 1
        v_mov_b32 {t(14)}, s48
        ds_write_b32 {t(59)}, {t(14)} offset:16
        """)
        lsignal(2)
        g.stamp("q_in")
        e(RSTD)
        lwait(2, wt_copy)
        e(f"ds_read_b128 {R(T+52,4)}, {t(57)} offset:32")
        for h in range(2):
            for ks in range(4):
                e(f"ds_read_b128 {R(oK + (h*4+ks)*4, 4)}, {t(40+ks)} offset:{h*4096}")
        qk_softmax()
        lsignal(3)
        set_loc(52)
        l1, l2, l3 = g.L("Lt"), g.L("Lt"), g.L("Lt")
        e(f"s_cbranch_scc1 {l1}\n{l2}:")
        g.ool(lambda: (e(f"{l1}:"), wt_copy(), e(f"s_branch {l2}")))
        g.stamp("P_out")
        if cfg.q2: e("s_waitcnt vmcnt(0)")
        lwait(3)
        g.stamp("V_in")
        pv(OPS0, True)
        if cfg.xpos == 1: late_warm()
        lm, lm2 = g.L("Lm"), g.L("Lm")
        wave_if("eq", 1, lm)
        ml_pre()
        ml_store(True)
        e(f"{lm2}:")
        g.ool(lambda: (g.pad(), e(f"{lm}:"), wave_if("eq", 2, lm2), oflag(0), e(f"s_branch {lm2}")))

    def late_warm():
        l1 = g.L("Lx")
        e(f"""
        s_sub_u32 s48, {sW}, {1 if cfg.xpos else 0}
        s_cmp_le_u32 s48, {1 if cfg.xpos else 2}
        s_cbranch_scc1 {l1}
        s_mov_b32 s42, 0x01010101
        s_mov_b32 s43, 0x01010101
        s_mov_b64 exec, s[42:43]
        global_load_dword {t(63)}, v{vJ}, {sWS}
        s_mov_b64 exec, -1
        {l1}:
        """)

    C512 = hex(f2u(1.0/512))
    def program(role):
        g.nst = 1 if cfg.stamps else 0
        g.npoll = 0
        g.npt = 0
        for L in range(2):
            g.fine_on = (L == 1 and cfg.fine == 1)
            if L == 0:
                if role == 0: front_role0()
                else: front_loader()
                g.stamp("O_pub")
                e(f"""
                s_lshr_b32 s48, {sG}, 2
                s_xor_b32 s48, s48, {cfg.selx}
                s_lshl_b32 s88, s48, 13
                v_add_u32 v{vXG}, s88, v{vXG}
                v_add_u32 v{vHNL}, s88, v{vHNL}
                s_setprio 1
                s_waitcnt vmcnt(0)
                s_barrier
                """)
            else:
                g.stamp("A_in")
                e(f"ds_write_b32 v{lXW}, {t(14)}\nv_lshlrev_b32 v{vXR}, 16, {t(14)}\nv_and_b32 v{vXR+1}, 0xffff0000, {t(14)}")
                tags()
                if role == 0:
                    seg([], lambda: tile_gemv(L, oWQ, vAP, sQB, 0x8000, False, None), "A_pub")
                else:
                    seg([(WEQ(7), None, lambda: gram(vAS, sQB, False)),
                         (WEQ(6), lambda: gprep(3), lambda: gflag(cfg.dfq))], None, "A_pub")
                def issue():
                    e(f"global_load_dword {t(10)}, v{vQST}, {sQB} sc1\nglobal_load_dwordx4 {R(T,4)}, v{vQL}, {sQB} sc1\nv_mov_b32 {t(12)}, {C512}")
                def body():
                    e(f"v_xor_b32 {t(10)}, v{vTAG}, {t(10)}")
                    xor4(T)
                    e(f"v_add_f32_dpp {t(11)}, {t(10)}, {t(10)} row_ror:4 {DPP}")
                    e(f"v_or3_b32 {t(8)}, {t(0)}, {t(1)}, {t(2)}\nv_or3_b32 {t(8)}, {t(8)}, {t(3)}, {t(10)}")
                    e(f"v_add_f32_dpp {t(11)}, {t(11)}, {t(11)} row_ror:8 {DPP}")
                    swapred(T, BYTECHK(t(8)) + f"\nv_mul_f32_dpp {t(13)}, {t(11)}, {t(12)} row_newbcast:1 {DPP}", "")
                    e(f"v_fma_f32 {t(0)}, -{t(13)}, v{vCS}, {t(0)}\nv_cvt_pk_bf16_f32 {t(4)}, {t(0)}, {t(0)}")
                poll(issue, body, 0, heat=(lambda: heat_w(2, 0, cfg.hq)) if role == 0 else None)
                e(f"ds_write_b16 v{lQW}, {t(4)}")
                g.stamp("q_in")
                if role == 0: e(RSTD.replace(f"v_mul_f32 {t(12)}, s64, {t(12)}", f"v_mul_f32_dpp {t(12)}, {t(11)}, {t(12)} row_newbcast:0 {DPP}"))
                g.fs("q<")
                e("s_waitcnt lgkmcnt(0)\ns_barrier")
                g.fs("qb")
                if role == 0: qk_softmax()
                else:
                    heat_w(7, 0, cfg.hk)
                    if cfg.epos:
                        lz = g.L("Lz")
                        e(f"s_xor_b32 s48, {sW}, 5\ns_or_b32 s48, s48, s2\ns_cbranch_scc1 {lz}\ns_mov_b64 exec, 1\nglobal_store_dword v{vZERO}, v{vTV}, {sWS} offset:{W_EPOCH} sc1\ns_mov_b64 exec, -1\n{lz}:")
                g.stamp("P_out")
                g.stamp("V_in")
                if role == 1:
                    seg([], lambda: pv(OPS1, False), "O_pub")
                else:
                    seg([(WEQ(1), ml_pre, lambda: ml_store(False)),
                         (WEQ(2), lambda: gprep(4, True), lambda: gflag(cfg.dfo))], lambda: heat_w(0, 0, cfg.hp), "O_pub")
            if cfg.fine == 2:
                g.fine_on = (L == 0)
                g.fs("ml")
            g.stamp("ml_in")
            def issue():
                ml_issue()
                e(f"global_load_dwordx4 {R(T,4)}, v{vOL}, {sWS} sc1\nglobal_load_dwordx4 {R(T+4,4)}, v{vOL}, {sWS} offset:1024 sc1")
            rest = [(k, c) for k in "12" if k not in ORDERS[cfg.order] for c in range(2)] if (L == 0 and role == 1) else []
            NR = len(rest)
            def first():
                issue()
                if rest:
                    delay(cfg.drest)
                    for it in rest: e(item(*it))
                if L == 0:
                    tr_wo()
                    e("s_waitcnt lgkmcnt(0)")
                elif role == 0: heat_w(2, 0, cfg.ho)
                hint_far(2 * L, role)
            def body():
                e(f"""
                s_waitcnt vmcnt({2 + NR})
                v_max_f32_dpp {t(9)}, {t(8)}, {t(8)} row_ror:1 {DPP}
                v_max_u32 {t(14)}, {t(8)}, {t(13)}
                s_nop 0
                v_max_f32_dpp {t(9)}, {t(9)}, {t(9)} row_ror:2 {DPP}
                s_waitcnt vmcnt({1 + NR})
                {MFMA} {R(T+16,4)}, {R(T,4)}, {R(oWO,4)}, 0
                v_max_f32_dpp {t(9)}, {t(9)}, {t(9)} row_ror:4 {DPP}
                v_sub_f32 {t(12)}, {t(8)}, {t(9)}
                {MFMA} {R(T+20,4)}, {R(T,4)}, {R(oWO+8,4)}, 0
                v_exp_f32 {t(12)}, {t(12)}
                s_waitcnt vmcnt({NR})
                {MFMA} {R(T+16,4)}, {R(T+4,4)}, {R(oWO+4,4)}, {R(T+16,4)}
                v_mul_f32 {t(9)}, {t(12)}, {t(13)}
                v_max3_u32 {t(10)}, {t(0)}, {t(1)}, {t(2)}
                {MFMA} {R(T+20,4)}, {R(T+4,4)}, {R(oWO+12,4)}, {R(T+20,4)}
                v_add_f32_dpp {t(9)}, {t(9)}, {t(9)} row_ror:1 {DPP}
                v_max3_u32 {t(11)}, {t(3)}, {t(4)}, {t(5)}
                v_max3_u32 {t(10)}, {t(10)}, {t(6)}, {t(7)}
                v_add_f32_dpp {t(9)}, {t(9)}, {t(9)} row_ror:2 {DPP}
                v_max3_u32 {t(10)}, {t(10)}, {t(11)}, {t(14)}
                v_cmp_eq_u32 vcc, -1, {t(10)}
                v_add_f32_dpp {t(9)}, {t(9)}, {t(9)} row_ror:4 {DPP}
                v_mul_f32_dpp {t(10)}, {t(12)}, {t(16)} row_newbcast:0 {DPP}
                v_rcp_f32 {t(9)}, {t(9)}
                """)
            poll(issue, body, 0, first=first)
            hint_send(2 * L, role)
            for r in range(1, 4):
                e(f"v_fmac_f32_dpp {t(10)}, {t(12)}, {t(16+r)} row_newbcast:{r} {DPP}")
            e(f"v_mul_f32_dpp {t(11)}, {t(12)}, {t(20)} row_newbcast:0 {DPP}")
            e(f"v_mul_f32 {t(10)}, {t(10)}, {t(9)}")
            e(f"v_fmac_f32_dpp {t(11)}, {t(12)}, {t(21)} row_newbcast:1 {DPP}")
            e(f"ds_write_b32 v{lCW}, {t(10)}")
            for r in range(2, 4):
                e(f"v_fmac_f32_dpp {t(11)}, {t(12)}, {t(20+r)} row_newbcast:{r} {DPP}")
            e(f"v_mul_f32 {t(11)}, {t(11)}, {t(9)}")
            e(f"ds_write_b32 v{lCW}, {t(11)} offset:{32*80}")
            if L == 0 and role == 0 and cfg.xpos == 2: late_warm()
            g.stamp("O_in")
            def cfin():
                for i in range(4):
                    e(f"ds_read_b128 {R(T+i*4,4)}, v{lCR} offset:{i*16}")
                e("s_waitcnt lgkmcnt(2)")
                e(f"v_pk_add_f32 {R(T,2)}, {R(T,2)}, {R(T+4,2)}\nv_pk_add_f32 {R(T+2,2)}, {R(T+2,2)}, {R(T+6,2)}")
                e(f"v_pk_add_f32 {R(T,2)}, {R(T,2)}, {R(T+2,2)}")
                e("s_waitcnt lgkmcnt(0)")
                e(f"""
                v_pk_add_f32 {R(T+8,2)}, {R(T+8,2)}, {R(T+12,2)}
                v_pk_add_f32 {R(T+10,2)}, {R(T+10,2)}, {R(T+14,2)}
                v_pk_add_f32 {R(T,2)}, {R(T,2)}, {R(T+8,2)}
                v_pk_add_f32 {R(T,2)}, {R(T,2)}, {R(T+10,2)}
                v_add_f32 {t(0)}, {t(0)}, {t(1)}
                s_nop 1
                v_mov_b32_dpp {t(1)}, {t(0)} quad_perm:[0,0,2,2] {DPP}
                v_mov_b32_dpp {t(2)}, {t(0)} quad_perm:[1,1,3,3] {DPP}
                v_cvt_pk_bf16_f32 {t(0)}, {t(1)}, {t(2)}
                v_min_u32 {t(0)}, -2, {t(0)}
                global_store_dword v{vCP}, {t(0)}, {sXI[2*L]} sc1
                """)
            def adv():
                if L == 0:
                    e(f"v_add_u32 v{vOL}, {O_LS}, v{vOL}\nv_add_u32 v{vML}, {ML_LS}, v{vML}")
                    e(f"v_add_u32 v{vMP}, {ML_LS}, v{vMP}" if role == 0 else f"v_add_u32 v{vOP}, {O_LS}, v{vOP}")
            def r1_reads():
                adv()
                tr_v(OPS1)
                if "1" in ORDERS[cfg.order]: tr_w1()
                e(f"""
                v_mov_b32 {t(59)}, {L_FL + 32}
                ds_read_b128 {R(T+52,4)}, {t(59)}
                s_lshl_b32 s48, {sJ}, 8
                s_add_u32 s48, s48, {L_CS}
                v_lshlrev_b32 {t(59)}, 2, v{vL}
                v_add_u32 {t(59)}, s48, {t(59)}
                ds_read_b32 v{vCS}, {t(59)}
                s_waitcnt lgkmcnt(0)
                """)
                set_loc(52)
            if role == 0:
                sw = selwait if L == 0 else (lambda: None)
                paths = [(WEQ(0), None, lambda: (cfin(), adv(), sw())),
                         (WEQ(3), lambda: (adv(), hprep()), lambda: (delay(cfg.dhx), hint_wait(2 * L, False), delay(cfg.dx + (cfg.dx0 if L == 0 else 0))), sw)]
                if L == 0 and cfg.probe == 2: paths.append((WEQ(1), None, lambda: (probe1(), adv(), sw())))
                seg(paths, lambda: (adv(), sw()), "C_pub")
            elif L == 0:
                seg([(WEQ(7), None, lambda: (delay(cfg.dr1), r1_reads(), selwait()))],
                    lambda: (delay(cfg.dr1), w2_rest() if cfg.w2pos == 2 else None, r1_reads(), selwait()), "C_pub")
            else:
                seg([], None, "C_pub")
            g.stamp("xh_in")
            xgather(2 * L, 0, role)
            e(f"ds_write_b32 v{lXW}, {t(14)}\nv_lshlrev_b32 v{vXR}, 16, {t(14)}\nv_and_b32 v{vXR+1}, 0xffff0000, {t(14)}")
            g.stamp("x_in")
            if role == 1:
                paths = [(f"s_lshr_b32 s48, {sW}, 1\ns_sub_u32 s48, s48, 2\ns_or_b32 s48, s48, s92\ns_cmp_eq_u32 s48, 0", None,
                          lambda: tile_gemv(L, oW1, vDP, sWS, 0x4000, False, tr_w1 if (L == 0 and "1" not in ORDERS[cfg.order]) else None))]
                if L == 0 and cfg.probe == 1: paths.append((WEQ(7), None, lambda: probe("s84", 0)))
                seg(paths, None, "D_pub")
            else:
                seg([(f"s_xor_b32 s48, {sW}, 2\ns_or_b32 s48, s48, s92\ns_cmp_eq_u32 s48, 0", None, lambda: gram(vDS, sWS, False)),
                     (WEQ(3), lambda: gprep(2 + 3 * L), lambda: gflag(cfg.dfh + ((5 if "1" in ORDERS[cfg.order] else 30) if L == 0 else 0)))], None, "D_pub")
            le = g.L("Le")
            le7 = g.L("Le")
            if role == 1:
                wave_if("lt", 7, le7)
                def o():
                    g.pad()
                    e(f"{le7}:")
                    if L == 0 and cfg.probe == 1:
                        probe("s85", 0x2000)
                        e(f"""
                        s_cmp_lt_u32 s85, s84
                        s_cselect_b32 s48, 0x2000, 0
                        v_mov_b32 {t(0)}, s48
                        v_mov_b32 {t(1)}, {L_FL + 48}
                        ds_write_b32 {t(1)}, {t(0)}
                        s_sub_u32 s48, s48, s88
                        v_add_u32 v{vXG}, s48, v{vXG}
                        v_add_u32 v{vHNL}, s48, v{vHNL}
                        """)
                        if cfg.stamps: e(f"v_writelane_b32 v{g.vst}, s84, 61\nv_writelane_b32 v{g.vst}, s85, 62")
                    elif cfg.hh:
                        delay(25); heat(cfg.hh)
                    e(f"s_branch {le}")
                g.ool(o)
            def issue():
                e(f"global_load_dword {t(10)}, v{vHST}, {sWS} sc1\nglobal_load_dword {t(0)}, v{vHL}, {sWS} sc1\nglobal_load_dword {t(1)}, v{vHL}, {sWS} offset:256 sc1")
                if L == 0:
                    e(f"global_load_dword {t(2)}, v{vHC}, {sWS} sc1\nglobal_load_dword {t(3)}, v{vHC}, {sWS} offset:256 sc1")
                e(f"v_mov_b32 {t(12)}, {C512}")
            def body():
                e(f"""
                v_xor_b32 {t(10)}, v{vTAG}, {t(10)}
                v_xor_b32 {t(0)}, v{vTAG}, {t(0)}
                v_xor_b32 {t(1)}, v{vTAG}, {t(1)}
                v_add_f32_dpp {t(11)}, {t(10)}, {t(10)} row_ror:4 {DPP}
                v_add_f32 {t(4)}, {t(0)}, {t(1)}
                v_add_f32 {t(5)}, {t(0)}, {t(1)}
                v_add_f32_dpp {t(11)}, {t(11)}, {t(11)} row_ror:8 {DPP}
                v_or3_b32 {t(8)}, {t(0)}, {t(1)}, {t(10)}
                v_permlane32_swap_b32 {t(4)}, {t(5)}
                """)
                if L == 0:
                    e(f"""
                    v_xor_b32 {t(2)}, v{vTAG}, {t(2)}
                    v_xor_b32 {t(3)}, v{vTAG}, {t(3)}
                    v_add_f32 {t(6)}, {t(2)}, {t(3)}
                    v_add_f32 {t(7)}, {t(2)}, {t(3)}
                    v_or3_b32 {t(8)}, {t(8)}, {t(2)}, {t(3)}
                    s_nop 0
                    v_permlane32_swap_b32 {t(6)}, {t(7)}
                    v_add_f32 v{vCS1}, {t(6)}, {t(7)}
                    """)
                e(f"""
                v_mul_f32_dpp {t(13)}, {t(11)}, {t(12)} row_newbcast:1 {DPP}
                v_mul_f32_dpp {t(12)}, {t(11)}, {t(12)} row_newbcast:0 {DPP}
                {BYTECHK(t(8))}
                v_fma_f32 {t(12)}, -{t(13)}, {t(13)}, {t(12)}
                v_add_f32 {t(0)}, {t(4)}, {t(5)}
                v_max_f32 {t(12)}, 0, {t(12)}
                v_add_f32 {t(12)}, {hex(f2u(1e-5))}, {t(12)}
                v_rsq_f32 {t(12)}, {t(12)}
                v_fma_f32 {t(0)}, -{t(13)}, v{vCS1}, {t(0)}
                """)
            def first():
                issue()
                if L == 0 and role == 0:
                    tr128_addr(L_W2)
                    tr128(oW2, 7)
                hint_far(2 * L + 1, role)
                e("s_waitcnt vmcnt(0)")
            poll(issue, body, 0, first=first)
            hint_send(2 * L + 1, role)
            e(f"""
            v_mul_f32 {t(0)}, {t(0)}, {t(12)}
            v_mul_f32 {t(1)}, {hex(f2u(-math.log2(math.e)))}, {t(0)}
            v_exp_f32 {t(1)}, {t(1)}
            s_nop 0
            v_add_f32 {t(1)}, 1.0, {t(1)}
            v_rcp_f32 {t(1)}, {t(1)}
            s_nop 0
            v_mul_f32 {t(0)}, {t(0)}, {t(1)}
            v_cvt_pk_bf16_f32 {t(0)}, {t(0)}, {t(0)}
            ds_write_b16 v{lHW}, {t(0)}
            """)
            if L == 0 and role == 0 and cfg.xpos == 0: late_warm()
            e(f"{le}:")
            g.stamp("h_in")
            lf = f"L_fin{role}"
            FIN = (lambda: e(f"s_cmp_lg_u32 {sG}, {sLO}\ns_cbranch_scc1 {lf}")) if L == 1 else None
            def efin():
                for ks in range(7):
                    e(f"ds_read_b128 {R(T+ks*4,4)}, v{lHR} offset:{ks*64}")
                for ks in range(7):
                    e(f"s_waitcnt lgkmcnt({6-ks})")
                    e(f"{MFMA} {R(T+32,4)}, {R(T+ks*4,4)}, {R(oW2+ks*4,4)}, {'0' if ks == 0 else R(T+32,4)}")
                e(f"""
                s_nop 6
                s_mov_b64 exec, 0xffff
                v_mov_b32_dpp {t(33)}, {t(32)} quad_perm:[0,0,2,2] {DPP}
                v_mov_b32_dpp {t(34)}, {t(32)} quad_perm:[1,1,3,3] {DPP}
                v_cvt_pk_bf16_f32 {t(32)}, {t(33)}, {t(34)}
                v_min_u32 {t(32)}, -2, {t(32)}
                global_store_dword v{vEP}, {t(32)}, {sXI[2*L+1]} sc1
                s_mov_b64 exec, -1
                """)
                if L == 0: fin_sel()
            ref = L == 0 and cfg.probe == 2 and cfg.refine
            def fin_sel():
                apply_sel()
                if ref: selwait(1)
            if role == 0:
                seg([], efin, "E_pub", post=FIN)
            else:
                cond = WEQ(7) if L == 0 else f"s_xor_b32 s48, {sG}, {sLO}\ns_xor_b32 s49, {sW}, 7\ns_or_b32 s48, s48, s49\ns_cmp_eq_u32 s48, 0"
                paths = [(cond, hprep, lambda: (delay(cfg.dhy), hint_wait(2 * L + 1, False), delay(cfg.dy)), lambda: selwait(1) if ref else None)]
                if ref: paths.append((WEQ(6), None, lambda: (probe2(), selwait(1))))
                if L == 1 and cfg.wb:
                    paths.append((f"s_xor_b32 s48, {sR}, 9\ns_xor_b32 s49, {sW}, 5\ns_or_b32 s48, s48, s49\ns_cmp_eq_u32 s48, 0", None,
                                  lambda: (delay(cfg.wb - 1), e("buffer_wbl2 sc1"))))
                seg(paths, fin_sel if L == 0 else None, "E_pub", post=FIN)
            if L == 0: g.stamp("yh_in")
            else: e(f"s_cmp_lg_u32 {sW}, {sLO}\ns_cbranch_scc1 {lf}")
            xgather(2 * L + 1, 0, role)
        e(f"s_mov_b32 s42, 0x00ff00ff\ns_mov_b32 s43, 0x00ff00ff\ns_mov_b64 exec, s[42:43]\nglobal_store_dword v{vXO}, {t(14)}, {sOUT} {['', 'sc1', 'sc0 sc1', 'nt'][cfg.osc]}")
        if role == 0 and cfg.epos == 0:
            e(f"""
            s_cmp_lg_u32 {sR}, 0
            s_cbranch_scc1 L_fin0
            s_mov_b64 exec, 1
            global_store_dword v{vZERO}, v{vTV}, {sWS} offset:{W_EPOCH}
            """)
        e(f"L_fin{role}:")
        if cfg.stamps:
            e("s_mov_b64 exec, -1")
            g.stamp("end"); g.stamp()
            e(f"""
            s_lshl_b32 s48, s2, 3
            s_add_u32 s48, s48, {sW}
            s_lshl_b32 s48, s48, 8
            s_add_u32 s48, s48, {W_STAMP}
            v_lshlrev_b32 {t(0)}, 2, v{vL}
            v_add_u32 {t(0)}, s48, {t(0)}
            v_writelane_b32 v{g.vst}, {sLOC}, 63
            v_writelane_b32 v{g.vst}, s100, 60
            global_store_dword {t(0)}, v{g.vst}, {sWS}
            v_add_u32 {t(0)}, 0x100000, {t(0)}
            global_store_dword {t(0)}, v{vst2}, {sWS}
            """)
        if cfg.fixdur:
            if cfg.fixwg >= 0: e(f"s_cmp_lg_u32 s2, {cfg.fixwg}\ns_cbranch_scc1 L_end")
            e(f"""
            L_fix{role}:
            s_memrealtime s[94:95]
            s_waitcnt lgkmcnt(0)
            s_sub_u32 s94, s94, s98
            s_cmp_lt_u32 s94, {cfg.fixdur}
            s_cbranch_scc1 L_fix{role}
            """)
        e("s_endpgm")

    program(0)
    program(1)
    if HEAT: g.ool(heat_block)
    def fixpads(txt):
        n = len(g.pads)
        for k in reversed(range(n)):
            txt = txt.replace(f"PADJ{k}\n", (f"s_branch L_pad{k+4}" if k + 4 < n else "s_setpc_b64 s[94:95]") + "\n")
        if cfg.nont: txt = '\n'.join(l[:-3] if (l.endswith(' nt') and 'lds' in l) else l for l in txt.split('\n'))
        return txt
    nv = (g.nv + 7) // 8 * 8
    src = HEADER + f"; @launch grid=(256,1,1) block=(512,1,1) lds={LDS_BYTES}\n"
    if cfg.stamps: src += "; stamps: " + " ".join(g.names) + "\n"
    if cfg.fine: src += "; fine: " + " ".join(g.fnames) + "\n"
    src += f""".amdgcn_target "amdgcn-amd-amdhsa--gfx950"
.text
.globl {NAME}_kernel
.p2align 8
.type {NAME}_kernel,@function
{NAME}_kernel:
""" + fixpads("\n".join(g.o + g.tail)) + f"""
L_end:
s_endpgm
L_pad:
.fill (33024 - (L_pad - {NAME}_kernel)) / 4, 4, 0xbf810000
.section .rodata,"a"
.p2align 6
.amdhsa_kernel {NAME}_kernel
  .amdhsa_next_free_vgpr {nv}
  .amdhsa_next_free_sgpr 102
  .amdhsa_accum_offset {nv}
  .amdhsa_group_segment_fixed_size 0
  .amdhsa_kernarg_size 88
  .amdhsa_user_sgpr_count 2
  .amdhsa_user_sgpr_kernarg_segment_ptr 1
  .amdhsa_system_sgpr_workgroup_id_x 1
.end_amdhsa_kernel
"""
    return src, g

if __name__ == "__main__":
    cfg = Cfg()
    out = "cdna_kernels/%s.s" % NAME
    for a in sys.argv[1:]:
        k, v = a.split("=")
        if k == "out": out = v
        else: setattr(cfg, k, type(getattr(cfg, k))(int(v)))
    src, g = gen(cfg)
    open(out, "w").write(src)
    print(g.fixname, "vgprs", g.nv, "lines", len(g.o) + len(g.tail), "stamps", g.nst, "polls", g.npoll)
```

```python
import sys, math, struct

NAME = "interleave_layers__sliding_block_cached__dense_activation_silu__decode"
HEADER = open("cdna_kernels/%s.s.ref" % NAME).read().split("; Override launch")[0]

def f2u(x): return struct.unpack("<I", struct.pack("<f", x))[0]

class Cfg:
    stamps = 0
    lite = 0
    shift = 0
    osc = 0
    epos = 1
    wb = 0
    otouch = 0
    dot = 1
    cv = 1
    spx = 0; spq = 0; sph = 0; spo = 0
    nont = 0
    fine = 0
    fixdur = 0
    fixwg = -1
    fixat = 0
    force_sc1 = False
    rot = 1
    hgap = 35; hwx = 4; hwy = 4; hpre = 0; hdx = 40; hdy = 20; hpoll = 0; bx = 0; by = 0; bz = 0; fgap = 14; fdep = 4; fpre = 0; fsp = 2; lq = 0; lo_ = 0; lh = 0; hq = 0; ho = 0; hx0 = 95; hx = 0; hh = 0; hk = 0; hp = 0; pads = 1; hsp = 1; fing = 1
    hnt = 0; o0nt = 0; wnt = 0
    w0 = 1; w1_ = 1
    xpos = 0; w2pos = 2; prom = 0; hold = 9; early = 1; chunk = 12
    order = 10
    win = 5
    hitw = 0
    xpre = 1
    wpos = 0
    q2 = 0
    dq0 = 1
    dsf = 3
    dfq = 0; dfo = 50; dfh = 0
    dfp = 20
    dhx = 40; dhy = 40
    dx = 0; dy = 0
    retry_x = 2
    probe = 2
    thr = 480
    refine = 1
    dr1 = 60
    dx0 = 0
    hfar = 0; hfx = 40; hfy = 0
    drest = 70
    selx = 0
    ctouch = 1
    nloc = 8
    prio = 1
    winv = 5; vfrom = 4
    wtail = 5
    ldbg = 0
    noq = 0
    vsig = 4
    setpos = 99

L_WQ, L_V, L_WO, L_W1, L_W2 = 0, 16384, 49152, 81920, 90112
L_K = 118784
L_CR = L_K
L_HS = L_K + 5120
L_XS = L_K + 32768
L_ONES = L_XS + 1280
L_QS = L_ONES + 320
L_PS = L_QS + 1280
L_MS = L_PS + 4096
L_LS = L_MS + 64
L_FL = L_LS + 256
L_CS = L_FL + 64
L_END = L_CS + 1024
LDS_BYTES = 160256
assert L_END <= LDS_BYTES
W_EPOCH = 0
W_ML = 0x002000
W_IND = 0x008000
W_X0 = 0x020000
X_STRIDE = 0x24000
X_HINT = 0x20000
W_PROBE = 0x010000
W_HP = 0x0C0000
W_QP = 0x100000
NREP = 8
W_O = 0x180000
O_LS = 0x40000
ML_LS = 0x2000
QPX = 0x200000
TAGC = 0x3b1d5f27
W_STAMP = 0x800000

class G:
    def __init__(self, cfg):
        self.cfg = cfg
        self.o = []
        self.tail = []
        self.cur = self.o
        self.nv = 0
        self.lab = 0
        self.nst = 0
        self.npoll = 0
        self.names = []
        self.npt = 0
        self.fixname = None
        self.fnames = []
        self.pads = []
        self.fine_on = False
    def e(self, s):
        for ln in s.strip("\n").split("\n"):
            ln = ln.strip()
            if not ln: continue
            self.cur.append(ln if ln.endswith(":") else "    " + ln)
    def ool(self, fn):
        save = self.cur
        self.cur = []
        fn()
        self.tail += self.cur
        self.cur = save
    def v(self, n=1, al=1):
        if n >= 2: al = max(al, 2)
        self.nv = (self.nv + al - 1) // al * al
        r = self.nv
        self.nv += n
        return r
    def L(self, p="L"):
        self.lab += 1
        return f"{p}_{self.lab}"
    def stamp(self, name=""):
        self.npt += 1
        if self.cfg.fixat and self.npt == self.cfg.fixat:
            self.e("s_memrealtime s[98:99]"); self.fixname = name
        if not self.cfg.stamps: return
        if self.cfg.lite and name not in ("start", "ml_in", "end", ""): return
        i = self.nst
        self.nst += 1
        if len(self.names) <= i: self.names.append(name)
        assert self.names[i] == name, (i, name, self.names[i])
        cur = 96 + 2 * (i & 1)
        prev = 96 + 2 * ((i + 1) & 1)
        if i > 0:
            self.e(f"s_waitcnt lgkmcnt(0)\nv_writelane_b32 v{self.vst}, s{prev}, {i-1}")
        self.e(f"s_memrealtime s[{cur}:{cur+1}]")

    def pad(self):
        if not self.cfg.pads: return
        k = len(self.pads)
        self.pads.append(k)
        self.e(f"L_pad{k}:\nPADJ{k}")
    def fs(self, name):
        if not (self.cfg.fine and self.fine_on): return
        if name not in self.fnames: self.fnames.append(name)
        i = self.fnames.index(name)
        self.e(f"s_memtime s[{100}:{101}]\ns_waitcnt lgkmcnt(0)\nv_writelane_b32 v{self.vst2}, s100, {i}")

def R(a, n): return f"v[{a}:{a+n-1}]"
DPP = "row_mask:0xf bank_mask:0xf"
MFMA = "v_mfma_f32_16x16x32_bf16"

def gen(cfg):
    g = G(cfg)
    e = g.e
    sX, sK, sV, sWQ, sWO, sW1, sW2, sOUT, sWS = "s[4:5]", "s[6:7]", "s[8:9]", "s[10:11]", "s[12:13]", "s[16:17]", "s[18:19]", "s[20:21]", "s[24:25]"
    sG, sR, sHI, sLO, sW, sT = "s26", "s27", "s28", "s29", "s30", "s31"
    sTB = ["s32", "s33", "s34", "s35"]
    sMASK, sLOC = "s36", "s37"
    sQB, sQX = "s[38:39]", "s[40:41]"
    sCNT, sXCC = "s46", "s47"
    sWIN, sJ, sW2K, sVL = "s50", "s51", "s52", "s53"
    sG8, sBP, sG32, sSL, sHI64, sR15, sWH, sW1b = "s54", "s55", "s56", "s57", "s59", "s60", "s61", "s63"
    sXI = ["s[68:69]", "s[70:71]", "s[72:73]", "s[74:75]"]
    sM20 = "s[14:15]"
    g.v(1)
    vL = g.v(); vA = g.v(); vBQ = g.v(); vU = g.v(); vI = g.v()
    vTAG = g.v(); vZERO = g.v(); vTV = g.v(); vHN = g.v()
    g.vst = g.v(); vst2 = g.v(); g.vst2 = vst2
    vXG = g.v(); vHNL = g.v(); vQL = g.v(); vQC = g.v(); vQST = g.v(); vHL = g.v(); vHN2 = g.v(); vHC = g.v(); vHST = g.v(); vOL = g.v(); vML = g.v()
    lXW = g.v(); lXR = g.v(); lQW = g.v(); lCW = g.v(); lHW = g.v(); lMR = g.v(); aW2 = g.v(); vJ = g.v()
    rb = g.v(12)
    lQR, lPW, lMW, vAP, vDS, vMP, vCP, vCP2, lCR, vEP, lHR = [rb + i for i in range(11)]
    vHNS = rb + 11
    vVA, vKA, vDP, aWO, aW1 = [rb + i for i in range(5)]
    lLW = g.v(); vAS = g.v(); lP = g.v(); vOP = g.v(); lTV = g.v()
    vFS = g.v(); vFL = g.v(); vHN3 = g.v(); vHN4 = g.v()
    vXR = g.v(2); vCS = g.v(); vCS1 = g.v(); vSC = g.v(); vXO = g.v()
    ob = g.v(76, 4)
    oK, oW2, oWQ = ob, ob + 32, ob + 60
    oV, oW1 = ob, ob + 32
    oWO = g.v(16, 4)
    T = g.v(64, 4)
    t = lambda i: f"v{T+i}"

    vM3 = g.v()
    RESID = f"v_lshlrev_b32 v{vXR}, 16, {t(14)}\nv_and_b32 v{vXR+1}, 0xffff0000, {t(14)}"
    if cfg.dot: RESID = f"v_and_b32 v{vXR+1}, v{vM3}, {t(14)}\nv_lshlrev_b32 v{vXR}, 16, v{vXR+1}\nv_and_b32 v{vXR+1}, 0xffff0000, v{vXR+1}"
    def delay(n):
        while n > 0:
            k = min(n, 16)
            e(f"s_nop {k-1}")
            n -= k

    HEATMAX = 64
    HEAT = cfg.hq or cfg.ho or cfg.hx or cfg.hh or cfg.hk or cfg.hp
    def heat(n):
        if n: e(f"s_setprio 0\ns_call_b64 s[94:95], L_heat{n}\ns_setprio 1")
    def heat_w(w, idle, n):
        if not n: return
        a, b = g.L("Lz"), g.L("Lz")
        e(f"s_cmp_eq_u32 {sW}, {w}\ns_cbranch_scc1 {a}\n{b}:")
        g.ool(lambda: (g.pad(), e(f"{a}:"), delay(idle), heat(n), e(f"s_branch {b}")))
    def heat_block():
        for n in range(HEATMAX, 0, -1):
            e(f"L_heat{n}:\nv_mov_b32 {t(62)}, v{vL}\n" + ("s_nop 0" if cfg.hsp else f"v_mov_b32 {t(62)}, v{vL}"))
        e("s_setpc_b64 s[94:95]")

    def arm(r):
        e(f"v_mov_b32 {r}, -1")
    def spinreg(r, n):
        lp, dn = g.L("Ls"), g.L("Ls")
        e(f"s_movk_i32 s48, {n}\n{lp}:\nv_cmp_ne_u32 vcc, -1, {r}\ns_sub_u32 s48, s48, 1\ns_cbranch_scc1 {dn}\ns_cbranch_vccz {lp}\n{dn}:")

    def xor4(base):
        for i in range(4):
            e(f"v_xor_b32 v{base+i}, {sTB[i]}, v{base+i}")
    BYTECHK = lambda acc: f"v_cmp_ne_u32_sdwa vcc, {acc}, v{vZERO} src0_sel:BYTE_0 src1_sel:DWORD"

    def poll(issue, body, retry=0, first=None, onretry=None, heat=None, second=None):
        top, rt, dn = g.L("Lp"), g.L("Lr"), g.L("Ld")
        e(f"s_mov_b32 {sCNT}, 0")
        if first: first()
        else:
            issue()
            if heat: heat()
            e("s_waitcnt vmcnt(0)")
        e(f"{top}:")
        if g.fine_on:
            g.npf = getattr(g, "npf", 0)
        g.fs("ld" + str(g.npoll))
        body()
        e(f"s_cbranch_vccnz {rt}\n{dn}:")
        def r():
            e(f"{rt}:\ns_add_u32 {sCNT}, {sCNT}, 1\ns_cmp_gt_u32 {sCNT}, 0x8000\ns_cbranch_scc1 {dn}")
            if second:
                l2 = g.L("Lr")
                e(f"s_cmp_lg_u32 {sCNT}, 1\ns_cbranch_scc1 {l2}\ns_waitcnt vmcnt(0)")
                second()
                e(f"s_branch {top}\n{l2}:")
            if onretry: onretry()
            if retry: e(f"s_sleep {retry}")
            issue()
            e(f"s_waitcnt vmcnt(0)\ns_branch {top}")
        g.ool(r)
        if cfg.stamps:
            e(f"v_writelane_b32 v{g.vst}, {sCNT}, {40 + g.npoll}")
            g.npoll += 1

    LOCCMP = f"s_cmp_eq_u32 {sLOC}, 0"
    def lstore(ins):
        if cfg.force_sc1:
            for s in ins: e(s + " sc1" if s.startswith("global") else s)
            return
        a, b = g.L("Ls"), g.L("Ls")
        e(f"s_cbranch_scc1 {a}")
        for s in ins: e(s)
        e(f"{b}:")
        def r():
            e(f"{a}:")
            for s in ins: e(s + " sc1" if s.startswith("global") else s)
            e(f"s_branch {b}")
        g.ool(r)

    def wave_if(cond, imm, label):
        inv = {"lt": "ge", "ge": "lt", "eq": "lg", "lg": "eq"}[cond]
        e(f"s_cmp_{inv}_u32 {sW}, {imm}\ns_cbranch_scc1 {label}")

    e(f"""
    s_cmp_ge_u32 s2, 256
    s_cbranch_scc1 L_end
    s_load_dwordx16 s[4:19], s[0:1], 0
    s_load_dwordx4 s[20:23], s[0:1], 64
    s_load_dwordx2 s[24:25], s[0:1], 80
    """)
    if cfg.ctouch:
        e(f"""
        s_getpc_b64 s[44:45]
        s_lshr_b32 s48, s2, 3
        s_lshl_b32 s48, s48, 10
        v_lshlrev_b32 {t(62)}, 7, v0
        v_add_u32 {t(62)}, s48, {t(62)}
        v_cmp_gt_u32 vcc, 8, v0
        s_and_saveexec_b64 s[42:43], vcc
        s_cbranch_execz L_noct
        global_load_dword {t(63)}, {t(62)}, s[44:45]
        L_noct:
        s_mov_b64 exec, -1
        """)
    if cfg.fixdur: e("s_memrealtime s[98:99]")
    if cfg.stamps: e(f"v_mov_b32 v{g.vst}, 0\nv_mov_b32 v{vst2}, 0")
    g.stamp("start")
    e(f"""
    v_lshrrev_b32 {t(0)}, 6, v0
    v_and_b32 v{vL}, 63, v0
    s_and_b32 {sG}, s2, 7
    v_readfirstlane_b32 {sW}, {t(0)}
    s_lshr_b32 {sR}, s2, 3
    s_lshr_b32 {sHI}, {sR}, 3
    s_and_b32 {sLO}, {sR}, 7
    v_lshrrev_b32 v{vU}, 4, v{vL}
    s_and_b32 {sJ}, {sW}, 3
    s_xor_b32 {sW}, {sW}, 4
    s_cmp_lt_u32 {sW}, 4
    s_cbranch_scc1 L_role0
    v_lshrrev_b32 {t(1)}, 3, v{vL}
    v_and_b32 {t(2)}, 7, v{vL}
    v_lshlrev_b32 {t(3)}, 1, v{vU}
    v_xor_b32 {t(2)}, {t(2)}, {t(3)}
    v_lshlrev_b32 {t(2)}, 4, {t(2)}
    s_lshl_b32 s48, {sHI}, 20
    s_lshl_b32 s49, {sJ}, 16
    s_add_u32 s48, s48, s49
    s_lshl_b32 s49, {sG}, 10
    s_add_u32 s48, s48, s49
    s_lshl_b32 s49, {sLO}, 7
    s_add_u32 s48, s48, s49
    v_lshl_add_u32 {t(4)}, {t(1)}, 13, {t(2)}
    v_add_u32 {t(4)}, s48, {t(4)}
    s_lshl_b32 {sVL}, {sJ}, 10
    s_mov_b32 m0, {sVL}
    s_waitcnt lgkmcnt(0)
    global_load_lds_dwordx4 {t(4)}, {sWQ} nt
    s_add_u32 m0, {sVL}, 4096
    v_add_u32 {t(4)}, 0x40000, {t(4)}
    global_load_lds_dwordx4 {t(4)}, {sWQ} nt
    s_add_u32 m0, {sVL}, 8192
    v_add_u32 {t(4)}, 0x40000, {t(4)}
    global_load_lds_dwordx4 {t(4)}, {sWQ} nt
    s_add_u32 m0, {sVL}, 12288
    v_add_u32 {t(4)}, 0x40000, {t(4)}
    global_load_lds_dwordx4 {t(4)}, {sWQ} nt
    {'s_memrealtime s[100:101]' if cfg.stamps else ''}
    s_branch L_role1
    """)
    assert L_WQ == 0

    def ids():
        e(f"""
        v_and_b32 v{vA}, 3, v{vL}
        v_bfe_u32 v{vBQ}, v{vL}, 2, 2
        s_lshr_b32 {sWH}, {sW}, 1
        s_and_b32 {sW1b}, {sW}, 1
        s_lshl_b32 s48, {sHI}, 8
        s_lshl_b32 s49, {sWH}, 10
        s_add_u32 s48, s48, s49
        s_lshl_b32 s49, {sW1b}, 7
        s_add_u32 s48, s48, s49
        v_and_b32 v{vXO}, 7, v{vL}
        v_lshlrev_b32 v{vXO}, 4, v{vXO}
        v_lshl_add_u32 v{vXO}, v{vU}, 2, v{vXO}
        v_add_u32 v{vXO}, s48, v{vXO}
        v_and_b32 v{vI}, 15, v{vL}
        s_lshl_b32 {sW2K}, {sW}, 11
        s_lshl_b32 {sG32}, {sG}, 5
        s_add_u32 {sSL}, {sG32}, {sR}
        """)
    def blkoff(dst, blk):
        if isinstance(blk, int):
            e(f"s_add_u32 {dst}, {sLO}, {blk if cfg.rot else 0}\ns_and_b32 {dst}, {dst}, 7\ns_lshl_b32 {dst}, {dst}, 12\ns_add_u32 {dst}, {dst}, {sWIN}")
            if blk: e(f"s_add_u32 {dst}, {dst}, {blk*32768}")
        else:
            e(f"s_add_u32 {dst}, {sLO}, {blk if cfg.rot else 0}\ns_and_b32 {dst}, {dst}, 7\ns_lshl_b32 {dst}, {dst}, 12\ns_add_u32 {dst}, {dst}, {sWIN}\ns_lshl_b32 s49, {blk}, 15\ns_add_u32 {dst}, {dst}, s49")

    def tags(first=False):
        e(f"""
        s_add_u32 {sT}, {sT}, {TAGC}
        s_min_u32 {sT}, {sT}, -2
        s_and_b32 s32, {sT}, 0xff
        s_bfe_u32 s33, {sT}, 0x80008
        s_bfe_u32 s34, {sT}, 0x80010
        s_lshr_b32 s35, {sT}, 24
        v_lshlrev_b32 {t(16)}, 3, v{vA}
        v_lshrrev_b32 v{vTAG}, {t(16)}, {sT}
        v_and_b32 v{vTAG}, 0xff, v{vTAG}
        v_mov_b32 v{vTV}, {sT}
        """)
        if first: e(f"s_mov_b32 s3, {sT}")

    def setup(role):
        a, b, c, d, f, h = t(40), t(41), t(42), t(43), t(44), t(45)
        e(f"""
        s_getreg_b32 {sXCC}, hwreg(HW_REG_XCC_ID, 0, 4)
        s_mov_b32 {sMASK}, 0xffffff00
        v_bfe_u32 v{vM3}, v{vL}, 3, 1
        v_add_u32 v{vM3}, -1, v{vM3}
        s_mov_b32 {sLOC}, 0
        s_mov_b64 {sQB}, {sWS}
        s_add_u32 s40, s24, {QPX}
        s_addc_u32 s41, s25, 0
        s_movk_i32 s62, 320
        s_mul_i32 s48, {sWH}, 320
        s_lshl_b32 s49, {sW1b}, 7
        s_add_u32 s48, s48, s49
        s_add_u32 s48, s48, {L_XS}
        v_bfe_u32 {a}, v{vL}, 2, 1
        v_lshlrev_b32 v{lXW}, 6, {a}
        v_and_b32 {a}, 1, v{vL}
        v_lshl_add_u32 v{lXW}, {a}, 5, v{lXW}
        v_lshrrev_b32 {a}, 5, v{vL}
        v_lshl_add_u32 v{lXW}, {a}, 4, v{lXW}
        v_bfe_u32 {a}, v{vL}, 1, 1
        v_lshl_add_u32 v{lXW}, {a}, 3, v{lXW}
        v_bfe_u32 {a}, v{vL}, 4, 1
        v_lshl_add_u32 v{lXW}, {a}, 2, v{lXW}
        v_add_u32 v{lXW}, s48, v{lXW}
        v_lshlrev_b32 {b}, 4, v{vU}
        v_mad_u32_u24 {h}, v{vBQ}, s62, {b}
        v_add_u32 v{lXR}, {L_XS}, {h}
        v_mov_b32 {c}, {L_ONES}
        v_cmp_ne_u32 vcc, 0, v{vA}
        s_lshl_b32 s66, {sG}, 16
        s_add_u32 s66, s66, {W_QP}
        v_cndmask_b32 v{lXR}, v{lXR}, {c}, vcc
        s_lshl_b32 s67, {sG}, 15
        s_add_u32 s67, s67, {W_HP}
        v_lshlrev_b32 {f}, 2, v{vI}
        """)
        e(f"""
        s_lshl_b32 s48, {sLO}, 6
        s_lshl_b32 s49, {sHI}, 4
        s_add_u32 s48, s48, s49
        s_add_u32 s49, s48, s66
        s_add_u32 s49, s49, 0xA000
        v_lshlrev_b32 {c}, 9, v{vU}
        v_add_u32 v{vAS}, s49, {c}
        s_mov_b32 s14, 0x00100001
        s_mov_b32 s15, 0x10000100
        s_lshl_b32 s58, {sJ}, 6
        s_and_b32 {sR15}, {sR}, 15
        s_add_u32 s92, {sLO}, 1
        s_lshr_b32 s92, s92, 3
        """)
        if role == 0:
            e(f"""
            v_add_u32 v{lQR}, {L_QS}, {h}
            s_add_u32 s49, s48, s67
            s_add_u32 s49, s49, 0x5000
            v_add_u32 v{vDS}, s49, {c}
            v_mov_b32 {c}, 0x3f803f80
            v_lshlrev_b32 {d}, 2, v{vL}
            v_add_u32 {d}, {L_ONES}, {d}
            ds_write_b32 {d}, {c}
            s_lshl_b32 s48, {sLO}, 2
            s_add_u32 s48, s48, {sHI}
            s_lshl_b32 s49, s48, 8
            s_add_u32 s49, s49, s58
            s_add_u32 s49, s49, s66
            v_lshl_add_u32 v{vAP}, v{vU}, 13, {f}
            v_add_u32 v{vAP}, s49, v{vAP}
            """)
        else:
            e(f"""
            s_lshl_b32 s48, {sLO}, 2
            s_add_u32 s48, s48, {sHI}
            s_lshl_b32 s49, s48, 7
            s_add_u32 s49, s49, s58
            s_add_u32 s49, s49, s67
            v_lshl_add_u32 v{vDP}, v{vU}, 12, {f}
            v_add_u32 v{vDP}, s49, v{vDP}
            """)
        yield
        e(f"""
        v_lshlrev_b32 {t(47)}, 4, v{vL}
        s_lshl_b32 s48, {sW}, 10
        s_add_u32 s48, s48, s66
        s_add_u32 s49, s48, 0x8000
        v_add_u32 v{vQC}, s49, {t(47)}
        s_lshl_b32 s49, {sHI}, 13
        s_add_u32 s49, s49, s48
        v_add_u32 v{vQL}, s49, {t(47)}
        s_lshl_b32 {sHI64}, {sHI}, 6
        s_lshl_b32 s48, {sHI}, 9
        s_lshl_b32 s49, {sW}, 6
        s_add_u32 s48, s48, s49
        s_add_u32 s49, s48, s66
        s_add_u32 s49, s49, 0xA000
        v_add_u32 v{vQST}, s49, {f}
        s_add_u32 s49, s48, s67
        s_add_u32 s49, s49, 0x5000
        v_add_u32 v{vHST}, s49, {f}
        v_lshlrev_b32 {d}, 2, v{vL}
        s_lshl_b32 s48, {sW}, 9
        s_add_u32 s48, s48, s67
        s_add_u32 s49, s48, 0x4000
        v_add_u32 v{vHC}, s49, {d}
        s_lshl_b32 s49, {sHI}, 12
        s_add_u32 s49, s49, s48
        v_add_u32 v{vHL}, s49, {d}
        """)
        e(f"""
        v_and_b32 {h}, 1, v{vU}
        v_lshrrev_b32 {c}, 5, v{vL}
        v_and_b32 {d}, 31, v{vL}
        v_lshlrev_b32 {d}, 2, {d}
        """)
        for i in range(4):
            e(f"s_add_u32 s{68+2*i}, s24, {W_X0 + i*X_STRIDE}\ns_addc_u32 s{69+2*i}, s25, 0")
        e(f"""
        s_lshl_b32 s48, {sWH}, 14
        s_lshl_b32 s49, {sHI}, 11
        s_add_u32 s48, s48, s49
        s_lshl_b32 s49, {sW1b}, 10
        s_add_u32 s48, s48, s49
        v_add_u32 v{vXG}, s48, {t(47)}
        v_lshlrev_b32 v{vHNL}, 7, v{vI}
        v_add_u32 v{vHNL}, {X_HINT}, v{vHNL}
        s_lshl_b32 {sG8}, {sG}, 8
        s_lshr_b32 {sBP}, {sR}, 4
        s_lshl_b32 s48, {sG}, 11
        s_add_u32 s48, s48, {W_IND}
        s_add_u32 s76, s24, s48
        s_addc_u32 s77, s25, 0
        v_lshlrev_b32 v{vFL}, {cfg.fsp - 2}, {d}
        v_add_u32 v{vFL}, s48, v{vFL}
        s_lshl_b32 s49, {sR}, {cfg.fsp}
        s_add_u32 s48, s48, s49
        v_mov_b32 v{vFS}, s48
        s_lshl_b32 s44, {sG}, 15
        s_lshl_b32 s49, {sBP}, 14
        s_add_u32 s44, s44, s49
        s_add_u32 s44, s44, {W_O}
        s_add_u32 s49, s44, {sW2K}
        v_lshlrev_b32 {a}, 4, v{vL}
        v_add_u32 v{vOL}, s49, {a}
        s_lshl_b32 s45, {sG}, 10
        s_lshl_b32 s49, {sBP}, 9
        s_add_u32 s45, s45, s49
        s_add_u32 s45, s45, {W_ML}
        s_lshl_b32 s49, {sWH}, 6
        s_add_u32 s49, s45, s49
        v_lshl_add_u32 {t(46)}, v{vU}, 2, v{vI}
        v_and_b32 {t(46)}, 7, {t(46)}
        v_lshlrev_b32 {t(46)}, 2, {t(46)}
        v_lshl_add_u32 v{vML}, {c}, 5, {t(46)}
        v_add_u32 v{vML}, s49, v{vML}
        s_mul_i32 s48, {sWH}, 320
        s_lshl_b32 s49, {sW1b}, 7
        s_add_u32 s48, s48, s49
        s_add_u32 s48, s48, {L_QS}
        v_lshlrev_b32 v{lQW}, 3, v{vI}
        v_lshl_add_u32 v{lQW}, v{vU}, 1, v{lQW}
        v_add_u32 v{lQW}, s48, v{lQW}
        v_add_u32 v{lMR}, {L_MS}, {b}
        s_movk_i32 s62, 80
        v_lshl_add_u32 {t(46)}, {c}, 4, v{vI}
        v_lshlrev_b32 {h}, 2, {h}
        v_mad_u32_u24 v{lCW}, {t(46)}, s62, {h}
        s_lshl_b32 s48, {sW}, 3
        s_add_u32 s48, s48, {L_CR}
        v_add_u32 v{lCW}, s48, v{lCW}
        v_lshlrev_b32 {t(46)}, 4, v{vBQ}
        v_lshl_add_u32 v{lHW}, {h}, 1, {t(46)}
        v_lshl_add_u32 v{lHW}, v{vA}, 1, v{lHW}
        s_lshl_b32 s48, {sW}, 6
        s_add_u32 s48, s48, {L_HS}
        v_add_u32 v{lHW}, s48, v{lHW}
        """)
        if role == 0:
            e(f"""
            v_and_b32 v{vEP}, 1, v{vL}
            v_lshlrev_b32 v{vEP}, 13, v{vEP}
            v_bfe_u32 v{vCP}, v{vL}, 1, 3
            v_lshl_add_u32 v{vEP}, v{vCP}, 2, v{vEP}
            s_lshr_b32 s48, {sR15}, 1
            s_lshl_b32 s48, s48, 10
            s_and_b32 s49, {sR15}, 1
            s_lshl_b32 s49, s49, 6
            s_add_u32 s48, s48, s49
            s_lshl_b32 s49, {sBP}, 15
            s_add_u32 s48, s48, s49
            s_lshl_b32 s58, {sG}, 7
            s_add_u32 s48, s48, s58
            v_lshl_add_u32 v{vCP}, {h}, 12, v{vEP}
            v_lshl_add_u32 v{vCP}, {c}, 5, v{vCP}
            v_add_u32 v{vCP}, s48, v{vCP}
            s_lshl_b32 s48, {sHI}, 14
            s_lshl_b32 s49, {sLO}, 10
            s_add_u32 s48, s48, s49
            s_lshl_b32 s49, {sW}, 5
            s_add_u32 s48, s48, s49
            s_add_u32 s48, s48, s58
            v_add_u32 v{vEP}, s48, v{vEP}
            s_lshl_b32 s49, {sR15}, 2
            s_add_u32 s49, s49, s45
            v_lshlrev_b32 v{vMP}, 6, v{vU}
            v_add_u32 v{vMP}, s49, v{vMP}
            s_lshl_b32 s48, {sW}, 10
            s_add_u32 s48, s48, {L_PS}
            v_add_u32 v{lPW}, s48, {a}
            s_lshl_b32 s48, {sW}, 2
            s_add_u32 s48, s48, {L_MS}
            v_add_u32 v{lMW}, s48, {t(46)}
            s_lshl_b32 s48, {sW}, 4
            s_add_u32 s48, s48, {L_LS}
            v_lshlrev_b32 v{lLW}, 6, v{vBQ}
            v_lshl_add_u32 v{lLW}, v{vU}, 2, v{lLW}
            v_add_u32 v{lLW}, s48, v{lLW}
            v_mul_u32_u24 v{lCR}, 80, v{vL}
            v_add_u32 v{lCR}, {L_CR}, v{lCR}
            v_add_u32 v{lHR}, {L_HS}, {b}
            """)
        if True:
            e(f"""
            s_lshl_b32 s49, {sBP}, 7
            s_add_u32 s49, s49, {sG8}
            s_add_u32 s49, s49, {X_HINT}
            v_bfe_u32 v{vHNS}, v{vL}, 3, 2
            v_lshlrev_b32 v{vHNS}, 11, v{vHNS}
            v_lshl_add_u32 v{vHNS}, {c}, 13, v{vHNS}
            v_and_b32 v{lP}, 7, v{vL}
            v_lshl_add_u32 v{vHNS}, v{lP}, 4, v{vHNS}
            v_add_u32 v{vHNS}, s49, v{vHNS}
            s_xor_b32 s22, {sW}, {cfg.hwx}
            s_or_b32 s22, s22, {sR15}
            s_cselect_b32 s22, 0, 0x01010101
            s_mov_b32 s23, s22
            v_add_u32 v{lP}, {L_PS}, {a}
            s_lshl_b32 s48, {sJ}, 10
            s_add_u32 s48, s48, s44
            s_lshl_b32 s49, {sR15}, 4
            s_add_u32 s48, s48, s49
            v_lshlrev_b32 v{vOP}, 12, v{vU}
            v_lshl_add_u32 v{vOP}, v{vBQ}, 8, v{vOP}
            v_lshl_add_u32 v{vOP}, v{vA}, 2, v{vOP}
            v_add_u32 v{vOP}, s48, v{vOP}
            v_lshl_add_u32 {t(46)}, v{vU}, 2, v{vBQ}
            v_and_b32 v{lTV}, 7, {t(46)}
            s_lshl_b32 s48, {sJ}, 1
            v_xor_b32 v{lTV}, s48, v{lTV}
            v_lshlrev_b32 v{lTV}, 5, v{lTV}
            v_lshl_add_u32 v{lTV}, {t(46)}, 8, v{lTV}
            v_lshl_add_u32 v{lTV}, v{vA}, 3, v{lTV}
            """)
        yield

    def loader_addr():
        e(f"""
        v_lshrrev_b32 {t(11)}, 2, v{vL}
        v_and_b32 {t(12)}, 1, v{vU}
        v_lshlrev_b32 {t(12)}, 1, {t(12)}
        v_xor_b32 {t(12)}, {t(12)}, v{vA}
        v_lshlrev_b32 {t(12)}, 4, {t(12)}
        v_lshl_add_u32 v{aWO}, {t(11)}, 10, {t(12)}
        s_lshl_b32 s48, {sG}, 19
        s_lshl_b32 s49, {sJ}, 14
        s_add_u32 s48, s48, s49
        s_and_b32 s49, {sR}, 15
        s_lshl_b32 s49, s49, 6
        s_add_u32 s48, s48, s49
        v_add_u32 v{aWO}, s48, v{aWO}
        s_lshr_b32 s91, {sR}, 3
        s_and_b32 s91, s91, 2
        s_and_b32 s49, {sR}, 1
        s_or_b32 s91, s91, s49
        s_lshl_b32 {sWIN}, {sHI}, 23
        s_lshl_b32 s49, {sG}, 20
        s_add_u32 {sWIN}, {sWIN}, s49
        s_add_u32 {sWIN}, {sWIN}, 0xC0000
        v_lshl_add_u32 v{aW2}, {t(1)}, 10, {t(2)}
        s_lshl_b32 s48, {sJ}, 2
        v_add_u32 {t(10)}, s48, v{vU}
        v_xor_b32 v{vKA}, {t(10)}, v{vI}
        v_lshlrev_b32 v{vKA}, 4, v{vKA}
        v_lshl_add_u32 v{vKA}, {t(10)}, 8, v{vKA}
        v_and_b32 v{vVA}, 7, {t(10)}
        v_lshlrev_b32 v{vVA}, 1, v{vVA}
        v_xor_b32 v{vVA}, v{vVA}, v{vI}
        v_lshlrev_b32 v{vVA}, 4, v{vVA}
        v_lshl_add_u32 v{vVA}, {t(10)}, 8, v{vVA}
        s_movk_i32 s48, 3584
        v_mad_u32_u24 v{aW1}, {t(11)}, s48, {t(12)}
        s_lshl_b32 s48, {sHI}, 7
        s_lshl_b32 s49, {sJ}, 4
        s_add_u32 s48, s48, s49
        s_mul_i32 s48, s48, 3584
        s_mul_i32 s49, {sG}, 448
        s_add_u32 s48, s48, s49
        s_min_u32 s49, {sLO}, 6
        s_lshl_b32 s49, s49, 6
        s_add_u32 s48, s48, s49
        v_add_u32 v{aW1}, s48, v{aW1}
        s_mul_i32 s48, {sG}, {224*1024}
        s_lshl_b32 s49, {sLO}, 7
        s_add_u32 s48, s48, s49
        v_add_u32 v{aW2}, s48, v{aW2}
        """)
    def item(kind, c):
        if kind in "KV":
            blkoff("s94", c)
            dst = (L_K + (c & 3) * 8192 + (c >> 2) * 4096) if kind == "K" else (L_V + (32 * (c & 3) + 16 * (c >> 2)) * 256)
            e(f"s_add_u32 m0, {sVL}, {dst}\nv_add_u32 {t(61)}, s94, v{vKA if kind == 'K' else vVA}")
            return f"global_load_lds_dwordx4 {t(61)}, {sK if kind == 'K' else sV} nt"
        if kind == "o":
            e(f"""
            s_add_u32 s94, s91, {c >> 1}
            s_and_b32 s94, s94, 3
            s_lshl_b32 s94, s94, 13
            s_add_u32 s94, s94, {(c & 1) * 4096}
            s_lshl_b32 s95, s94, 4
            s_add_u32 s94, s94, {sVL}
            s_add_u32 m0, s94, {L_WO}
            v_add_u32 {t(61)}, s95, v{aWO}
            """)
            return f"global_load_lds_dwordx4 {t(61)}, {sWO} {'nt' if (cfg.hnt if c >= 2 else cfg.o0nt) else ''}"
        if kind == "1":
            e(f"s_add_u32 m0, {sVL}, {L_W1 + c * 4096}\nv_add_u32 {t(61)}, {c * 64 * 3584}, v{aW1}")
            return f"global_load_lds_dwordx4 {t(61)}, {sW1} {'nt' if cfg.wnt else ''}"
        if kind == "r":
            e(f"""
            s_add_u32 s94, {sJ}, {4 * c}
            s_min_u32 s94, s94, 20
            s_mul_i32 s95, {sHI}, 7
            s_add_u32 s94, s94, s95
            s_add_u32 s94, s94, 7
            s_cmp_ge_u32 s94, 28
            s_cselect_b32 s95, 28, 0
            s_sub_u32 s94, s94, s95
            s_lshl_b32 s95, s94, 13
            s_lshl_b32 s94, s94, 10
            s_add_u32 m0, s94, {L_W2}
            v_add_u32 {t(61)}, s95, v{aW2}
            """)
            return f"global_load_lds_dwordx4 {t(61)}, {sW2} {'nt' if cfg.hnt else ''}"
        if kind == "2":
            e(f"""
            s_add_u32 s94, {sJ}, {4 * c}
            s_min_u32 s94, s94, 6
            s_mul_i32 s95, {sHI}, 7
            s_add_u32 s94, s94, s95
            s_lshl_b32 s95, s94, 13
            s_lshl_b32 s94, s94, 10
            s_add_u32 m0, s94, {L_W2}
            v_add_u32 {t(61)}, s95, v{aW2}
            """)
            return f"global_load_lds_dwordx4 {t(61)}, {sW2} {'nt' if cfg.wnt else ''}"
    ORDERS = ["K" * 8 + "V" * 8 + "o" * 8 + "1122",
              "oo" + "K" * 8 + "V" * 8 + "o" * 6 + "1122",
              "K" * 8 + "oo" + "V" * 8 + "o" * 6 + "1122",
              "K" * 8 + "V" * 8 + "oo1122" + "o" * 6,
              "K" * 8 + "V" * 8 + "oooo1122" + "o" * 4,
              "K" * 8 + "V" * 6 + "oo" + "VV" + "1122" + "o" * 6,
              "K" * 8 + "V" * 8 + "o" * 8,
              "K" * 8 + "V" * 4 + "oo" + "VVVV" + "o" * 6,
              "K" * 8 + "oo" + "V" * 8 + "o" * 6,
              "K" * 8 + "V" * 6 + "oo" + "VV" + "11" + "o" * 6,
              "K" * 8 + "V" * 8 + "oo11" + "o" * 6,
              "oo11" + "K" * 8 + "V" * 8 + "o" * 6,
              "oo11" + "K" * 8 + "o" * 6 + "V" * 8,
              "oo11" + "K" * 8 + "VoVoVoVoVoVoVV",
              "oo" + "K" * 8 + "VoVoVoVoVoVoVV" + "11",
              "oo1122" + "K" * 8 + "VoVoVoVoVoVoVV",
              "11" + "K" * 8 + "V" * 8 + "o" * 8,
              "1122" + "K" * 8 + "V" * 8 + "o" * 8,
              "oo" + "K" * 8 + "V" * 8 + "11" + "o" * 6]
    def w2_rest():
        e(f"""
        s_add_u32 s48, {sHI}, {sJ}
        s_add_u32 s48, s48, 1
        s_and_b32 s48, s48, 3
        s_mul_i32 s48, s48, 7
        s_lshl_b32 s49, s48, 13
        v_add_u32 {t(61)}, s49, v{aW2}
        s_lshl_b32 s48, s48, 10
        """)
        for i in range(7):
            e(f"s_add_u32 m0, s48, {L_W2 + i * 1024}\ns_nop 0\nglobal_load_lds_dwordx4 {t(61)}, {sW2}")
            if i < 6: e(f"v_add_u32 {t(61)}, 0x2000, {t(61)}")

    def tr128_addr(base):
        e(f"""
        v_lshl_add_u32 {t(40)}, v{vU}, 2, v{vBQ}
        v_bfe_u32 {t(41)}, {t(40)}, 1, 2
        v_xor_b32 {t(41)}, {sJ}, {t(41)}
        v_lshlrev_b32 {t(41)}, 5, {t(41)}
        v_lshl_add_u32 {t(41)}, {t(40)}, 7, {t(41)}
        v_lshl_add_u32 {t(41)}, v{vA}, 3, {t(41)}
        """)
        if base: e(f"v_add_u32 {t(41)}, {base}, {t(41)}")
    def tr128(dst, nks):
        for ks in range(nks):
            for h in range(2):
                e(f"ds_read_b64_tr_b16 {R(dst + ks*4 + h*2, 2)}, {t(41)} offset:{ks*4096 + h*2048}")
    def tr_w1():
        e(f"""
        v_lshl_add_u32 {t(40)}, v{vU}, 2, v{vBQ}
        v_and_b32 {t(41)}, 1, v{vU}
        v_xor_b32 {t(41)}, {sW1b}, {t(41)}
        v_lshlrev_b32 {t(41)}, 5, {t(41)}
        v_lshl_add_u32 {t(41)}, {t(40)}, 6, {t(41)}
        v_lshl_add_u32 {t(41)}, v{vA}, 3, {t(41)}
        v_add_u32 {t(41)}, {L_W1}, {t(41)}
        """)
        for ks in range(4):
            for h in range(2):
                e(f"ds_read_b64_tr_b16 {R(oW1 + ks*4 + h*2, 2)}, {t(41)} offset:{ks*2048 + h*1024}")
    def tr_wo():
        e(f"""
        v_and_b32 {t(40)}, 1, v{vBQ}
        v_lshlrev_b32 {t(40)}, 4, {t(40)}
        v_lshl_add_u32 {t(40)}, v{vU}, 2, {t(40)}
        v_lshrrev_b32 {t(41)}, 1, v{vBQ}
        v_add_u32 {t(40)}, {t(40)}, {t(41)}
        v_and_b32 {t(41)}, 1, v{vU}
        v_lshlrev_b32 {t(41)}, 5, {t(41)}
        v_lshl_add_u32 {t(41)}, {t(40)}, 6, {t(41)}
        v_lshl_add_u32 {t(41)}, v{vA}, 3, {t(41)}
        s_lshl_b32 s48, {sW}, 12
        s_add_u32 s48, s48, {L_WO}
        v_add_u32 {t(41)}, s48, {t(41)}
        v_xor_b32 {t(42)}, 32, {t(41)}
        """)
        for tile in range(2):
            for ks in range(2):
                for h in range(2):
                    e(f"ds_read_b64_tr_b16 {R(oWO + (tile*2+ks)*4 + h*2, 2)}, {t(41+tile)} offset:{ks*2048 + h*128}")
    def tr_v(ops):
        e(f"v_xor_b32 {t(60)}, 32, v{lTV}")
        for ks in range(4):
            for tile in range(2):
                for h in range(2):
                    e(f"ds_read_b64_tr_b16 {R(ops[tile*4+ks] + h*2, 2)}, {f'v{lTV}' if tile == 0 else t(60)} offset:{L_V + ks*8192 + h*4096}")

    def swapred(a, fill1, fill2):
        e(f"v_permlane32_swap_b32 v{a}, v{a+2}\nv_permlane32_swap_b32 v{a+1}, v{a+3}")
        e(f"v_pk_add_f32 {R(a,2)}, {R(a,2)}, {R(a+2,2)}")
        e(fill1)
        e(f"v_permlane16_swap_b32 v{a}, v{a+1}")
        e(fill2)
        e(f"v_add_f32 v{a}, v{a}, v{a+1}")

    def hint_send(inst, role):
        if cfg.hwx // 4 != role: return
        b = g.L("Lh")
        m = "s[80:81]" if (cfg.hfar and inst > 0) else "s[22:23]"
        e(f"s_mov_b64 exec, {m}\ns_cbranch_execz {b}\nglobal_store_dword v{vHNS}, v{vTV}, {sXI[inst]} sc1\n{b}:\ns_mov_b64 exec, -1")
    def hint_far(inst, role):
        if cfg.hwx // 4 != role or not cfg.hfar or inst == 0: return
        b = g.L("Lh")
        e(f"""
        s_mov_b64 s[80:81], 0
        s_cmp_eq_u32 s22, 0
        s_cbranch_scc1 {b}
        v_readfirstlane_b32 s82, v{vXG}
        v_readfirstlane_b32 s83, v{vHNS}
        s_add_u32 s86, {sT}, 1
        s_and_b32 s82, s82, 0x2000
        s_cselect_b32 s80, 0, s22
        s_cselect_b32 s81, s22, 0
        s_xor_b32 s82, s82, 0x2000
        s_add_u32 s83, s83, s82
        """)
        delay(cfg.hfx if inst % 2 == 0 else cfg.hfy)
        for k in range(4):
            e(f"s_atomic_add s86, {sXI[inst]}, s83")
            if k < 3: e("s_add_u32 s83, s83, 2048")
        e(f"{b}:")
    def hint_ld(inst, r, k):
        e(f"global_load_dword v{r}, {f'v{vHNL}' if k < 2 else t(30)}, {sXI[inst]} offset:{(k & 1) * 2048} sc1")
    def hint_first(inst):
        a, b = g.L("Lh"), g.L("Lh")
        e(f"s_cmp_eq_u32 {sW}, 7\ns_cbranch_scc1 {a}\n{b}:")
        g.ool(lambda: (e(f"{a}:\ns_mov_b64 exec, 0xffff"), hint_ld(inst, vHN, 0), e(f"s_mov_b64 exec, -1\ns_branch {b}")))
    def hprep():
        e(f"s_mov_b32 {sCNT}, 0\ns_mov_b64 exec, 0xffff\nv_add_u32 {t(30)}, 4096, v{vHNL}")
    def hint_wait(inst, issued):
        lp, dn = g.L("Lp"), g.L("Ld")
        ld = lambda r, k: hint_ld(inst, r, k)
        if not issued:
            ld(vHN, 0)
            delay(cfg.hgap)
        ld(vHN2, 1)
        chk = lambda r: e(f"s_waitcnt vmcnt(1)\nv_cmp_ne_u32 vcc, {sT}, v{r}\ns_cbranch_vccz {dn}\ns_add_u32 {sCNT}, {sCNT}, 1")
        chk(vHN); ld(vHN, 2)
        chk(vHN2); ld(vHN2, 3)
        e(f"{lp}:")
        for r in (vHN, vHN2):
            chk(r); ld(r, 3)
        e(f"s_cmp_lt_u32 {sCNT}, 0x8000\ns_cbranch_scc1 {lp}\n{dn}:")
        if cfg.stamps:
            e(f"v_writelane_b32 v{g.vst}, {sCNT}, {40 + g.npoll}")
            g.npoll += 1

    def spin2(load, gap, sleep=0):
        lp, dn = g.L("Lp"), g.L("Ld")
        regs = [vHN, vHN2, vHN3, vHN4][:cfg.fdep]
        e(f"s_mov_b32 {sCNT}, 0")
        for i, r in enumerate(regs):
            if i: delay(gap)
            load(r)
        e(f"{lp}:")
        for r in regs:
            e(f"s_waitcnt vmcnt({len(regs) - 1})\nv_subrev_u32 v{r}, s49, v{r}\nv_cmp_le_u32 vcc, 8, v{r}\ns_cbranch_vccz {dn}")
            load(r)
            e(f"s_add_u32 {sCNT}, {sCNT}, 1")
        e(f"s_cmp_lt_u32 {sCNT}, 0x10000\ns_cbranch_scc1 {lp}\n{dn}:")
        if cfg.stamps:
            e(f"v_writelane_b32 v{g.vst}, {sCNT}, {40 + g.npoll}")
            g.npoll += 1
    def gprep(idx, half=False):
        e(f"s_add_u32 s49, s3, {idx}\nv_mov_b32 v{vHN}, s49")
        if half: e(f"s_lshl_b32 s48, {sBP}, 4\ns_lshl_b32 s42, 0xffff, s48")
        else: e("s_mov_b32 s42, -1")
        e(f"s_mov_b32 s43, 0\ns_mov_b64 exec, 1\n{LOCCMP}")
    def gflag(dly):
        delay(dly)
        lstore([f"global_store_dword v{vFS}, v{vHN}, {sWS}"])
        e("s_mov_b64 exec, s[42:43]")
        delay(cfg.dfp)
        spin2(lambda r: e(f"global_load_dword v{r}, v{vFL}, {sWS} sc1"), cfg.fgap)
    def seg(lead, paths, default, stamp, nxt, post=None):
        join = g.L("Lj")
        n0, p0, t0_ = g.nst, g.npoll, g.npt
        def one(pre, fn, aft, ld, special):
            g.nst, g.npoll, g.npt = n0, p0, t0_
            ld()
            p1 = g.npoll
            if pre: pre()
            g.fs(stamp + "<")
            e("s_waitcnt lgkmcnt(0)\ns_barrier")
            g.fs(stamp + "b")
            if fn: fn()
            g.fs(stamp + ">")
            g.stamp(stamp)
            if post: post()
            e("s_barrier")
            if special: e("s_mov_b64 exec, -1")
            if aft: aft()
            nxt()
            g.npoll = p1 + 1 if cfg.stamps else 0
        for cond, pre, fn, *more in paths:
            skip = g.L("Lk")
            e(cond + f"\ns_cbranch_scc0 {skip}")
            one(pre, fn, more[0] if more else None, more[1] if len(more) > 1 else lead, True)
            e(f"s_branch {join}")
            g.pad()
            e(f"{skip}:")
        one(None, default, None, lead, False)
        e(f"{join}:")
        g.fs(stamp + "j")
    WEQ = lambda w: f"s_cmp_eq_u32 {sW}, {w}"
    def nopoll():
        if cfg.stamps: g.npoll += 1

    def x_issue(inst):
        e(f"global_load_dwordx4 {R(T,4)}, v{vXG}, {sXI[inst]} sc1")
    def xgather(inst):
        def body_dot():
            e(f"""
            v_permlane32_swap_b32 {t(0)}, {t(2)}
            v_permlane32_swap_b32 {t(1)}, {t(3)}
            s_mov_b32 s48, 0x00003f80
            s_mov_b32 s49, 0x3f800000
            v_permlane16_swap_b32 {t(0)}, {t(1)}
            v_permlane16_swap_b32 {t(2)}, {t(3)}
            v_dot2_f32_bf16 {t(4)}, {t(0)}, s48, v{vXR}
            v_dot2_f32_bf16 {t(5)}, {t(0)}, s49, v{vXR+1}
            v_dot2_f32_bf16 {t(4)}, {t(1)}, s48, {t(4)}
            v_dot2_f32_bf16 {t(5)}, {t(1)}, s49, {t(5)}
            v_dot2_f32_bf16 {t(4)}, {t(2)}, s48, {t(4)}
            v_dot2_f32_bf16 {t(5)}, {t(2)}, s49, {t(5)}
            v_dot2_f32_bf16 {t(4)}, {t(3)}, s48, {t(4)}
            v_dot2_f32_bf16 {t(5)}, {t(3)}, s49, {t(5)}
            v_max3_u32 {t(0)}, {t(0)}, {t(1)}, {t(2)}
            v_max_u32 {t(0)}, {t(0)}, {t(3)}
            v_cmp_eq_u32 vcc, -1, {t(0)}
            v_add_f32_dpp {t(6)}, {t(4)}, {t(4)} row_ror:8 {DPP}
            v_add_f32_dpp {t(7)}, {t(5)}, {t(5)} row_ror:8 {DPP}
            v_cvt_pk_bf16_f32 {t(14)}, {t(6)}, {t(7)}
            """)
        poll(lambda: x_issue(inst), body_dot, cfg.retry_x, first=lambda: e("s_waitcnt vmcnt(0)"))

    def xreads():
        for ks in range(4):
            e(f"ds_read_b128 {R(T+16+ks*4,4)}, v{lXR} offset:{ks*64}")
    def tile_gemv(L, oW, pub, base, csoff, dual, tr):
        xreads()
        if tr: tr()
        for ks in range(4):
            e(f"s_waitcnt lgkmcnt({0 if tr else 3-ks})")
            e(f"{MFMA} {R(T+32,4)}, {R(T+16+ks*4,4)}, {R(oW+ks*4,4)}, {'0' if ks == 0 else R(T+32,4)}")
        if L == 0:
            e(f"v_add_u32 {t(36)}, {csoff}, v{pub}\n{LOCCMP}\ns_nop 5")
        else:
            e(f"{LOCCMP}\ns_nop 6")
        e(f"v_and_or_b32 {t(32)}, {t(32)}, {sMASK}, v{vTAG}")
        ins = [f"global_store_dword v{pub}, {t(32)}, {base}"]
        if L == 0:
            e(f"v_and_or_b32 {t(33)}, {t(33)}, {sMASK}, v{vTAG}")
            ins += ["s_mov_b64 exec, 0xffff", f"global_store_dword {t(36)}, {t(33)}, {base}", "s_mov_b64 exec, -1"]
        if dual:
            for s in ins: e(s)
            return [s.replace(base, sQX) + " sc1" if s.startswith("global") else s for s in ins]
        else:
            lstore(ins)
    def gram(stat, base, dual):
        xreads()
        e(f"s_lshl_b32 s48, {sXCC}, 8\ns_or_b32 s48, s48, s34")
        for ks in range(4):
            e(f"s_waitcnt lgkmcnt({3-ks})")
            e(f"{MFMA} {R(T+32,4)}, {R(T+16+ks*4,4)}, {R(T+16+ks*4,4)}, {'0' if ks == 0 else R(T+32,4)}")
        e(f"""
        v_mov_b32 {t(36)}, s32
        v_mov_b32 {t(37)}, s33
        v_mov_b32 {t(38)}, s48
        v_mov_b32 {t(39)}, s35
        s_mov_b64 exec, {sM20}
        {LOCCMP}
        s_nop 1
        v_and_or_b32 {t(36)}, {t(32)}, {sMASK}, {t(36)}
        v_and_or_b32 {t(37)}, {t(33)}, {sMASK}, {t(37)}
        """)
        ins = [f"global_store_dwordx4 v{stat}, {R(T+36,4)}, {base}"]
        if dual:
            e(ins[0])
            e("s_mov_b64 exec, -1")
            for i in range(4): e(f"v_mov_b32 v{oWO+8+i}, {t(36+i)}")
        else: lstore(ins)
        e("s_mov_b64 exec, -1")

    def probe(dst, off):
        e(f"""
        s_memtime s[80:81]
        s_waitcnt lgkmcnt(0)
        s_load_dword s86, s[78:79], {off} glc
        s_waitcnt lgkmcnt(0)
        s_memtime s[82:83]
        s_waitcnt lgkmcnt(0)
        s_sub_u32 {dst}, s82, s80
        """)
    def probe1():
        e(f"""
        s_lshr_b32 s48, s2, 6
        s_lshl_b32 s48, s48, 14
        s_and_b32 s49, s2, 63
        s_lshl_b32 s49, s49, 7
        s_add_u32 s48, s48, s49
        s_add_u32 s48, s48, {W_PROBE}
        s_add_u32 s78, s24, s48
        s_addc_u32 s79, s25, 0
        """)
        probe("s84", 0)
        e(f"""
        s_cmp_gt_u32 s84, {cfg.thr}
        s_cselect_b32 s48, 0x2001, 1
        v_mov_b32 {t(0)}, s48
        v_mov_b32 {t(1)}, {L_FL + 48}
        v_mov_b32 {t(2)}, s84
        ds_write_b32 {t(1)}, {t(2)} offset:8
        ds_write_b32 {t(1)}, {t(0)}
        """)
        if cfg.stamps: e(f"v_writelane_b32 v{g.vst}, s84, 61")
    def probe2():
        e(f"v_mov_b32 {t(1)}, {L_FL + 48}\nds_read_b32 {t(2)}, {t(1)} offset:8\ns_waitcnt lgkmcnt(0)\nv_readfirstlane_b32 s84, {t(2)}")
        probe("s85", 0x2000)
        e(f"""
        s_min_u32 s84, s84, {cfg.thr + 40}
        s_cmp_lt_u32 s85, s84
        s_cselect_b32 s48, 0x2001, 1
        v_mov_b32 {t(0)}, s48
        ds_write_b32 {t(1)}, {t(0)} offset:4
        """)
        if cfg.stamps: e(f"v_writelane_b32 v{g.vst}, s48, 62")
    def selwait(slot=0):
        if cfg.probe != 2: return
        lp, dn = g.L("Lq"), g.L("Lq")
        e(f"""
        v_mov_b32 {t(1)}, {L_FL + 48 + 4 * slot}
        s_mov_b32 {sCNT}, 0
        {lp}:
        ds_read_b32 {t(0)}, {t(1)}
        s_add_u32 {sCNT}, {sCNT}, 1
        s_cmp_gt_u32 {sCNT}, 0x10000
        s_cbranch_scc1 {dn}
        s_waitcnt lgkmcnt(0)
        v_cmp_eq_u32 vcc, 0, {t(0)}
        s_cbranch_vccnz {lp}
        {dn}:
        s_waitcnt lgkmcnt(0)
        s_movk_i32 s48, 0x2000
        v_bfi_b32 v{vXG}, s48, {t(0)}, v{vXG}
        v_bfi_b32 v{vHNL}, s48, {t(0)}, v{vHNL}
        """)
    def apply_sel():
        if cfg.probe != 1: return
        e(f"""
        v_mov_b32 {t(1)}, {L_FL + 48}
        ds_read_b32 {t(0)}, {t(1)}
        s_waitcnt lgkmcnt(0)
        v_subrev_u32 {t(0)}, s88, {t(0)}
        v_add_u32 v{vXG}, v{vXG}, {t(0)}
        v_add_u32 v{vHNL}, v{vHNL}, {t(0)}
        """)
    def set_loc(b):
        e(f"""
        v_and_b32 {t(b)}, {t(b)}, {t(b+1)}
        v_and_b32 {t(b+2)}, {t(b+2)}, {t(b+3)}
        v_and_b32 {t(b)}, {t(b)}, {t(b+2)}
        s_nop 0
        v_readfirstlane_b32 {sLOC}, {t(b)}
        s_nop 0
        {LOCCMP}
        s_cselect_b64 {sQB}, {sQX}, {sWS}
        """)
    def lsignal(k):
        e(f"v_mov_b32 {t(58)}, {k}\nds_write_b32 {t(59)}, {t(58)}")
    def lwait(k, hook=None):
        lsp, lsd = g.L("Lq"), g.L("Lq")
        e(f"""
        v_mov_b32 {t(57)}, {L_FL}
        s_mov_b32 {sCNT}, 0
        {lsp}:
        ds_read_b128 {R(T+48,4)}, {t(57)}
        ds_read_b128 {R(T+52,4)}, {t(57)} offset:16
        s_add_u32 {sCNT}, {sCNT}, 1
        s_cmp_gt_u32 {sCNT}, 0x100000
        s_cbranch_scc1 {lsd}
        """)
        if hook:
            lh, lh2 = g.L("Lq"), g.L("Lq")
            e(f"s_cmp_eq_u32 {sCNT}, 64\ns_cbranch_scc1 {lh}\n{lh2}:")
            g.ool(lambda: (e(f"{lh}:"), hook(), e(f"s_branch {lh2}")))
        e(f"""
        s_waitcnt lgkmcnt(0)
        v_min3_u32 {t(48)}, {t(48)}, {t(49)}, {t(50)}
        v_min3_u32 {t(51)}, {t(51)}, {t(52)}, {t(53)}
        v_min3_u32 {t(48)}, {t(48)}, {t(54)}, {t(55)}
        v_min_u32 {t(48)}, {t(48)}, {t(51)}
        v_cmp_gt_u32 vcc, {k}, {t(48)}
        s_cbranch_vccnz {lsp}
        {lsd}:
        """)
    RSTD = f"""
        v_mul_f32 {t(12)}, s64, {t(12)}
        v_fma_f32 {t(12)}, -{t(13)}, {t(13)}, {t(12)}
        v_max_f32 {t(12)}, 0, {t(12)}
        v_add_f32 {t(12)}, {hex(f2u(1e-5))}, {t(12)}
        v_rsq_f32 {t(12)}, {t(12)}
        """
    def qk_softmax():
        for ks in range(4):
            e(f"ds_read_b128 {R(T+16+ks*4,4)}, v{lQR} offset:{ks*64}")
        e(f"v_mul_f32 v{vSC}, {hex(f2u(128**-0.5 * math.log2(math.e)))}, {t(12)}")
        for ks in range(4):
            e(f"s_waitcnt lgkmcnt({3-ks})")
            for h in range(2):
                e(f"{MFMA} {R(T+32+h*4,4)}, {R(oK+(h*4+ks)*4,4)}, {R(T+16+ks*4,4)}, {'0' if ks == 0 else R(T+32+h*4,4)}")
        e(f"""
        s_nop 6
        v_max3_f32 {t(0)}, {t(32)}, {t(33)}, {t(34)}
        v_max3_f32 {t(1)}, {t(36)}, {t(37)}, {t(38)}
        v_max3_f32 {t(2)}, {t(0)}, {t(35)}, {t(39)}
        v_max_f32 {t(0)}, {t(2)}, {t(1)}
        v_max_f32 {t(1)}, {t(2)}, {t(1)}
        s_nop 1
        v_permlane32_swap_b32 {t(0)}, {t(1)}
        v_max_f32 {t(2)}, {t(0)}, {t(1)}
        v_max_f32 {t(3)}, {t(0)}, {t(1)}
        s_nop 1
        v_permlane16_swap_b32 {t(2)}, {t(3)}
        v_max_f32 {t(0)}, {t(2)}, {t(3)}
        v_mul_f32 {t(0)}, {t(0)}, v{vSC}
        """)
        for i in range(8):
            e(f"v_fma_f32 {t(32+i)}, {t(32+i)}, v{vSC}, -{t(0)}")
        e(f"ds_write_b32 v{lMW}, {t(0)}")
        for i in range(8):
            e(f"v_exp_f32 {t(32+i)}, {t(32+i)}")
        for i in range(4):
            e(f"v_cvt_pk_bf16_f32 {t(4+i)}, {t(32+2*i)}, {t(33+2*i)}")
        e(f"""
        ds_write_b128 v{lPW}, {R(T+4,4)}
        v_pk_add_f32 {R(T+32,2)}, {R(T+32,2)}, {R(T+34,2)}
        v_pk_add_f32 {R(T+36,2)}, {R(T+36,2)}, {R(T+38,2)}
        v_pk_add_f32 {R(T+32,2)}, {R(T+32,2)}, {R(T+36,2)}
        v_add_f32 {t(32)}, {t(32)}, {t(33)}
        ds_write_b32 v{lLW}, {t(32)}
        """)
    def fweights():
        e(f"""
        v_max3_f32 {t(8)}, {t(0)}, {t(1)}, {t(2)}
        v_max_f32 {t(8)}, {t(8)}, {t(3)}
        v_sub_f32 {t(0)}, {t(0)}, {t(8)}
        v_sub_f32 {t(1)}, {t(1)}, {t(8)}
        v_sub_f32 {t(2)}, {t(2)}, {t(8)}
        v_sub_f32 {t(3)}, {t(3)}, {t(8)}
        v_exp_f32 {t(0)}, {t(0)}
        v_exp_f32 {t(1)}, {t(1)}
        v_exp_f32 {t(2)}, {t(2)}
        v_exp_f32 {t(3)}, {t(3)}
        """)
    def pv(ops, fresh):
        e(f"ds_read_b128 {R(T+16,4)}, v{lP}\nds_read_b128 {R(T,4)}, v{lMR}")
        for ks in range(1, 4):
            e(f"ds_read_b128 {R(T+16+ks*4,4)}, v{lP} offset:{ks*1024}")
        if fresh: tr_v(ops)
        mm = lambda ks, tile: e(f"{MFMA} {R(T+32+(tile*4+ks)*4,4)}, {R(T+16+ks*4,4)}, {R(ops[tile*4+ks],4)}, 0")
        wt = lambda ks: e(f"s_waitcnt lgkmcnt({12 - 4*ks if fresh else (4, 2, 1, 0)[ks]})")
        wt(0); mm(0, 0); mm(0, 1)
        wt(1); mm(1, 0)
        e(f"v_max3_f32 {t(8)}, {t(0)}, {t(1)}, {t(2)}\nv_max_f32 {t(8)}, {t(8)}, {t(3)}")
        mm(1, 1)
        e(f"v_sub_f32 {t(0)}, {t(0)}, {t(8)}\nv_sub_f32 {t(1)}, {t(1)}, {t(8)}")
        wt(2); mm(2, 0)
        e(f"v_sub_f32 {t(2)}, {t(2)}, {t(8)}\nv_sub_f32 {t(3)}, {t(3)}, {t(8)}")
        mm(2, 1)
        e(f"v_exp_f32 {t(0)}, {t(0)}")
        wt(3); mm(3, 0)
        e(f"v_exp_f32 {t(1)}, {t(1)}")
        mm(3, 1)
        e(f"""
        v_exp_f32 {t(2)}, {t(2)}
        v_exp_f32 {t(3)}, {t(3)}
        v_mul_f32 {t(12)}, {t(0)}, {t(32)}
        v_mul_f32 {t(13)}, {t(0)}, {t(48)}
        v_fmac_f32 {t(12)}, {t(1)}, {t(36)}
        v_fmac_f32 {t(13)}, {t(1)}, {t(52)}
        v_fmac_f32 {t(12)}, {t(2)}, {t(40)}
        v_fmac_f32 {t(13)}, {t(2)}, {t(56)}
        v_fmac_f32 {t(12)}, {t(3)}, {t(44)}
        v_fmac_f32 {t(13)}, {t(3)}, {t(60)}
        {LOCCMP}
        v_cvt_pk_bf16_f32 {t(12)}, {t(12)}, {t(13)}
        v_min_u32 {t(12)}, -2, {t(12)}
        """)
        lstore([f"global_store_dword v{vOP}, {t(12)}, {sWS}"])
    def ml_pre():
        e(f"v_lshlrev_b32 {t(14)}, 6, v{vU}\nv_add_u32 {t(14)}, {L_LS}, {t(14)}\ns_mov_b32 s42, 0x00010001\ns_mov_b32 s43, 0x00010001\ns_mov_b64 exec, s[42:43]\n{LOCCMP}")
    def ml_store(have_f):
        if not have_f: e(f"ds_read_b128 {R(T,4)}, v{lMR}")
        for i in range(4):
            e(f"ds_read_b128 {R(T+16+4*i,4)}, {t(14)} offset:{16*i}")
        if not have_f:
            e("s_waitcnt lgkmcnt(4)")
            fweights()
        e(f"v_min_u32 {t(8)}, -2, {t(8)}\ns_waitcnt lgkmcnt(0)")
        for i in range(4):
            e(f"v_pk_add_f32 {R(T+16+4*i,2)}, {R(T+16+4*i,2)}, {R(T+18+4*i,2)}")
        e(f"""
        v_add_f32 {t(16)}, {t(16)}, {t(17)}
        v_add_f32 {t(20)}, {t(20)}, {t(21)}
        v_add_f32 {t(24)}, {t(24)}, {t(25)}
        v_add_f32 {t(28)}, {t(28)}, {t(29)}
        v_mul_f32 {t(9)}, {t(0)}, {t(16)}
        v_fmac_f32 {t(9)}, {t(1)}, {t(20)}
        v_fmac_f32 {t(9)}, {t(2)}, {t(24)}
        v_fmac_f32 {t(9)}, {t(3)}, {t(28)}
        v_min_u32 {t(9)}, -2, {t(9)}
        """)
        lstore([f"global_store_dword v{vMP}, {t(8)}, {sWS}", f"global_store_dword v{vMP}, {t(9)}, {sWS} offset:256"])
        e("s_mov_b64 exec, -1")
    def oflag(L):
        gprep(1, True)
        gflag(0)
        e("s_mov_b64 exec, -1")
    def ml_issue():
        e(f"global_load_dword {t(8)}, v{vML}, {sWS} sc1\nglobal_load_dword {t(13)}, v{vML}, {sWS} offset:256 sc1")
    OPS1 = [oV + 4 * i for i in range(8)]
    OPS0 = [oW2 + 4 * i for i in range(7)] + [oWO]

    WL = lambda m: ['', f'global_load_dword {t(63)}, v{vJ}, {sWS}', f'global_load_dword {t(63)}, v{vJ}, {sWS} nt', f'global_load_dword {t(63)}, v{vJ}, {sWS} sc1'][m]
    def front_loader():
        e("L_role1:")
        ids()
        e(f"v_mov_b32 v{vZERO}, 0")
        loader_addr()
        e("s_barrier")
        seq = [("q", i) for i in range(4)]
        cnt = {}
        for ch in ORDERS[cfg.order] + ("r" * 6 if cfg.w2pos == 0 else "") + "x":
            seq.append((ch, cnt.get(ch, 0))); cnt[ch] = cnt.get(ch, 0) + 1
        marks = [max(i for i, x in enumerate(seq) if x[0] == k) for k in "qKV"]
        names = ["A_in", "K_in", "V_in"]
        extra = {"A_in": ["A_pub"], "K_in": ["q_in", "P_out"], "V_in": []}
        wt = [0 if ((k == "o" and c >= 2 and not cfg.hitw) or k in "xr") else 1 for k, c in seq]
        landed = -1
        nsig = 0
        def signals():
            nonlocal nsig
            while nsig < 3 and marks[nsig] <= landed:
                lsignal(nsig + 1)
                g.stamp(names[nsig])
                for x in extra[names[nsig]]: g.stamp(x)
                nsig += 1
        e(f"s_lshl_b32 s48, {sJ}, 2\ns_add_u32 s48, s48, {L_FL}\nv_mov_b32 {t(59)}, s48")
        def lsetup():
            e(f"s_load_dword {sT}, {sWS}, {W_EPOCH}")
            for _ in setup(1): pass
            e(f"""
            s_lshr_b32 s48, s2, 6
            s_lshl_b32 s48, s48, 14
            s_and_b32 s49, s2, 63
            s_lshl_b32 s49, s49, 7
            s_add_u32 s48, s48, s49
            s_add_u32 s48, s48, {W_PROBE}
            s_add_u32 s78, s24, s48
            s_addc_u32 s79, s25, 0
            s_mov_b32 s84, 0
            """)
            e("s_waitcnt lgkmcnt(0)")
            tags(True)
        g.stamp("setup")
        save = g.cur; g.cur = []; lsetup(); pend = g.cur; g.cur = save
        def drip(n):
            k = min(n, len(pend))
            while k < len(pend) and (pend[k].split()[0] in ("s_addc_u32", "v_cndmask_b32", "s_cselect_b32") or pend[k-1].split()[0].startswith("v_cmp")): k += 1
            g.cur.extend(pend[:k]); del pend[:k]
        for i in range(4, len(seq)):
            j, acc = i, wt[i]
            while j > 0 and acc + wt[j-1] <= (cfg.win if i <= marks[1] + cfg.vfrom else cfg.winv if i <= marks[2] else cfg.wtail):
                j -= 1; acc += wt[j]
            if i == marks[2] + 1 + cfg.vsig and landed < marks[2]:
                e(f"s_waitcnt vmcnt({cfg.vsig})")
                landed = marks[2]
                signals()
            if i == 4 and cfg.hold < 4:
                drip(cfg.chunk * 4)
                j = max(j, 4 - cfg.hold)
            ins = item(*seq[i]) if seq[i][0] != "x" else f"global_load_dword {t(14)}, v{vXO}, {sX}"
            if j - 1 > landed:
                e(f"s_waitcnt vmcnt({i - j})")
            e(ins)
            if cfg.ldbg:
                e(f"s_memrealtime s[92:93]\ns_waitcnt lgkmcnt(0)\nv_writelane_b32 v{vst2}, s92, {i}")
            landed = max(landed, j - 1)
            signals()
            drip(cfg.chunk * (3 if i == 4 else 1))
        while nsig < 3:
            landed = marks[nsig]
            e(f"s_waitcnt vmcnt({len(seq) - 1 - landed})")
            signals()
        drip(10000)
        nopoll(); nopoll()
        e(f"s_waitcnt vmcnt(0)\n{RESID}")

    def front_role0():
        lc, lc2, lc3, lc4 = g.L("Lc"), g.L("Lc"), g.L("Lc"), g.L("Lc")
        for _ in range(cfg.shift): e("s_nop 0")
        e("L_role0:")
        if cfg.prio: e("s_setprio 2")
        ids()
        e(f"""
        v_mov_b32 v{vZERO}, 0
        v_lshlrev_b32 {t(12)}, 2, v{vI}
        v_add_u32 {t(12)}, {L_FL}, {t(12)}
        ds_write_b32 {t(12)}, v{vZERO}
        s_waitcnt lgkmcnt(0)
        global_load_dword {t(14)}, v{vXO}, {sX}
        global_load_dword {t(15)}, v{vXO}, {sX} offset:2048
        v_mov_b32 {t(8)}, -1
        v_mov_b32 {t(9)}, -1
        v_mov_b32 {t(10)}, -1
        v_mov_b32 {t(11)}, -1
        v_lshlrev_b32 {t(13)}, 4, v{vL}
        v_mov_b32 {t(5)}, 0
        s_cmp_lt_u32 {sW}, 2
        s_cbranch_scc1 {lc}
        s_lshl_b32 s48, {sSL}, 10
        s_and_b32 s49, {sW}, 1
        s_lshl_b32 s49, s49, {int(math.log2(O_LS))}
        s_add_u32 s48, s48, s49
        s_add_u32 s48, s48, {W_O}
        v_add_u32 v{vJ}, s48, {t(13)}
        global_store_dwordx4 v{vJ}, {R(T+8,4)}, {sWS} sc1
        {'' if cfg.xpre else f's_branch {lc3}'}
        s_and_b32 s48, {sR}, 15
        s_cbranch_scc1 {lc3}
        s_and_b32 s49, {sW}, 1
        s_mul_i32 s49, s49, {2 * X_STRIDE}
        s_lshl_b32 s48, {sG}, 8
        s_add_u32 s48, s48, s49
        s_lshl_b32 s49, {sR}, 3
        s_add_u32 s48, s48, s49
        s_add_u32 s48, s48, {W_X0 + X_HINT}
        v_lshrrev_b32 {t(12)}, 3, v{vL}
        v_and_b32 {t(13)}, 0x70, {t(13)}
        v_lshl_add_u32 {t(12)}, {t(12)}, 11, {t(13)}
        v_add_u32 {t(12)}, s48, {t(12)}
        global_store_dwordx4 {t(12)}, {R(T+8,4)}, {sWS} sc1
        v_add_u32 {t(12)}, {X_STRIDE}, {t(12)}
        global_store_dwordx4 {t(12)}, {R(T+8,4)}, {sWS} sc1
        s_branch {lc3}
        {lc}:
        v_bfe_u32 {t(12)}, v{vL}, 3, 1
        v_lshlrev_b32 {t(12)}, 13, {t(12)}
        v_and_b32 {t(7)}, 0x70, {t(13)}
        v_add_u32 {t(12)}, {t(12)}, {t(7)}
        s_cmp_eq_u32 {sW}, 1
        s_cbranch_scc1 {lc2}
        s_lshl_b32 s48, {sHI}, 14
        s_lshl_b32 s49, {sLO}, 10
        s_add_u32 s48, s48, s49
        s_lshl_b32 s49, {sG}, 7
        s_add_u32 s48, s48, s49
        s_add_u32 s48, s48, {W_X0}
        s_mov_b32 s49, {X_STRIDE}
        v_mad_u32_u24 {t(6)}, v{vU}, s49, {t(12)}
        v_add_u32 {t(6)}, s48, {t(6)}
        global_store_dwordx4 {t(6)}, {R(T+8,4)}, {sWS} sc1
        s_branch {lc4}
        {lc2}:
        s_lshr_b32 s48, s2, 6
        s_lshl_b32 s48, s48, 14
        s_and_b32 s49, s2, 63
        s_lshl_b32 s49, s49, 7
        s_add_u32 s48, s48, s49
        s_add_u32 s48, s48, {W_PROBE}
        v_add_u32 {t(12)}, s48, {t(12)}
        s_mov_b64 exec, 0xffff
        global_store_dwordx4 {t(12)}, {R(T+8,4)}, {sWS} sc1
        s_mov_b64 exec, -1
        s_lshl_b32 s48, {sG}, 10
        s_and_b32 s49, {sR}, 1
        s_lshl_b32 s49, s49, {int(math.log2(ML_LS))}
        s_add_u32 s48, s48, s49
        s_add_u32 s48, s48, {W_ML}
        v_add_u32 v{vJ}, s48, {t(13)}
        s_cmp_gt_u32 {sR}, 1
        s_cbranch_scc1 {lc3}
        global_store_dwordx4 v{vJ}, {R(T+8,4)}, {sWS} sc1
        s_branch {lc3}
        {lc4}:
        s_lshl_b32 s48, {sG}, 16
        s_mul_i32 s49, {sR}, {11*128}
        s_add_u32 s48, s48, s49
        s_add_u32 s48, s48, {W_QP}
        v_lshlrev_b32 {t(12)}, 7, v{vI}
        v_add_u32 v{vJ}, s48, {t(12)}
        s_lshl_b32 s48, {sG}, 11
        s_add_u32 s48, s48, {W_IND}
        v_add_u32 {t(12)}, s48, {t(12)}
        v_cmp_gt_u32 vcc, 16, v{vL}
        s_cmp_eq_u32 {sR}, 0
        s_cselect_b32 s42, 0xffff0000, 0
        s_or_b32 s42, s42, 0x7ff
        s_mov_b32 s43, 0
        v_cndmask_b32 v{vJ}, {t(12)}, v{vJ}, vcc
        s_mov_b64 exec, s[42:43]
        {WL(cfg.w0)}
        s_mov_b64 exec, -1
        v_mov_b32 {t(5)}, v{vJ}
        s_mov_b64 s[90:91], s[42:43]
        s_lshl_b32 s48, {sG}, 15
        s_mul_i32 s49, {sR}, {6*128}
        s_add_u32 s48, s48, s49
        s_add_u32 s48, s48, {W_HP}
        v_add_u32 v{vJ}, s48, {t(13)}
        {lc3}:
        {'s_memrealtime s[100:101]' if cfg.stamps else ''}
        s_load_dword {sT}, {sWS}, {W_EPOCH}
        s_barrier
        """)
        for _ in setup(0): pass
        tr128_addr(L_WQ)
        e(f"s_lshl_b32 s48, {sW}, 2\ns_add_u32 s48, s48, {L_FL + 16}\nv_mov_b32 {t(59)}, s48\ns_waitcnt lgkmcnt(0)")
        tags(True)
        g.stamp("setup")
        e(f"s_waitcnt vmcnt(0)\nds_write_b32 v{lXW}, {t(14)}\nds_write_b32 v{lXW}, {t(15)} offset:640\n{RESID}")
        lsignal(1)
        if cfg.prom:
            lpr = g.L("Lw")
            e(f"s_cmp_lg_u32 {sW}, 0\ns_cbranch_scc1 {lpr}\ns_mov_b64 exec, s[90:91]\nglobal_load_dword {t(63)}, {t(5)}, {sWS}\ns_mov_b64 exec, -1\n{lpr}:")
        lwait(1)
        g.stamp("A_in")
        later = tile_gemv(0, oWQ, vAP, sQB, 0x8000, True, lambda: tr128(oWQ, 4))
        la, lb = g.L("La"), g.L("La")
        e(f"v_mov_b32 v{oWO+4}, {t(32)}\nv_mov_b32 v{oWO+5}, {t(33)}\ns_mov_b32 s89, 0")
        wave_if("eq", 3, la)
        gram(vAS, sQB, True)
        e(f"""
        v_lshlrev_b32 {t(47)}, 7, v{vL}
        v_add_u32 {t(47)}, {sR}, {t(47)}
        s_mov_b64 exec, {(1 << NREP) - 1}
        global_store_byte {t(47)}, v{vTV}, s[76:77] offset:1024
        s_mov_b64 exec, -1
        {la}:
        """)
        g.stamp("A_pub")
        lgo, lp = g.L("Ln"), g.L("Lw")
        def wt_copy():
            ld = g.L("Lt")
            e(f"""
            s_cmp_lg_u32 s89, 0
            s_cbranch_scc1 {ld}
            s_mov_b32 s89, 1
            v_add_u32 v{oWO+6}, 0x8000, v{vAP}
            global_store_dword v{vAP}, v{oWO+4}, {sQX} sc1
            s_mov_b64 exec, 0xffff
            global_store_dword v{oWO+6}, v{oWO+5}, {sQX} sc1
            s_mov_b64 exec, -1
            s_cmp_lg_u32 {sW}, 3
            s_cbranch_scc1 {ld}
            s_mov_b64 exec, {sM20}
            global_store_dwordx4 v{vAS}, {R(oWO+8,4)}, {sQX} sc1
            s_mov_b64 exec, -1
            {ld}:
            """)
        lw = g.L("Lw")
        e(f"""
        s_sub_u32 s48, {sW}, {1 if cfg.xpos else 0}
        s_cmp_gt_u32 s48, {1 if cfg.xpos else 2}
        s_cbranch_scc1 {lw}
        s_mov_b32 s42, 0x01010101
        s_mov_b32 s43, 0x01010101
        s_mov_b64 exec, s[42:43]
        {WL(cfg.w1_)}
        s_mov_b64 exec, -1
        {lw}:
        """)
        if cfg.otouch == 1:
            lo_ = g.L("Lw")
            e(f"""
            s_cmp_lg_u32 {sG}, {sLO}
            s_cbranch_scc1 {lo_}
            s_mov_b64 exec, 1
            global_load_dword {t(63)}, v{vXO}, {sOUT}
            global_load_dword {t(63)}, v{vXO}, {sOUT} offset:2048
            s_mov_b64 exec, -1
            {lo_}:
            """)
        e(f"""
        s_mul_i32 s78, s32, 0x01010101
        s_mov_b32 s79, s78
        v_add_u32 {t(44)}, 0x1000, v{vQL}
        v_add_u32 {t(45)}, 0x1000, v{vQC}
        v_lshl_add_u32 {t(46)}, v{vU}, 8, v{vQST}
        v_xor_b32 {t(40)}, v{vU}, v{vI}
        v_lshlrev_b32 {t(40)}, 4, {t(40)}
        v_lshl_add_u32 {t(40)}, v{vI}, 8, {t(40)}
        s_lshl_b32 s48, {sW}, 13
        s_add_u32 s48, s48, {L_K}
        v_add_u32 {t(40)}, s48, {t(40)}
        v_xor_b32 {t(41)}, 64, {t(40)}
        v_xor_b32 {t(42)}, 0x80, {t(40)}
        v_xor_b32 {t(43)}, 0xc0, {t(40)}
        """)
        def walk():
            if not cfg.pads: return
            ld = g.L("Lw")
            for w in range(4):
                nx = g.L("Lw")
                if w < 3: e(f"s_cmp_lg_u32 {sW}, {w}\ns_cbranch_scc1 {nx}")
                e(f"s_call_b64 s[94:95], L_pad{w}")
                if w == 0 and HEAT: e(f"s_call_b64 s[94:95], L_heat{HEATMAX}")
                if w < 3: e(f"s_branch {ld}\n{nx}:")
            e(f"{ld}:")
        if cfg.wpos == 0: walk()
        for k in range(NREP):
            e(f"""
            s_sleep {cfg.dq0 if k == 0 else cfg.dsf}
            s_load_dwordx8 s[80:87], s[76:77], {1024 + k*128}
            s_waitcnt lgkmcnt(0)
            s_xor_b64 s[80:81], s[80:81], s[78:79]
            s_xor_b64 s[82:83], s[82:83], s[78:79]
            s_xor_b64 s[84:85], s[84:85], s[78:79]
            s_xor_b64 s[86:87], s[86:87], s[78:79]
            s_or_b64 s[80:81], s[80:81], s[82:83]
            s_or_b64 s[84:85], s[84:85], s[86:87]
            s_or_b64 s[80:81], s[80:81], s[84:85]
            s_cbranch_scc0 {lgo}
            """)
            if cfg.stamps: e(f"v_writelane_b32 v{g.vst}, {k+1}, 59")
        e(f"{lgo}:")
        if cfg.noq:
            e(f"v_mov_b32 {t(58)}, 3\nds_write_b32 {t(59)}, {t(58)}")
            lwait(3)
            e(f"s_sleep 4\nv_mov_b32 {t(58)}, 1\nds_write_b32 {t(59)}, {t(58)}\ns_sleep 4")
        g.stamp("K_in")
        def issue():
            e(f"v_mov_b32 {t(10)}, v{vTAG}\ns_mov_b64 exec, 0xffffffff\nglobal_load_dword {t(10)}, {t(46)}, {sQB} sc1\ns_mov_b64 exec, -1")
            e(f"global_load_dwordx4 {R(T,4)}, v{vQL}, {sQB} sc1\nglobal_load_dwordx4 {R(T+4,4)}, v{vQC}, {sQB} sc1")
            e(f"global_load_dwordx4 {R(T+16,4)}, {t(44)}, {sQB} sc1\nglobal_load_dwordx4 {R(T+20,4)}, {t(45)}, {sQB} sc1")
            e(f"v_mov_b32 {t(12)}, {hex(f2u(1.0/512))}")
        def body():
            e(f"v_xor_b32 {t(10)}, v{vTAG}, {t(10)}")
            for b_ in (0, 4, 16, 20): xor4(T + b_)
            e(f"v_add_f32_dpp {t(11)}, {t(10)}, {t(10)} row_ror:4 {DPP}")
            e(f"v_or3_b32 {t(8)}, {t(0)}, {t(1)}, {t(2)}\nv_or3_b32 {t(8)}, {t(8)}, {t(3)}, {t(10)}")
            e(f"v_add_f32_dpp {t(11)}, {t(11)}, {t(11)} row_ror:8 {DPP}")
            for b_ in (4, 6, 16, 18, 20, 22):
                e(f"v_or3_b32 {t(8)}, {t(8)}, {t(b_)}, {t(b_+1)}")
            e(f"v_readlane_b32 s65, {t(11)}, 1\nv_readlane_b32 s64, {t(11)}, 0\n{BYTECHK(t(8))}")
            for b_ in (0, 4, 16, 20): swapred(T + b_, "s_nop 1", "")
            e(f"""
            v_mul_f32 {t(13)}, s65, {t(12)}
            v_mov_b32 v{vCS}, {t(4)}
            v_fma_f32 {t(0)}, -{t(13)}, {t(4)}, {t(0)}
            v_fma_f32 {t(16)}, -{t(13)}, {t(20)}, {t(16)}
            v_cvt_pk_bf16_f32 {t(4)}, {t(0)}, {t(0)}
            v_cvt_pk_bf16_f32 {t(5)}, {t(16)}, {t(16)}
            """)
        def onretry():
            lr = g.L("Lt")
            e(f"s_cmp_lt_u32 {sCNT}, {cfg.nloc}\ns_cbranch_scc1 {lr}")
            wt_copy()
            e(f"s_bitcmp1_b32 {sCNT}, 0\ns_cselect_b64 {sQB}, {sWS}, {sQX}\n{lr}:")
        B2 = oW2
        def first2():
            issue()
            e(f"s_sleep {cfg.q2}")
            e(f"v_mov_b32 v{B2+16}, v{vTAG}\ns_mov_b64 exec, 0xffffffff\nglobal_load_dword v{B2+16}, {t(46)}, {sQB} sc1\ns_mov_b64 exec, -1")
            e(f"global_load_dwordx4 {R(B2,4)}, v{vQL}, {sQB} sc1\nglobal_load_dwordx4 {R(B2+4,4)}, v{vQC}, {sQB} sc1")
            e(f"global_load_dwordx4 {R(B2+8,4)}, {t(44)}, {sQB} sc1\nglobal_load_dwordx4 {R(B2+12,4)}, {t(45)}, {sQB} sc1")
            if cfg.wpos: walk()
            e("s_waitcnt vmcnt(5)")
        def second():
            e(f"v_mov_b32 {t(10)}, v{B2+16}")
            for i in range(8):
                e(f"v_mov_b32 {t(i)}, v{B2+i}\nv_mov_b32 {t(16+i)}, v{B2+8+i}")
        if cfg.q2:
            poll(issue, body, 1, onretry=onretry, first=first2, second=second)
        else:
            poll(issue, body, 1, onretry=onretry, heat=walk if cfg.wpos else None)
        e(f"""
        ds_write_b16 v{lQW}, {t(4)}
        ds_write_b16 v{lQW}, {t(5)} offset:640
        s_lshl_b32 s48, {sW}, 8
        s_add_u32 s48, s48, {L_CS}
        v_lshlrev_b32 {t(14)}, 2, v{vL}
        v_add_u32 {t(14)}, s48, {t(14)}
        ds_write_b32 {t(14)}, {t(20)}
        s_lshl_b32 s48, {sXCC}, 8
        v_cmp_ne_u32 vcc, s48, {t(10)}
        s_and_b32 s48, vcc_lo, 0x44444444
        s_cselect_b32 s48, 0, 1
        v_mov_b32 {t(14)}, s48
        ds_write_b32 {t(59)}, {t(14)} offset:16
        """)
        lsignal(2)
        g.stamp("q_in")
        e(RSTD)
        lwait(2, wt_copy)
        e(f"ds_read_b128 {R(T+52,4)}, {t(57)} offset:32")
        for h in range(2):
            for ks in range(4):
                e(f"ds_read_b128 {R(oK + (h*4+ks)*4, 4)}, {t(40+ks)} offset:{h*4096}")
        qk_softmax()
        lsignal(3)
        set_loc(52)
        l1, l2, l3 = g.L("Lt"), g.L("Lt"), g.L("Lt")
        e(f"s_cbranch_scc1 {l1}\n{l2}:")
        g.ool(lambda: (e(f"{l1}:"), wt_copy(), e(f"s_branch {l2}")))
        g.stamp("P_out")
        if cfg.q2: e("s_waitcnt vmcnt(0)")
        lwait(3)
        g.stamp("V_in")
        pv(OPS0, True)
        if cfg.xpos == 1: late_warm()
        lm, lm2 = g.L("Lm"), g.L("Lm")
        wave_if("eq", 1, lm)
        ml_pre()
        ml_store(True)
        e(f"{lm2}:")
        g.ool(lambda: (g.pad(), e(f"{lm}:"), wave_if("eq", 2, lm2), oflag(0), e(f"s_branch {lm2}")))

    def late_warm():
        l1 = g.L("Lx")
        e(f"""
        s_sub_u32 s48, {sW}, {1 if cfg.xpos else 0}
        s_cmp_le_u32 s48, {1 if cfg.xpos else 2}
        s_cbranch_scc1 {l1}
        s_mov_b32 s42, 0x01010101
        s_mov_b32 s43, 0x01010101
        s_mov_b64 exec, s[42:43]
        global_load_dword {t(63)}, v{vJ}, {sWS}
        s_mov_b64 exec, -1
        {l1}:
        """)

    C512 = hex(f2u(1.0/512))
    def program(role):
        g.nst = 1 if cfg.stamps else 0
        g.npoll = 0
        g.npt = 0
        lf = f"L_fin{role}"
        WAIT0 = lambda: e("s_waitcnt vmcnt(0)")
        def q_issue():
            e(f"global_load_dword {t(10)}, v{vQST}, {sQB} sc1\nglobal_load_dwordx4 {R(T,4)}, v{vQL}, {sQB} sc1\nv_mov_b32 {t(12)}, {C512}")
        def o_issue():
            ml_issue()
            e(f"global_load_dwordx4 {R(T,4)}, v{vOL}, {sWS} sc1\nglobal_load_dwordx4 {R(T+4,4)}, v{vOL}, {sWS} offset:1024 sc1")
        for L in range(2):
            g.fine_on = (L == 1 and cfg.fine == 1)
            def h_issue():
                e(f"global_load_dword {t(10)}, v{vHST}, {sWS} sc1\nglobal_load_dword {t(0)}, v{vHL}, {sWS} sc1\nglobal_load_dword {t(1)}, v{vHL}, {sWS} offset:256 sc1")
                if L == 0:
                    e(f"global_load_dword {t(2)}, v{vHC}, {sWS} sc1\nglobal_load_dword {t(3)}, v{vHC}, {sWS} offset:256 sc1")
                e(f"v_mov_b32 {t(12)}, {C512}")
            if L == 0:
                if role == 0: front_role0()
                else: front_loader()
                g.stamp("O_pub")
                e(f"""
                s_lshr_b32 s48, {sG}, 2
                s_xor_b32 s48, s48, {cfg.selx}
                s_lshl_b32 s88, s48, 13
                v_add_u32 v{vXG}, s88, v{vXG}
                v_add_u32 v{vHNL}, s88, v{vHNL}
                s_setprio 0
                s_waitcnt vmcnt(0)
                s_barrier
                """)
                o_issue()
            else:
                def lead():
                    xgather(1)
                    g.stamp("A_in")
                    e(f"ds_write_b32 v{lXW}, {t(14)}\n{RESID}")
                    tags()
                if role == 0:
                    seg(lead, [], lambda: tile_gemv(L, oWQ, vAP, sQB, 0x8000, False, None), "A_pub", q_issue)
                else:
                    seg(lead, [(WEQ(7), None, lambda: gram(vAS, sQB, False)),
                               (WEQ(6), lambda: gprep(3), lambda: gflag(cfg.dfq))], None, "A_pub", q_issue)
                def body():
                    e(f"v_xor_b32 {t(10)}, v{vTAG}, {t(10)}")
                    xor4(T)
                    e(f"v_add_f32_dpp {t(11)}, {t(10)}, {t(10)} row_ror:4 {DPP}")
                    e(f"v_or3_b32 {t(8)}, {t(0)}, {t(1)}, {t(2)}\nv_or3_b32 {t(8)}, {t(8)}, {t(3)}, {t(10)}")
                    e(f"v_add_f32_dpp {t(11)}, {t(11)}, {t(11)} row_ror:8 {DPP}")
                    swapred(T, BYTECHK(t(8)) + f"\nv_mul_f32_dpp {t(13)}, {t(11)}, {t(12)} row_newbcast:1 {DPP}", "")
                    e(f"v_fma_f32 {t(0)}, -{t(13)}, v{vCS}, {t(0)}\nv_cvt_pk_bf16_f32 {t(4)}, {t(0)}, {t(0)}")
                def lead():
                    poll(q_issue, body, 0, first=WAIT0)
                    e(f"ds_write_b16 v{lQW}, {t(4)}")
                    g.stamp("q_in")
                    if role == 0: e(RSTD.replace(f"v_mul_f32 {t(12)}, s64, {t(12)}", f"v_mul_f32_dpp {t(12)}, {t(11)}, {t(12)} row_newbcast:0 {DPP}"))
                    g.fs("q<")
                    e("s_waitcnt lgkmcnt(0)\ns_barrier")
                    g.fs("qb")
                    if role == 0: qk_softmax()
                    else:
                        lz = g.L("Lz")
                        e(f"s_xor_b32 s48, {sW}, 5\ns_or_b32 s48, s48, s2\ns_cbranch_scc1 {lz}\ns_mov_b64 exec, 1\nglobal_store_dword v{vZERO}, v{vTV}, {sWS} offset:{W_EPOCH} sc1\ns_mov_b64 exec, -1\n{lz}:")
                    g.stamp("P_out")
                    g.stamp("V_in")
                if role == 1:
                    seg(lead, [], lambda: pv(OPS1, False), "O_pub", o_issue)
                else:
                    seg(lead, [(WEQ(1), ml_pre, lambda: ml_store(False)),
                               (WEQ(2), lambda: gprep(4, True), lambda: gflag(cfg.dfo))], None, "O_pub", o_issue)
            if cfg.fine == 2:
                g.fine_on = (L == 0)
                g.fs("ml")
            g.stamp("ml_in")
            rest = [(k, c) for k in "12" if k not in ORDERS[cfg.order] for c in range(2)] if (L == 0 and role == 1) else []
            NR = len(rest)
            if rest:
                delay(cfg.drest)
                for it in rest: e(item(*it))
            if L == 0:
                tr_wo()
            def body():
                e(f"""
                s_waitcnt vmcnt({2 + NR})
                v_max_f32_dpp {t(9)}, {t(8)}, {t(8)} row_ror:1 {DPP}
                v_max_u32 {t(14)}, {t(8)}, {t(13)}
                s_nop 0
                v_max_f32_dpp {t(9)}, {t(9)}, {t(9)} row_ror:2 {DPP}
                s_waitcnt vmcnt({1 + NR})
                {MFMA} {R(T+16,4)}, {R(T,4)}, {R(oWO,4)}, 0
                v_max_f32_dpp {t(9)}, {t(9)}, {t(9)} row_ror:4 {DPP}
                v_sub_f32 {t(12)}, {t(8)}, {t(9)}
                {MFMA} {R(T+20,4)}, {R(T,4)}, {R(oWO+8,4)}, 0
                v_exp_f32 {t(12)}, {t(12)}
                s_waitcnt vmcnt({NR})
                {MFMA} {R(T+16,4)}, {R(T+4,4)}, {R(oWO+4,4)}, {R(T+16,4)}
                v_mul_f32 {t(9)}, {t(12)}, {t(13)}
                v_max3_u32 {t(10)}, {t(0)}, {t(1)}, {t(2)}
                {MFMA} {R(T+20,4)}, {R(T+4,4)}, {R(oWO+12,4)}, {R(T+20,4)}
                v_add_f32_dpp {t(9)}, {t(9)}, {t(9)} row_ror:1 {DPP}
                v_max3_u32 {t(11)}, {t(3)}, {t(4)}, {t(5)}
                v_max3_u32 {t(10)}, {t(10)}, {t(6)}, {t(7)}
                v_add_f32_dpp {t(9)}, {t(9)}, {t(9)} row_ror:2 {DPP}
                v_max3_u32 {t(10)}, {t(10)}, {t(11)}, {t(14)}
                v_cmp_eq_u32 vcc, -1, {t(10)}
                v_add_f32_dpp {t(9)}, {t(9)}, {t(9)} row_ror:4 {DPP}
                v_mul_f32_dpp {t(10)}, {t(12)}, {t(16)} row_newbcast:0 {DPP}
                v_rcp_f32 {t(9)}, {t(9)}
                """)
            def lead():
                poll(o_issue, body, 0, first=lambda: e("s_waitcnt lgkmcnt(0)") if L == 0 else None)
                hint_send(2 * L, role)
                if cfg.cv == 0:
                    e(f"v_mul_f32_dpp {t(11)}, {t(12)}, {t(20)} row_newbcast:0 {DPP}")
                    for r in range(1, 4):
                        e(f"v_fmac_f32_dpp {t(10)}, {t(12)}, {t(16+r)} row_newbcast:{r} {DPP}")
                        e(f"v_fmac_f32_dpp {t(11)}, {t(12)}, {t(20+r)} row_newbcast:{r} {DPP}")
                    e(f"v_pk_mul_f32 {R(T+10,2)}, {R(T+10,2)}, {R(T+8,2)} op_sel:[0,1] op_sel_hi:[1,1]")
                    e(f"ds_write2st64_b32 v{lCW}, {t(10)}, {t(11)} offset0:0 offset1:10")
                elif cfg.cv == 1:
                    e(f"""
                    v_mul_f32_dpp {t(14)}, {t(12)}, {t(17)} row_newbcast:1 {DPP}
                    v_mul_f32_dpp {t(11)}, {t(12)}, {t(20)} row_newbcast:0 {DPP}
                    v_mul_f32_dpp {t(15)}, {t(12)}, {t(21)} row_newbcast:1 {DPP}
                    v_fmac_f32_dpp {t(10)}, {t(12)}, {t(18)} row_newbcast:2 {DPP}
                    v_fmac_f32_dpp {t(14)}, {t(12)}, {t(19)} row_newbcast:3 {DPP}
                    v_fmac_f32_dpp {t(11)}, {t(12)}, {t(22)} row_newbcast:2 {DPP}
                    v_fmac_f32_dpp {t(15)}, {t(12)}, {t(23)} row_newbcast:3 {DPP}
                    v_pk_add_f32 {R(T+10,2)}, {R(T+10,2)}, {R(T+14,2)}
                    v_mul_f32 {t(10)}, {t(10)}, {t(9)}
                    v_mul_f32 {t(11)}, {t(11)}, {t(9)}
                    ds_write2st64_b32 v{lCW}, {t(10)}, {t(11)} offset0:0 offset1:10
                    """)
                else:
                    for r in range(1, 4):
                        e(f"v_fmac_f32_dpp {t(10)}, {t(12)}, {t(16+r)} row_newbcast:{r} {DPP}")
                    e(f"v_mul_f32_dpp {t(11)}, {t(12)}, {t(20)} row_newbcast:0 {DPP}")
                    e(f"v_mul_f32 {t(10)}, {t(10)}, {t(9)}")
                    e(f"v_fmac_f32_dpp {t(11)}, {t(12)}, {t(21)} row_newbcast:1 {DPP}")
                    e(f"ds_write_b32 v{lCW}, {t(10)}")
                    for r in range(2, 4):
                        e(f"v_fmac_f32_dpp {t(11)}, {t(12)}, {t(20+r)} row_newbcast:{r} {DPP}")
                    e(f"v_mul_f32 {t(11)}, {t(11)}, {t(9)}")
                    e(f"ds_write_b32 v{lCW}, {t(11)} offset:{32*80}")
                g.stamp("O_in")
            def cfin():
                for i in range(4):
                    e(f"ds_read_b128 {R(T+i*4,4)}, v{lCR} offset:{i*16}")
                e("s_waitcnt lgkmcnt(2)")
                e(f"v_pk_add_f32 {R(T,2)}, {R(T,2)}, {R(T+4,2)}\nv_pk_add_f32 {R(T+2,2)}, {R(T+2,2)}, {R(T+6,2)}")
                e(f"v_pk_add_f32 {R(T,2)}, {R(T,2)}, {R(T+2,2)}")
                e("s_waitcnt lgkmcnt(0)")
                e(f"""
                v_pk_add_f32 {R(T+8,2)}, {R(T+8,2)}, {R(T+12,2)}
                v_pk_add_f32 {R(T+10,2)}, {R(T+10,2)}, {R(T+14,2)}
                v_pk_add_f32 {R(T,2)}, {R(T,2)}, {R(T+8,2)}
                v_pk_add_f32 {R(T,2)}, {R(T,2)}, {R(T+10,2)}
                v_add_f32 {t(0)}, {t(0)}, {t(1)}
                s_nop 1
                v_mov_b32_dpp {t(1)}, {t(0)} quad_perm:[0,0,2,2] {DPP}
                v_mov_b32_dpp {t(2)}, {t(0)} quad_perm:[1,1,3,3] {DPP}
                v_cvt_pk_bf16_f32 {t(0)}, {t(1)}, {t(2)}
                v_min_u32 {t(0)}, -2, {t(0)}
                global_store_dword v{vCP}, {t(0)}, {sXI[2*L]} sc1
                """)
            def adv():
                if L == 0:
                    e(f"v_add_u32 v{vOL}, {O_LS}, v{vOL}\nv_add_u32 v{vML}, {ML_LS}, v{vML}")
                    e(f"v_add_u32 v{vMP}, {ML_LS}, v{vMP}" if role == 0 else f"v_add_u32 v{vOP}, {O_LS}, v{vOP}")
            def r1_reads():
                adv()
                tr_v(OPS1)
                tr_w1()
                e(f"""
                v_mov_b32 {t(59)}, {L_FL + 32}
                ds_read_b128 {R(T+52,4)}, {t(59)}
                s_lshl_b32 s48, {sJ}, 8
                s_add_u32 s48, s48, {L_CS}
                v_lshlrev_b32 {t(59)}, 2, v{vL}
                v_add_u32 {t(59)}, s48, {t(59)}
                ds_read_b32 v{vCS}, {t(59)}
                s_waitcnt lgkmcnt(0)
                """)
                set_loc(52)
            assert "1" in ORDERS[cfg.order]
            nx = lambda: x_issue(2 * L)
            if role == 0:
                sw = selwait if L == 0 else (lambda: None)
                paths = [(WEQ(0), None, lambda: (cfin(), adv(), sw())),
                         (WEQ(3), hprep, lambda: (delay(cfg.dhx), hint_wait(2 * L, False), delay(cfg.dx)), lambda: (sw(), adv()))]
                def dflt():
                    if L == 0:
                        lz = g.L("Lz")
                        e(f"s_cmp_lg_u32 {sW}, 1\ns_cbranch_scc1 {lz}")
                        probe1()
                        e(f"{lz}:")
                    adv(); sw()
                seg(lead, paths, dflt, "C_pub", nx)
            elif L == 0:
                def dflt():
                    lz = g.L("Lz")
                    delay(cfg.dr1)
                    e(f"s_cmp_eq_u32 {sW}, 7\ns_cbranch_scc1 {lz}")
                    w2_rest()
                    e(f"{lz}:")
                    r1_reads(); selwait()
                seg(lead, [], dflt, "C_pub", nx)
            else:
                seg(lead, [], None, "C_pub", nx)
            g.stamp("xh_in")
            def lead():
                xgather(2 * L)
                e(f"ds_write_b32 v{lXW}, {t(14)}\n{RESID}")
                g.stamp("x_in")
            if role == 1:
                seg(lead, [(f"s_lshr_b32 s48, {sW}, 1\ns_sub_u32 s48, s48, 2\ns_or_b32 s48, s48, s92\ns_cmp_eq_u32 s48, 0", None,
                            lambda: tile_gemv(L, oW1, vDP, sWS, 0x4000, False, None))], None, "D_pub", h_issue)
            else:
                seg(lead, [(f"s_xor_b32 s48, {sW}, 2\ns_or_b32 s48, s48, s92\ns_cmp_eq_u32 s48, 0", None, lambda: gram(vDS, sWS, False)),
                           (WEQ(3), lambda: gprep(2 + 3 * L), lambda: gflag(cfg.dfh + (5 if L == 0 else 0)))], None, "D_pub", h_issue)
            if L == 0 and role == 0:
                tr128_addr(L_W2)
                tr128(oW2, 7)
            def body():
                e(f"""
                v_xor_b32 {t(10)}, v{vTAG}, {t(10)}
                v_xor_b32 {t(0)}, v{vTAG}, {t(0)}
                v_xor_b32 {t(1)}, v{vTAG}, {t(1)}
                v_add_f32_dpp {t(11)}, {t(10)}, {t(10)} row_ror:4 {DPP}
                v_add_f32 {t(4)}, {t(0)}, {t(1)}
                v_add_f32 {t(5)}, {t(0)}, {t(1)}
                v_add_f32_dpp {t(11)}, {t(11)}, {t(11)} row_ror:8 {DPP}
                v_or3_b32 {t(8)}, {t(0)}, {t(1)}, {t(10)}
                v_permlane32_swap_b32 {t(4)}, {t(5)}
                """)
                if L == 0:
                    e(f"""
                    v_xor_b32 {t(2)}, v{vTAG}, {t(2)}
                    v_xor_b32 {t(3)}, v{vTAG}, {t(3)}
                    v_add_f32 {t(6)}, {t(2)}, {t(3)}
                    v_add_f32 {t(7)}, {t(2)}, {t(3)}
                    v_or3_b32 {t(8)}, {t(8)}, {t(2)}, {t(3)}
                    s_nop 0
                    v_permlane32_swap_b32 {t(6)}, {t(7)}
                    v_add_f32 v{vCS1}, {t(6)}, {t(7)}
                    """)
                e(f"""
                v_mul_f32_dpp {t(13)}, {t(11)}, {t(12)} row_newbcast:1 {DPP}
                v_mul_f32_dpp {t(12)}, {t(11)}, {t(12)} row_newbcast:0 {DPP}
                {BYTECHK(t(8))}
                v_fma_f32 {t(12)}, -{t(13)}, {t(13)}, {t(12)}
                v_add_f32 {t(0)}, {t(4)}, {t(5)}
                v_max_f32 {t(12)}, 0, {t(12)}
                v_add_f32 {t(12)}, {hex(f2u(1e-5))}, {t(12)}
                v_rsq_f32 {t(12)}, {t(12)}
                v_fma_f32 {t(0)}, -{t(13)}, v{vCS1}, {t(0)}
                """)
            def lead():
                poll(h_issue, body, 0, first=WAIT0)
                hint_send(2 * L + 1, role)
                e(f"""
                v_mul_f32 {t(0)}, {t(0)}, {t(12)}
                v_mul_f32 {t(1)}, {hex(f2u(-math.log2(math.e)))}, {t(0)}
                v_exp_f32 {t(1)}, {t(1)}
                s_nop 0
                v_add_f32 {t(1)}, 1.0, {t(1)}
                v_rcp_f32 {t(1)}, {t(1)}
                s_nop 0
                v_mul_f32 {t(0)}, {t(0)}, {t(1)}
                v_cvt_pk_bf16_f32 {t(0)}, {t(0)}, {t(0)}
                ds_write_b16 v{lHW}, {t(0)}
                """)
                if L == 0 and role == 0: late_warm()
                g.stamp("h_in")
            def lead7():
                e("s_waitcnt vmcnt(0)")
                nopoll()
                g.stamp("h_in")
            FIN = (lambda: e(f"s_cmp_lg_u32 {sG}, {sLO}\ns_cbranch_scc1 {lf}")) if L == 1 else None
            ref = L == 0 and cfg.refine
            def efin():
                for ks in range(7):
                    e(f"ds_read_b128 {R(T+ks*4,4)}, v{lHR} offset:{ks*64}")
                for ks in range(7):
                    e(f"s_waitcnt lgkmcnt({6-ks})")
                    e(f"{MFMA} {R(T+32,4)}, {R(T+ks*4,4)}, {R(oW2+ks*4,4)}, {'0' if ks == 0 else R(T+32,4)}")
                e(f"""
                s_nop 6
                s_mov_b64 exec, 0xffff
                v_mov_b32_dpp {t(33)}, {t(32)} quad_perm:[0,0,2,2] {DPP}
                v_mov_b32_dpp {t(34)}, {t(32)} quad_perm:[1,1,3,3] {DPP}
                v_cvt_pk_bf16_f32 {t(32)}, {t(33)}, {t(34)}
                v_min_u32 {t(32)}, -2, {t(32)}
                global_store_dword v{vEP}, {t(32)}, {sXI[2*L+1]} sc1
                s_mov_b64 exec, -1
                """)
                if ref: selwait(1)
            def nx():
                if L == 1: e(f"s_cmp_lg_u32 {sW}, {sLO}\ns_cbranch_scc1 {lf}")
                x_issue(2 * L + 1)
            if role == 0:
                seg(lead, [], efin, "E_pub", nx, post=FIN)
            else:
                def hw7():
                    lz = g.L("Lz")
                    if L == 1: e(f"s_cmp_lg_u32 {sG}, {sLO}\ns_cbranch_scc1 {lz}")
                    delay(cfg.dhy); hint_wait(2 * L + 1, False); delay(cfg.dy)
                    e(f"{lz}:")
                def dflt():
                    if ref:
                        lz = g.L("Lz")
                        e(f"s_cmp_lg_u32 {sW}, 6\ns_cbranch_scc1 {lz}")
                        probe2()
                        e(f"{lz}:")
                        selwait(1)
                seg(lead, [(WEQ(7), hprep, hw7, (lambda: selwait(1)) if ref else None, lead7)], dflt, "E_pub", nx, post=FIN)
            if L == 0: g.stamp("yh_in")
        xgather(3)
        e(f"s_mov_b32 s42, 0x00ff00ff\ns_mov_b32 s43, 0x00ff00ff\ns_mov_b64 exec, s[42:43]\nglobal_store_dword v{vXO}, {t(14)}, {sOUT} {['', 'sc1', 'sc0 sc1', 'nt'][cfg.osc]}")
        e(f"L_fin{role}:")
        if cfg.stamps:
            e("s_mov_b64 exec, -1")
            g.stamp("end"); g.stamp()
            e(f"""
            s_lshl_b32 s48, s2, 3
            s_add_u32 s48, s48, {sW}
            s_lshl_b32 s48, s48, 8
            s_add_u32 s48, s48, {W_STAMP}
            v_lshlrev_b32 {t(0)}, 2, v{vL}
            v_add_u32 {t(0)}, s48, {t(0)}
            v_writelane_b32 v{g.vst}, {sLOC}, 63
            v_writelane_b32 v{g.vst}, s100, 60
            global_store_dword {t(0)}, v{g.vst}, {sWS}
            v_add_u32 {t(0)}, 0x100000, {t(0)}
            global_store_dword {t(0)}, v{vst2}, {sWS}
            """)
        if cfg.fixdur:
            if cfg.fixwg >= 0: e(f"s_cmp_lg_u32 s2, {cfg.fixwg}\ns_cbranch_scc1 L_end")
            e(f"""
            L_fix{role}:
            s_memrealtime s[94:95]
            s_waitcnt lgkmcnt(0)
            s_sub_u32 s94, s94, s98
            s_cmp_lt_u32 s94, {cfg.fixdur}
            s_cbranch_scc1 L_fix{role}
            """)
        e("s_endpgm")

    program(0)
    program(1)
    if HEAT: g.ool(heat_block)
    def fixpads(txt):
        n = len(g.pads)
        for k in reversed(range(n)):
            txt = txt.replace(f"PADJ{k}\n", (f"s_branch L_pad{k+4}" if k + 4 < n else "s_setpc_b64 s[94:95]") + "\n")
        if cfg.nont: txt = '\n'.join(l[:-3] if (l.endswith(' nt') and 'lds' in l) else l for l in txt.split('\n'))
        return txt
    nv = (g.nv + 7) // 8 * 8
    src = HEADER + f"; @launch grid=(256,1,1) block=(512,1,1) lds={LDS_BYTES}\n"
    if cfg.stamps: src += "; stamps: " + " ".join(g.names) + "\n"
    if cfg.fine: src += "; fine: " + " ".join(g.fnames) + "\n"
    src += f""".amdgcn_target "amdgcn-amd-amdhsa--gfx950"
.text
.globl {NAME}_kernel
.p2align 8
.type {NAME}_kernel,@function
{NAME}_kernel:
""" + fixpads("\n".join(g.o + g.tail)) + f"""
L_end:
s_endpgm
L_pad:
.fill (33024 - (L_pad - {NAME}_kernel)) / 4, 4, 0xbf810000
.section .rodata,"a"
.p2align 6
.amdhsa_kernel {NAME}_kernel
  .amdhsa_next_free_vgpr {nv}
  .amdhsa_next_free_sgpr 102
  .amdhsa_accum_offset {nv}
  .amdhsa_group_segment_fixed_size 0
  .amdhsa_kernarg_size 88
  .amdhsa_user_sgpr_count 2
  .amdhsa_user_sgpr_kernarg_segment_ptr 1
  .amdhsa_system_sgpr_workgroup_id_x 1
.end_amdhsa_kernel
"""
    return src, g

if __name__ == "__main__":
    cfg = Cfg()
    out = "cdna_kernels/%s.s" % NAME
    for a in sys.argv[1:]:
        k, v = a.split("=")
        if k == "out": out = v
        else: setattr(cfg, k, type(getattr(cfg, k))(int(v)))
    src, g = gen(cfg)
    open(out, "w").write(src)
    print(g.fixname, "vgprs", g.nv, "lines", len(g.o) + len(g.tail), "stamps", g.nst, "polls", g.npoll)
```
